```python
import torch

def _softmax(x, axis=-1):
    return torch.softmax(x, dim=axis)
def _gelu(x):
    return torch.nn.functional.gelu(x, approximate="tanh")
def _silu(x):
    return torch.nn.functional.silu(x)
def _sigmoid(x):
    return torch.sigmoid(x)
def _layernorm(x, axis=-1, eps=1e-5):
    m = x.mean(dim=axis, keepdim=True)
    v = x.var(dim=axis, keepdim=True, unbiased=False)
    return (x - m) / torch.sqrt(v + eps)
def _scatter_add(tgt, idx, src, axis=0):
    return tgt.clone().index_add_(axis, idx, src)
def _segment_sum(src, seg, n):
    out = torch.zeros((n,) + src.shape[1:], dtype=src.dtype)
    return out.index_add_(0, seg, src)
def _pad(x, pw):
    flat = tuple(v for pair in reversed(pw) for v in pair)
    return torch.nn.functional.pad(x, flat)

kernel_name = 'gated_mix__sliding_local_dilated__dense_activation_squared_relu__prompt'

def setup_inputs():

    _w = (lambda a: (lambda t: t.to(torch.bfloat16) if t.is_floating_point() else t)(torch.as_tensor(a)))
    def _A_setup():
        B, S, D = 1, 2048, 448
        return {
            "x": _w((lambda *s: torch.randn(*s, dtype=torch.bfloat16) * 0.05)(B, S, D)),
            "wqkv": _w((lambda *s: torch.randn(*s, dtype=torch.bfloat16) * 0.8)(D, 3 * D)),
            "wo": _w((lambda *s: torch.randn(*s, dtype=torch.bfloat16) * 0.05)(D, D)),
        }
    _A_in = _A_setup()

    def _B_setup():
        B, S, D, F = 1, 2048, 448, 1792
        return {
            "x": _w((lambda *s: torch.randn(*s, dtype=torch.bfloat16) * 0.05)(B, S, D)),
            "w1": _w((lambda *s: torch.randn(*s, dtype=torch.bfloat16) * 0.1)(D, F)),
            "b1": _w((lambda *s: torch.randn(*s, dtype=torch.bfloat16) * 0.1)(F)),
            "w2": _w((lambda *s: torch.randn(*s, dtype=torch.bfloat16) * 0.1)(F, D)),
            "b2": _w((lambda *s: torch.randn(*s, dtype=torch.bfloat16) * 0.1)(D)),
        }
    _B_in = _B_setup()

    return {
        "A_x": _A_in["x"],
        "A_wqkv": _A_in["wqkv"],
        "A_wo": _A_in["wo"],
        "B_x": _B_in["x"],
        "B_w1": _B_in["w1"],
        "B_b1": _B_in["b1"],
        "B_w2": _B_in["w2"],
        "B_b2": _B_in["b2"],
        "gate_w": _w((lambda *s: torch.randn(*s, dtype=torch.bfloat16) * 0.05)(448) * 16.0),
    }

def reference(A_x, A_wqkv, A_wo, B_x, B_w1, B_b1, B_w2, B_b2, gate_w):
    def _A_ref(x, wqkv, wo):
        B, S, D = x.shape
        H = 16; Dh = D // H
        W, dil = 8, 2
        qkv = (lambda x, *d: x.permute(*d))((x @ wqkv).reshape(B, S, 3, H, Dh), 2, 0, 3, 1, 4)
        q, k, v = qkv[0], qkv[1], qkv[2]
        scale = Dh ** -0.5
        pos = torch.arange(S)
        off = torch.arange(W) * dil
        idx = pos[:, None] - off[None, :]
        mask = idx >= 0
        idx_c = torch.where(mask, idx, 0).reshape(-1)
        kg = k[:, :, idx_c, :].reshape(B, H, S, W, Dh)
        vg = v[:, :, idx_c, :].reshape(B, H, S, W, Dh)
        logits = torch.einsum("bhsd,bhswd->bhsw", q, kg) * scale
        logits = torch.where(mask[None, None, :, :], logits, -1e9)
        attn = _softmax(logits, axis=-1)
        o = torch.einsum("bhsw,bhswd->bhsd", attn, vg)
        return (lambda x, *d: x.permute(*d))(o, 0, 2, 1, 3).reshape(B, S, D) @ wo

    def _B_ref(x, w1, b1, w2, b2):
        h = torch.einsum("bsd,df->bsf", x, w1) + b1
        zero = torch.zeros_like(h)
        r = torch.where(h > zero, h, zero)
        h = r * r
        out = torch.einsum("bsf,fd->bsd", h, w2) + b2
        return out

    x = A_x
    g = _sigmoid((x * gate_w).sum(-1, keepdims=True))
    a = _A_ref(x, A_wqkv, A_wo)
    b = _B_ref(x, B_w1, B_b1, B_w2, B_b2)
    return g * a + (1 - g) * b
```

```python
class Asm:
    def __init__(self):
        self.lines = []
        self.vm = 0
        self.ds = 0
        self.vm_done = 0
        self.ds_done = 0
    def __call__(self, s):
        for ln in s.strip("\n").split("\n"):
            self.lines.append("    " + ln.strip())
    def label(self, name):
        self.lines.append(name + ":")
    def raw(self, s):
        self.lines.append(s)
    def comment(self, s):
        self.lines.append("    ; " + s)
    def vmem(self, s):
        self(s); self.vm += 1; return self.vm - 1
    def dsop(self, s):
        self(s); self.ds += 1; return self.ds - 1
    def wait_vm(self, ticket):
        if ticket < self.vm_done: return
        n = self.vm - 1 - ticket
        assert n <= 63, f"vmcnt {n} too large"
        self(f"s_waitcnt vmcnt({n})")
        self.vm_done = ticket + 1
    def wait_ds(self, ticket):
        if ticket < self.ds_done: return
        n = self.ds - 1 - ticket
        n = min(n, 14)
        self(f"s_waitcnt lgkmcnt({n})")
        self.ds_done = max(ticket + 1, self.ds - n)
    def wait_ds_all(self):
        self("s_waitcnt lgkmcnt(0)"); self.ds_done = self.ds
    def wait_vm_all(self):
        self("s_waitcnt vmcnt(0)"); self.vm_done = self.vm
    def nop(self, n):
        while n > 0:
            k = min(n, 16)
            self(f"s_nop {k-1}"); n -= k
    def text(self):
        return "\n".join(self.lines) + "\n"

def v(i, n=1): return f"v{i}" if n == 1 else f"v[{i}:{i+n-1}]"
def a(i, n=1): return f"a{i}" if n == 1 else f"a[{i}:{i+n-1}]"
def s(i, n=1): return f"s{i}" if n == 1 else f"s[{i}:{i+n-1}]"
```

```python
import sys
from asmlib import Asm, v, a, s

NAME = "gated_mix__sliding_local_dilated__dense_activation_squared_relu__prompt"
WS_G = 128 * 72 * 1024
WS_BYTES = WS_G + 2048 * 4
SLOT = 28672
R_H, R_Q, R_K, R_V, R_XH = 0, 14336, 18432, 22528, 26624

def srd(A, d, lo, nbytes):
    A(f"s_mov_b32 s{d}, s{lo}")
    A(f"s_and_b32 s{d+1}, s{lo+1}, 0xffff")
    A(f"s_mov_b32 s{d+2}, {nbytes}")
    A(f"s_mov_b32 s{d+3}, 0x20000")

def code_prefetch(A, start, end, vtid, vtmp, vdst, spc, nk):
    A(f"s_getpc_b64 s[{spc}:{spc+1}]")
    A.label(f"{start}_pc")
    A(f"s_sub_u32 s{spc}, s{spc}, {start}_pc-{start}")
    A(f"s_subb_u32 s{spc+1}, s{spc+1}, 0")
    A(f"v_lshlrev_b32 {v(vtmp)}, 4, {v(vtid)}")
    for i in range(nk):
        if i:
            A(f"v_add_u32 {v(vtmp)}, 0x1000, {v(vtmp)}")
        A(f"v_min_u32 {v(vtmp+1)}, {end}-{start}-16, {v(vtmp)}")
        A.vmem(f"global_load_dwordx4 {v(vdst,4)}, {v(vtmp+1)}, s[{spc}:{spc+1}]")

def gen_k1(A, kname, NPF=3):
    S_W, S_RB, S_HC = 3, 4, 5
    X, QKV, W1, WS, B1, GW = 8, 12, 16, 20, 24, 28
    S_X0, S_X1, S_HO, S_QO, S_XH, S_T, S_T2 = 32, 33, 34, 35, 36, 37, 38
    M56, M32 = 40, 42
    MP, MA, MB, MFIRST = 56, 58, 60, 62
    S_M0H, S_M0Q, S_M0X = 64, 65, 66
    S_FR = 67
    S_Q1, S_Q2 = 68, 69
    vTID, vL = 0, 1
    vX, vHAL, vHD, vQD = 2, 3, 4, 5
    vTR = 6
    vT = 21
    vG3 = 28
    vSEL = 29
    vFR = 33
    vBIAS = 36
    vGT = 64
    ACC = 80
    vE = 188
    def acc(tb, t): return ACC + 4 * (13 * tb + t)
    ACC_HL = ACC + 4 * 26
    def ax(ks, tb): return 4 * (2 * ks + tb)
    def aw(buf, f): return 112 + 60 * buf + 4 * f

    A.label(kname)
    A(f"s_cmp_ge_u32 s2, 256\ns_cbranch_scc1 {kname}_end")
    A("s_load_dwordx4 s[44:47], s[0:1], 0")
    A("s_load_dwordx4 s[48:51], s[0:1], 32")
    A("s_load_dwordx2 s[52:53], s[0:1], 64")
    A("s_load_dwordx2 s[54:55], s[0:1], 88")
    code_prefetch(A, kname, kname + "_end", vTID, vT, vE, 70, NPF)
    A(f"v_lshrrev_b32 {v(vT)}, 6, {v(vTID)}")
    A(f"v_and_b32 {v(vL)}, 63, {v(vTID)}")
    A(f"v_readfirstlane_b32 s{S_W}, {v(vT)}")
    A(f"""s_lshr_b32 s{S_T}, s2, 3
s_and_b32 s{S_RB}, s2, 1
s_lshl_b32 s{S_RB}, s{S_RB}, 3
s_and_b32 s{S_T2}, s{S_T}, 7
s_add_u32 s{S_RB}, s{S_RB}, s{S_T2}
s_bfe_u32 s{S_HC}, s2, 0x20001
s_lshl_b32 s{S_HC}, s{S_HC}, 2
s_lshr_b32 s{S_T2}, s{S_T}, 3
s_add_u32 s{S_HC}, s{S_HC}, s{S_T2}""")
    c16, g = vT, vT + 1
    A(f"v_and_b32 {v(c16)}, 15, {v(vL)}")
    A(f"v_lshrrev_b32 {v(g)}, 4, {v(vL)}")
    A(f"v_mul_u32_u24 {v(vX)}, 896, {v(c16)}")
    A(f"v_lshl_add_u32 {v(vX)}, {v(g)}, 4, {v(vX)}")
    A(f"v_mul_u32_u24 {v(vT+2)}, 4682, {v(vL)}")
    A(f"v_lshrrev_b32 {v(vT+2)}, 16, {v(vT+2)}")
    A(f"v_mul_u32_u24 {v(vHD)}, 3360, {v(vT+2)}")
    A(f"v_lshl_add_u32 {v(vHD)}, {v(vL)}, 4, {v(vHD)}")
    A(f"v_bfe_u32 {v(vT+2)}, {v(vL)}, 2, 2")
    A(f"v_lshl_add_u32 {v(vT+2)}, {v(g)}, 3, {v(vT+2)}")
    A(f"v_mul_u32_u24 {v(vQD)}, 2688, {v(vT+2)}")
    A(f"v_and_b32 {v(vT+3)}, 1, {v(g)}")
    A(f"v_lshlrev_b32 {v(vT+4)}, 1, {v(vT+3)}")
    A(f"v_and_b32 {v(vT+5)}, 3, {v(vL)}")
    A(f"v_xor_b32 {v(vT+4)}, {v(vT+4)}, {v(vT+5)}")
    A(f"v_lshl_add_u32 {v(vQD)}, {v(vT+4)}, 4, {v(vQD)}")
    A(f"v_lshrrev_b32 {v(vT+2)}, 2, {v(vL)}")
    A(f"v_mul_u32_u24 {v(vTR)}, 224, {v(vT+2)}")
    A(f"v_lshl_add_u32 {v(vTR)}, {v(vT+5)}, 3, {v(vTR)}")
    A(f"v_lshlrev_b32 {v(vTR+1)}, 6, {v(vT+2)}")
    A(f"v_lshl_add_u32 {v(vTR+1)}, {v(vT+3)}, 5, {v(vTR+1)}")
    A(f"v_lshl_add_u32 {v(vTR+1)}, {v(vT+5)}, 3, {v(vTR+1)}")
    A(f"v_xor_b32 {v(vTR+2)}, 32, {v(vTR+1)}")
    A(f"""s_and_b32 s{S_T}, s{S_W}, 1
s_lshl_b32 s{S_T}, s{S_T}, 5
s_lshr_b32 s{S_T2}, s{S_W}, 1
s_lshl_b32 s{S_T2}, s{S_T2}, 12""")
    A(f"v_xor_b32 {v(vTR+3)}, s{S_T}, {v(vTR+1)}")
    A(f"v_add_u32 {v(vTR+3)}, s{S_T2}, {v(vTR+3)}")
    A(f"v_lshlrev_b32 {v(vTR+4)}, 4, {v(vL)}")
    A(f"v_mov_b32 {v(vFR)}, {v(vTR+4)}")
    for z in (1, 2):
        for i in range(5):
            A(f"v_add_u32 {v(vTR+5*z+i)}, {z*2*SLOT}, {v(vTR+i)}")
    A(f"s_mov_b32 s{M56}, -1\ns_mov_b32 s{M56+1}, 0x00ffffff\ns_mov_b32 s{M32}, -1\ns_mov_b32 s{M32+1}, 0")
    A(f"""s_lshr_b32 s{S_T}, s{S_W}, 1
s_lshl_b32 s{S_T}, s{S_T}, 5
s_and_b32 s{S_T2}, s{S_W}, 1
s_lshl_b32 s{S_T2}, s{S_T2}, 2
s_add_u32 s{S_T}, s{S_T}, s{S_T2}
s_mul_i32 s{S_HO}, s{S_T}, 3584
s_mul_i32 s{S_T2}, s{S_HC}, 224
s_add_u32 s{S_HO}, s{S_HO}, s{S_T2}
s_mul_i32 s{S_QO}, s{S_T}, 2688
s_mul_i32 s{S_T2}, s{S_HC}, 56
s_add_u32 s{S_QO}, s{S_QO}, s{S_T2}
s_lshl_b32 s{S_T}, s{S_RB}, 7
s_lshl_b32 s{S_T2}, s{S_W}, 5
s_add_u32 s{S_T2}, s{S_T}, s{S_T2}
s_mul_i32 s{S_X0}, s{S_T2}, 896
s_add_u32 s{S_X1}, s{S_X0}, 14336
s_sub_i32 s{S_T}, s{S_T}, 16
s_max_i32 s{S_T}, s{S_T}, 0
s_mul_i32 s{S_XH}, s{S_T}, 896
s_lshl_b32 s{S_T}, s{S_W}, 5
s_add_u32 s{S_XH}, s{S_XH}, s{S_T}""")
    A(f"""s_mul_i32 s{S_M0H}, s{S_W}, 3584
s_lshl_b32 s{S_M0Q}, s{S_W}, 10
s_add_u32 s{S_M0Q}, s{S_M0Q}, {R_Q}
s_lshl_b32 s{S_M0X}, s{S_W}, 9
s_add_u32 s{S_M0X}, s{S_M0X}, {R_XH}""")
    A("s_waitcnt lgkmcnt(0)")
    srd(A, X, 44, 2048 * 896)
    srd(A, QKV, 46, 448 * 2688)
    srd(A, W1, 48, 448 * 3584)
    srd(A, B1, 50, 3584)
    srd(A, GW, 52, 896)
    srd(A, WS, 54, WS_BYTES)
    A(f"v_and_b32 {v(vT+2)}, 31, {v(vL)}")
    A(f"v_mul_u32_u24 {v(vT+2)}, 28, {v(vT+2)}")
    A(f"v_lshrrev_b32 {v(vT+3)}, 5, {v(vL)}")
    A(f"v_mul_u32_u24 {v(vT+3)}, 896, {v(vT+3)}")
    A(f"v_add_u32 {v(vT+3)}, {v(vT+3)}, {v(vT+2)}")
    A(f"""s_lshl_b32 s{S_T}, s{S_RB}, 7
s_lshl_b32 s{S_T2}, s{S_HC}, 3
s_add_u32 s{S_T}, s{S_T}, s{S_T2}
s_lshl_b32 s{S_T2}, s{S_W}, 1
s_add_u32 s{S_Q1}, s{S_T}, s{S_T2}
s_mul_i32 s{S_T}, s{S_Q1}, 896""")
    A.vmem(f"buffer_load_dwordx4 {v(vGT,4)}, {v(vT+3)}, s[{X}:{X+3}], s{S_T} offen")
    A.vmem(f"buffer_load_dwordx3 {v(vGT+4,3)}, {v(vT+3)}, s[{X}:{X+3}], s{S_T} offen offset:16")
    A.vmem(f"buffer_load_dwordx4 {v(vGT+8,4)}, {v(vT+2)}, s[{GW}:{GW+3}], 0 offen")
    A.vmem(f"buffer_load_dwordx3 {v(vGT+12,3)}, {v(vT+2)}, s[{GW}:{GW+3}], 0 offen offset:16")
    A(f"v_lshlrev_b32 {v(vT+2)}, 3, {v(g)}")
    A(f"s_mul_i32 s{S_T2}, s{S_HC}, 224")
    for b in range(7):
        tk_bias = A.vmem(f"buffer_load_dwordx2 {v(vE+4+2*b,2)}, {v(vT+2)}, s[{B1}:{B1+3}], s{S_T2} offen offset:{32*b}")

    chunk_last = {}
    def chunk_ops(c):
        sb = (c % 5) * SLOT
        ops = []
        def hdma(gi):
            def f():
                if gi == 0: A(f"s_mov_b64 exec, s[{M56}:{M56+1}]")
                A(f"s_add_u32 m0, s{S_M0H}, {sb + gi*896}")
                A(f"s_add_u32 s{S_T}, s{S_HO}, {(64*c + 8*gi)*3584}")
                A.vmem(f"buffer_load_dwordx4 {v(vHD)}, s[{W1}:{W1+3}], s{S_T} offen lds")
                if gi == 3: A("s_mov_b64 exec, -1")
            return f
        def qdma(p):
            def f():
                A(f"s_add_u32 m0, s{S_M0Q}, {sb + p*4096}")
                A(f"s_add_u32 s{S_T}, s{S_QO}, {c*172032 + 896*p}")
                A.vmem(f"buffer_load_dwordx4 {v(vQD)}, s[{QKV}:{QKV+3}], s{S_T} offen lds")
            return f
        def xh():
            A(f"s_mov_b64 exec, s[{M32}:{M32+1}]")
            A(f"s_add_u32 m0, s{S_M0X}, {sb}")
            A(f"s_add_u32 s{S_T}, s{S_XH}, {128*c}")
            A.vmem(f"buffer_load_dwordx4 {v(vX)}, s[{X}:{X+3}], s{S_T} offen lds")
            A("s_mov_b64 exec, -1")
        def xl(ks, tb, last):
            def f():
                t = A.vmem(f"buffer_load_dwordx4 {a(ax(ks,tb),4)}, {v(vX)}, s[{X}:{X+3}], s{S_X0 if tb == 0 else S_X1} offen offset:{64*ks}")
                if last: chunk_last[c] = t
            return f
        def hall():
            for gi in range(4): hdma(gi)()
        ops += [qdma(0), qdma(1), qdma(2), hall, xh]
        ops += [xl(2*c, 0, False), xl(2*c, 1, False), xl(2*c+1, 0, False), xl(2*c+1, 1, True)]
        return ops
    for c in range(4):
        for f in chunk_ops(c): f()

    qi = c16
    A(f"v_and_b32 {v(vT+2)}, 1, {v(qi)}")
    A(f"v_cmp_eq_u32 s[{MP}:{MP+1}], 1, {v(vT+2)}")
    A(f"v_lshl_add_u32 {v(vT+3)}, {v(g)}, 2, {v(vT+2)}")
    A(f"v_cmp_le_u32 s[{MA}:{MA+1}], {v(vT+3)}, {v(qi)}")
    A(f"v_add_u32 {v(vT+3)}, 2, {v(vT+3)}")
    A(f"v_cmp_le_u32 s[{MB}:{MB+1}], {v(vT+3)}, {v(qi)}")
    A(f"v_cmp_eq_u32 vcc, 3, {v(g)}")
    A(f"v_mov_b32 {v(vT+4)}, 0x0c0c0100\nv_mov_b32 {v(vT+5)}, 0x01000c0c\nv_mov_b32 {v(vT+6)}, 0x0c0c0c0c")
    A(f"v_cndmask_b32 {v(vG3)}, -1, 0, vcc")
    A(f"v_cndmask_b32 {v(vT+4)}, {v(vT+4)}, {v(vT+5)}, s[{MP}:{MP+1}]")
    A(f"v_cndmask_b32 {v(vSEL+0)}, {v(vT+4)}, {v(vT+6)}, s[{MA}:{MA+1}]")
    A(f"v_cndmask_b32 {v(vSEL+2)}, {v(vT+6)}, {v(vT+4)}, s[{MA}:{MA+1}]")
    A(f"v_mov_b32 {v(vT+4)}, 0x0c0c0302\nv_mov_b32 {v(vT+5)}, 0x03020c0c")
    A(f"v_cndmask_b32 {v(vT+4)}, {v(vT+4)}, {v(vT+5)}, s[{MP}:{MP+1}]")
    A(f"v_cndmask_b32 {v(vSEL+1)}, {v(vT+4)}, {v(vT+6)}, s[{MB}:{MB+1}]")
    A(f"v_cndmask_b32 {v(vSEL+3)}, {v(vT+6)}, {v(vT+4)}, s[{MB}:{MB+1}]")
    A(f"""s_or_b32 s{S_T}, s{S_RB}, s{S_W}
s_cmp_eq_u32 s{S_T}, 0
s_cselect_b32 s{MFIRST}, -1, 0
s_cselect_b32 s{MFIRST+1}, -1, 0""")
    A(f"""s_lshl_b32 s{S_T}, s{S_RB}, 3
s_lshl_b32 s{S_T2}, s{S_W}, 1
s_add_u32 s{S_T}, s{S_T}, s{S_T2}
s_mul_i32 s{S_FR}, s{S_T}, 72
s_lshr_b32 s{S_T}, s{S_HC}, 2
s_mul_i32 s{S_T}, s{S_T}, 18
s_add_u32 s{S_FR}, s{S_FR}, s{S_T}
s_lshl_b32 s{S_FR}, s{S_FR}, 10""")

    A.wait_vm(tk_bias)
    gz = vT + 2
    A(f"v_mov_b32 {v(gz)}, 0")
    for i in range(7):
        A(f"v_dot2c_f32_bf16 {v(gz)}, {v(vGT+i)}, {v(vGT+8+i)}")
    for b in range(7):
        for j in range(2):
            src = vE + 4 + 2 * b + j
            A(f"v_lshlrev_b32 {v(vBIAS+4*b+2*j)}, 16, {v(src)}")
            A(f"v_and_b32 {v(vBIAS+4*b+2*j+1)}, 0xffff0000, {v(src)}")
    for dpp in ("quad_perm:[1,0,3,2]", "quad_perm:[2,3,0,1]", "row_half_mirror", "row_mirror"):
        A("s_nop 1")
        A(f"v_add_f32_dpp {v(gz)}, {v(gz)}, {v(gz)} {dpp} row_mask:0xf bank_mask:0xf")
    A(f"v_mov_b32 {v(gz+1)}, {v(gz)}")
    A("s_nop 1")
    A(f"v_permlane16_swap_b32 {v(gz)}, {v(gz+1)}")
    A("s_nop 1")
    A(f"v_add_f32 {v(gz)}, {v(gz)}, {v(gz+1)}")
    A(f"v_mul_f32 {v(gz)}, 0xbfb8aa3b, {v(gz)}")
    A(f"v_exp_f32 {v(gz)}, {v(gz)}")
    A("s_nop 0")
    A(f"v_add_f32 {v(gz)}, 1.0, {v(gz)}")
    A(f"v_rcp_f32 {v(gz)}, {v(gz)}")
    A(f"v_lshrrev_b32 {v(gz+1)}, 5, {v(vL)}")
    A(f"v_lshlrev_b32 {v(gz+1)}, 2, {v(gz+1)}")
    A(f"s_lshl_b32 s{S_T}, s{S_Q1}, 2\ns_add_u32 s{S_T}, s{S_T}, {WS_G}")
    A("s_mov_b32 exec_lo, 1\ns_mov_b32 exec_hi, 1")
    A.vmem(f"buffer_store_dword {v(gz)}, {v(gz+1)}, s[{WS}:{WS+3}], s{S_T} offen")
    A("s_mov_b64 exec, -1")

    rd_ticket = {}
    def reads(ks):
        c, s2 = ks // 2, ks % 2
        slot = c % 5; z = slot // 2; rel = (slot % 2) * SLOT
        buf = ks & 1
        out = []
        def tr(f, hf, va, off):
            def fn():
                t = A.dsop(f"ds_read_b64_tr_b16 {a(aw(buf,f)+2*hf,2)}, {v(va)} offset:{off}")
                rd_ticket[(ks, f)] = t
            return fn
        for f in range(6):
            reg = (R_Q, R_K, R_V)[f // 2]
            for hf in range(2):
                out.append(tr(f, hf, vTR + 5*z + 1 + (f & 1), rel + reg + (32*s2 + 16*hf) * 64))
        for b in range(7):
            for hf in range(2):
                out.append(tr(6 + b, hf, vTR + 5*z, rel + R_H + (32*s2 + 16*hf) * 224 + 32*b))
        for hf in range(2):
            out.append(tr(13, hf, vTR + 5*z + 3, rel + R_K + (32*s2 + 16*hf) * 64))
        def xr():
            t = A.dsop(f"ds_read_b128 {a(aw(buf,14),4)}, {v(vTR+5*z+4)} offset:{rel + R_XH + 1024*s2}")
            rd_ticket[(ks, 14)] = t
        out.append(xr)
        return out
    def mfmas(ks):
        buf = ks & 1
        out = []
        for f in range(13):
            for tb in range(2):
                d = v(acc(tb, f), 4)
                cc = d if ks else ("0" if f < 6 else v(vBIAS + 4*(f-6), 4))
                wf, xf = a(aw(buf, f), 4), a(ax(ks, tb), 4)
                if f in (4, 5): ins = f"v_mfma_f32_16x16x32_bf16 {d}, {xf}, {wf}, {cc}"
                else: ins = f"v_mfma_f32_16x16x32_bf16 {d}, {wf}, {xf}, {cc}"
                out.append((ins, [(ks, f)]))
        d = v(ACC_HL, 4)
        out.append((f"v_mfma_f32_16x16x32_bf16 {d}, {a(aw(buf,13),4)}, {a(aw(buf,14),4)}, {d if ks else '0'}", [(ks, 13), (ks, 14)]))
        return out

    A.wait_vm(chunk_last[0])
    A("s_barrier")
    for f in reads(0): f()
    for ks in range(14):
        fill = []
        if ks % 2 == 1 and ks < 13:
            j = (ks + 1) // 2
            A.wait_vm(chunk_last[j])
            A("s_barrier")
        vm_fill = []
        if ks == 0: vm_fill = chunk_ops(4)
        if ks == 3: vm_fill = chunk_ops(5)
        if ks == 5: vm_fill = chunk_ops(6)
        rd = reads(ks + 1) if ks < 13 else []
        ms = mfmas(ks)
        ri = 0; vi = 0
        for m, (ins, deps) in enumerate(ms):
            for dkey in deps: A.wait_ds(rd_ticket[dkey])
            A(ins)
            want = ((m + 1) * len(rd) + 24) // 25 if rd else 0
            while ri < min(want, len(rd)):
                rd[ri](); ri += 1
            if vi < len(vm_fill) and m % 3 == 1:
                vm_fill[vi](); vi += 1
        while ri < len(rd): rd[ri](); ri += 1
        while vi < len(vm_fill): vm_fill[vi](); vi += 1

    XCH = 4 * SLOT
    KP = vE
    QP = vE + 12
    VP = vE + 20
    HLP = vE + 32
    vXA = vE + 34
    SP, SC = vE + 40, vE + 44
    tA, tB, tC, tD = vE + 48, vE + 49, vE + 50, vE + 51
    PP = vE + 52
    OO = vE + 56
    OP = vE + 64
    A.nop(8)
    def pk(dst, src):
        A(f"v_cvt_pk_bf16_f32 {v(dst)}, {v(src)}, {v(src+1)}")
        A(f"v_cvt_pk_bf16_f32 {v(dst+1)}, {v(src+2)}, {v(src+3)}")
    for tb in (1, 0):
        pk(KP + 4 + 4*tb, acc(tb, 2)); pk(KP + 6 + 4*tb, acc(tb, 3))
        pk(VP + 2 + 2*tb, acc(tb, 4)); pk(VP + 8 + 2*tb, acc(tb, 5))
    pk(HLP, ACC_HL)
    A(f"s_lshl_b32 s{S_T}, s{S_W}, 11\ns_add_u32 s{S_T}, s{S_T}, {XCH}")
    A(f"v_add_u32 {v(vXA)}, s{S_T}, {v(vFR)}")
    A(f"v_lshrrev_b32 {v(vXA+1)}, 1, {v(vFR)}")
    A(f"v_add_u32 {v(vXA+1)}, s{S_T}, {v(vXA+1)}")
    A.dsop(f"ds_write_b128 {v(vXA)}, {v(KP+8,4)} offset:2048")
    A.dsop(f"ds_write_b64 {v(vXA+1)}, {v(VP+4,2)} offset:{2048+1024}")
    A.dsop(f"ds_write_b64 {v(vXA+1)}, {v(VP+10,2)} offset:{2048+1536}")
    A(f"s_cmp_ge_u32 s{S_W}, 2\ns_cbranch_scc1 {kname}_hv")
    A(f"s_lshl_b32 s{S_T}, s{S_W}, 3\ns_add_u32 s{S_T}, s{S_T}, {XCH}")
    A(f"v_add_u32 {v(vXA+2)}, s{S_T}, {v(vFR)}")
    A(f"ds_write_b64 {v(vXA+2)}, {v(HLP,2)}")
    A(f"s_branch {kname}_hd")
    A.label(f"{kname}_hv")
    A(f"s_and_b32 s{S_T}, s{S_W}, 1\ns_lshl_b32 s{S_T}, s{S_T}, 9\ns_add_u32 s{S_T}, s{S_T}, {XCH+1024}")
    A(f"v_bfe_u32 {v(vXA+2)}, {v(vL)}, 2, 2")
    A(f"v_lshlrev_b32 {v(vXA+2)}, 7, {v(vXA+2)}")
    A(f"v_lshrrev_b32 {v(vXA+3)}, 4, {v(vL)}")
    A(f"v_lshl_add_u32 {v(vXA+2)}, {v(vXA+3)}, 5, {v(vXA+2)}")
    A(f"v_and_b32 {v(vXA+3)}, 3, {v(vL)}")
    A(f"v_lshl_add_u32 {v(vXA+2)}, {v(vXA+3)}, 1, {v(vXA+2)}")
    A(f"v_add_u32 {v(vXA+2)}, s{S_T}, {v(vXA+2)}")
    A(f"ds_write_b16 {v(vXA+2)}, {v(HLP)}")
    A(f"ds_write_b16_d16_hi {v(vXA+2)}, {v(HLP)} offset:8")
    A(f"ds_write_b16 {v(vXA+2)}, {v(HLP+1)} offset:16")
    A(f"ds_write_b16_d16_hi {v(vXA+2)}, {v(HLP+1)} offset:24")
    A.label(f"{kname}_hd")
    for tb in (1, 0):
        pk(QP + 4*tb, acc(tb, 0)); pk(QP + 2 + 4*tb, acc(tb, 1))
        A(f"v_and_b32 {v(QP+2+4*tb)}, {v(vG3)}, {v(QP+2+4*tb)}")
        A(f"v_and_b32 {v(QP+3+4*tb)}, {v(vG3)}, {v(QP+3+4*tb)}")
    A(f"""s_and_b32 s{S_T}, s{S_HC}, 3
s_lshl_b32 s{S_Q1}, s{S_T}, 10
s_add_u32 s{S_Q1}, s{S_Q1}, s{S_FR}
s_mul_i32 s{S_T}, s{S_T}, 3072
s_add_u32 s{S_Q2}, s{S_T}, s{S_FR}
s_add_u32 s{S_Q2}, s{S_Q2}, 4096
s_bfe_u32 s{S_T}, s{S_HC}, 0x10001
s_lshl_b32 s{S_T}, s{S_T}, 10
s_add_u32 s{S_T}, s{S_T}, s{S_FR}
s_and_b32 s{S_T2}, s{S_HC}, 1
s_lshl_b32 s{S_T2}, s{S_T2}, 3
s_add_u32 s{S_XH}, s{S_T}, s{S_T2}
s_add_u32 s{S_XH}, s{S_XH}, 16384""")
    A(f"s_add_u32 s{S_X0}, s{S_Q1}, 73728\ns_add_u32 s{S_X1}, s{S_Q2}, 73728\ns_add_u32 s{S_HO}, s{S_XH}, 73728")

    CSC = "0x3e8b97f6"
    def attention(tb):
        kprev, kcur, q = KP + 4*tb, KP + 4 + 4*tb, QP + 4*tb
        A(f"v_mfma_f32_16x16x32_bf16 {v(SP,4)}, {v(kprev,4)}, {v(q,4)}, 0")
        A(f"v_mfma_f32_16x16x32_bf16 {v(SC,4)}, {v(kcur,4)}, {v(q,4)}, 0")
        A.nop(8)
        A(f"v_cndmask_b32 {v(tA)}, {v(SP)}, {v(SP+1)}, s[{MP}:{MP+1}]")
        A(f"v_cndmask_b32 {v(tB)}, {v(SP+2)}, {v(SP+3)}, s[{MP}:{MP+1}]")
        if tb == 0:
            A(f"v_mov_b32 {v(tC)}, 0xf149f2ca")
            A(f"v_cndmask_b32 {v(tA)}, {v(tA)}, {v(tC)}, s[{MFIRST}:{MFIRST+1}]")
            A(f"v_cndmask_b32 {v(tB)}, {v(tB)}, {v(tC)}, s[{MFIRST}:{MFIRST+1}]")
        A(f"v_cndmask_b32 {v(tC)}, {v(SC)}, {v(SC+1)}, s[{MP}:{MP+1}]")
        A(f"v_cndmask_b32 {v(tD)}, {v(SC+2)}, {v(SC+3)}, s[{MP}:{MP+1}]")
        A(f"v_cndmask_b32 {v(tA)}, {v(tA)}, {v(tC)}, s[{MA}:{MA+1}]")
        A(f"v_cndmask_b32 {v(tB)}, {v(tB)}, {v(tD)}, s[{MB}:{MB+1}]")
        A(f"v_max_f32 {v(tC)}, {v(tA)}, {v(tB)}")
        for sw in ("v_permlane16_swap_b32", "v_permlane32_swap_b32"):
            A(f"v_mov_b32 {v(tD)}, {v(tC)}")
            A("s_nop 1")
            A(f"{sw} {v(tC)}, {v(tD)}")
            A("s_nop 1")
            A(f"v_max_f32 {v(tC)}, {v(tC)}, {v(tD)}")
        A(f"v_sub_f32 {v(tA)}, {v(tA)}, {v(tC)}")
        A(f"v_sub_f32 {v(tB)}, {v(tB)}, {v(tC)}")
        A(f"v_mul_f32 {v(tA)}, {CSC}, {v(tA)}")
        A(f"v_mul_f32 {v(tB)}, {CSC}, {v(tB)}")
        A(f"v_exp_f32 {v(tA)}, {v(tA)}")
        A(f"v_exp_f32 {v(tB)}, {v(tB)}")
        A("s_nop 0")
        A(f"v_add_f32 {v(tC)}, {v(tA)}, {v(tB)}")
        for sw in ("v_permlane16_swap_b32", "v_permlane32_swap_b32"):
            A(f"v_mov_b32 {v(tD)}, {v(tC)}")
            A("s_nop 1")
            A(f"{sw} {v(tC)}, {v(tD)}")
            A("s_nop 1")
            A(f"v_add_f32 {v(tC)}, {v(tC)}, {v(tD)}")
        A(f"v_rcp_f32 {v(tC)}, {v(tC)}")
        A("s_nop 0")
        A(f"v_mul_f32 {v(tA)}, {v(tA)}, {v(tC)}")
        A(f"v_mul_f32 {v(tB)}, {v(tB)}, {v(tC)}")
        A(f"v_cvt_pk_bf16_f32 {v(tA)}, {v(tA)}, {v(tB)}")
        for i in range(4):
            A(f"v_perm_b32 {v(PP+i)}, {v(tA)}, {v(tA)}, {v(vSEL+i)}")
        A("s_nop 1")
        A(f"v_mfma_f32_16x16x32_bf16 {v(OO,4)}, {v(VP+2*tb,4)}, {v(PP,4)}, 0")
        A(f"v_mfma_f32_16x16x32_bf16 {v(OO+4,4)}, {v(VP+6+2*tb,4)}, {v(PP,4)}, 0")
        A.nop(8)
        pk(OP, OO); pk(OP + 2, OO + 4)
        A(f"v_and_b32 {v(OP+2)}, {v(vG3)}, {v(OP+2)}")
        A(f"v_and_b32 {v(OP+3)}, {v(vG3)}, {v(OP+3)}")
        A.vmem(f"buffer_store_dwordx4 {v(OP,4)}, {v(vFR)}, s[{WS}:{WS+3}], s{S_Q1 if tb == 0 else S_X0} offen")
        A("s_nop 1")
    def hepi(tb):
        for b in range(7):
            r = acc(tb, 6 + b)
            for i in range(4): A(f"v_max_f32 {v(r+i)}, 0, {v(r+i)}")
            A(f"v_pk_mul_f32 {v(r,2)}, {v(r,2)}, {v(r,2)}")
            A(f"v_pk_mul_f32 {v(r+2,2)}, {v(r+2,2)}, {v(r+2,2)}")
            dst = acc(tb, 6 + (b & ~1)) + 2 * (b & 1)
            A(f"v_cvt_pk_bf16_f32 {v(dst)}, {v(r)}, {v(r+1)}")
            A(f"v_cvt_pk_bf16_f32 {v(dst+1)}, {v(r+2)}, {v(r+3)}")
            if b & 1:
                A.vmem(f"buffer_store_dwordx4 {v(acc(tb,5+b),4)}, {v(vFR)}, s[{WS}:{WS+3}], s{S_Q2 if tb == 0 else S_X1} offen offset:{1024*(b//2)}")
        A.vmem(f"buffer_store_dwordx2 {v(acc(tb,12),2)}, {v(vFR)}, s[{WS}:{WS+3}], s{S_XH if tb == 0 else S_HO} offen")
    attention(1)
    A.wait_ds_all()
    A("s_barrier")
    A.dsop(f"ds_read_b128 {v(KP,4)}, {v(vXA)}")
    A.dsop(f"ds_read_b64 {v(VP,2)}, {v(vXA+1)} offset:1024")
    A.dsop(f"ds_read_b64 {v(VP+6,2)}, {v(vXA+1)} offset:1536")
    hepi(1)
    A.wait_ds_all()
    attention(0)
    hepi(0)
    A.label(f"{kname}_end")
    A("s_endpgm")

def gen_k2(A, kname, NPF=3):
    NSLOT = 8; KSB = 3584
    RED = 4 * NSLOT * KSB
    S_W, S_TT, S_CT = 3, 4, 5
    WO, W2, WS, OUT, B2 = 8, 12, 16, 20, 24
    S_T, S_T2, S_LB, S_CO = 32, 33, 34, 35
    S_F = 36
    M56 = 40
    vTID, vL, vFR, vWD, vTRA, vT = 0, 1, 2, 3, 4, 5
    vG = 12
    vB2 = 20
    vB2R = 36
    ACA, ACB = 48, 112
    vE = 176
    DEPTH = NSLOT - 1
    def af(ks, j): return 16 * (ks % NSLOT) + 4 * j
    def aw(buf, t): return 128 + 16 * buf + 4 * t

    A.label(kname)
    A(f"s_cmp_ge_u32 s2, 256\ns_cbranch_scc1 {kname}_end")
    A("s_load_dwordx2 s[44:45], s[0:1], 16")
    A("s_load_dwordx4 s[48:51], s[0:1], 48")
    A("s_load_dwordx2 s[52:53], s[0:1], 72")
    A("s_load_dwordx2 s[54:55], s[0:1], 88")
    code_prefetch(A, kname, kname + "_end", vTID, vT, vE, 70, NPF)
    A(f"v_lshrrev_b32 {v(vT)}, 6, {v(vTID)}")
    A(f"v_and_b32 {v(vL)}, 63, {v(vTID)}")
    A(f"v_readfirstlane_b32 s{S_W}, {v(vT)}")
    A(f"""s_and_b32 s{S_TT}, s2, 7
s_lshl_b32 s{S_TT}, s{S_TT}, 2
s_bfe_u32 s{S_T}, s2, 0x20003
s_add_u32 s{S_TT}, s{S_TT}, s{S_T}
s_lshr_b32 s{S_CT}, s2, 5""")
    A(f"v_lshlrev_b32 {v(vFR)}, 4, {v(vL)}")
    A(f"v_mul_u32_u24 {v(vT)}, 9363, {v(vL)}")
    A(f"v_lshrrev_b32 {v(vT)}, 16, {v(vT)}")
    A(f"v_mul_u32_u24 {v(vWD)}, 784, {v(vT)}")
    A(f"v_add_u32 {v(vWD)}, {v(vWD)}, {v(vFR)}")
    A(f"s_mul_i32 s{S_LB}, s{S_W}, {NSLOT*KSB}")
    A(f"v_lshrrev_b32 {v(vT)}, 2, {v(vL)}")
    A(f"v_mul_u32_u24 {v(vTRA)}, 112, {v(vT)}")
    A(f"v_and_b32 {v(vT)}, 3, {v(vL)}")
    A(f"v_lshl_add_u32 {v(vTRA)}, {v(vT)}, 5, {v(vTRA)}")
    A(f"v_add_u32 {v(vTRA)}, s{S_LB}, {v(vTRA)}")
    A(f"s_mov_b32 s{M56}, -1\ns_mov_b32 s{M56+1}, 0x00ffffff")
    A(f"s_mul_i32 s{S_CO}, s{S_CT}, 112")
    A(f"""s_mul_i32 s{S_T}, s{S_TT}, 288
s_mul_i32 s{S_T2}, s{S_W}, 18
s_add_u32 s{S_T}, s{S_T}, s{S_T2}
s_lshl_b32 s{S_F}, s{S_T}, 10
s_add_u32 s{S_F+1}, s{S_F}, 73728
s_add_u32 s{S_F+2}, s{S_F+1}, 73728
s_add_u32 s{S_F+3}, s{S_F+2}, 73728""")
    S_WOB, S_W2B = 42, 43
    A(f"""s_mul_i32 s{S_WOB}, s{S_W}, {112*896}
s_add_u32 s{S_WOB}, s{S_WOB}, s{S_CO}
s_mul_i32 s{S_W2B}, s{S_W}, {448*896}
s_add_u32 s{S_W2B}, s{S_W2B}, s{S_CO}""")
    A("s_waitcnt lgkmcnt(0)")
    srd(A, WO, 44, 448 * 896)
    srd(A, W2, 48, 1792 * 896)
    srd(A, B2, 50, 896)
    srd(A, OUT, 52, 2048 * 896)
    srd(A, WS, 54, WS_BYTES)
    A(f"v_and_b32 {v(vT)}, 15, {v(vL)}")
    A(f"v_lshlrev_b32 {v(vT)}, 2, {v(vT)}")
    A(f"s_lshl_b32 s{S_T}, s{S_TT}, 8\ns_add_u32 s{S_T}, s{S_T}, {WS_G}")
    for j in range(4):
        A.vmem(f"buffer_load_dword {v(vG+j)}, {v(vT)}, s[{WS}:{WS+3}], s{S_T} offen offset:{64*j}")
    A(f"v_lshrrev_b32 {v(vT+1)}, 4, {v(vL)}")
    A(f"v_lshlrev_b32 {v(vT+1)}, 5, {v(vT+1)}")
    A.vmem(f"buffer_load_dwordx4 {v(vB2R,4)}, {v(vT+1)}, s[{B2}:{B2+3}], s{S_CO} offen")
    tk_small = A.vmem(f"buffer_load_dwordx4 {v(vB2R+4,4)}, {v(vT+1)}, s[{B2}:{B2+3}], s{S_CO} offen offset:16")

    def rows(i):
        if i < 4: return WO, S_WOB, 28*i, 28*i + 16
        if i < 16:
            ii, p = (i-4)//3, (i-4) % 3
            return W2, S_W2B, 112*ii + 32*p, 112*ii + 32*p + 16
        u = i - 16
        return W2, S_W2B, 224*u + 96, 224*u + 208
    last = {}
    def step_ops(i):
        sr, sbase, r0, r1 = rows(i)
        slot = i % NSLOT
        def wd():
            A(f"s_mov_b64 exec, s[{M56}:{M56+1}]")
            for q, r in enumerate((r0, r0+8, r1, r1+8)):
                A(f"s_add_u32 m0, s{S_LB}, {slot*KSB + 896*q}")
                A(f"s_add_u32 s{S_T}, s{sbase}, {r*896}")
                A.vmem(f"buffer_load_dwordx4 {v(vWD)}, s[{sr}:{sr+3}], s{S_T} offen lds")
            A("s_mov_b64 exec, -1")
        def fl(j):
            def f():
                if i % 4 == 0 and i > 0:
                    A(f"s_add_u32 s{S_F+j}, s{S_F+j}, 4096")
                t = A.vmem(f"buffer_load_dwordx4 {a(af(i,j),4)}, {v(vFR)}, s[{WS}:{WS+3}], s{S_F+j} offen offset:{1024*(i%4)}")
                if j == 3: last[i] = t
            return f
        return [wd] + [fl(j) for j in range(4)]
    for i in range(DEPTH):
        for f in step_ops(i): f()
    A.wait_vm(tk_small)
    for j in range(4): A(f"v_sub_f32 {v(vG+4+j)}, 1.0, {v(vG+j)}")
    for i in range(8):
        A(f"v_lshlrev_b32 {v(vB2+2*i)}, 16, {v(vB2R+i)}")
        A(f"v_and_b32 {v(vB2+2*i+1)}, 0xffff0000, {v(vB2R+i)}")
    rdt = {}
    def reads(i):
        out = []
        for t in range(4):
            for hf in range(2):
                def fn(t=t, hf=hf):
                    rdt[(i, t)] = A.dsop(f"ds_read_b64_tr_b16 {a(aw(i&1,t)+2*hf,2)}, {v(vTRA)} offset:{(i%NSLOT)*KSB + 16*hf*112 + 8*t}")
                out.append(fn)
        return out
    A.wait_vm(last[0])
    for f in reads(0): f()
    for i in range(18):
        AC = ACA if i < 4 else ACB
        first = i in (0, 4)
        rd = []
        if i < 17:
            A.wait_vm(last[i+1])
            rd = reads(i + 1)
        vm_fill = step_ops(i + DEPTH) if i + DEPTH < 18 else []
        ri = vi = 0
        m = 0
        for t in range(4):
            A.wait_ds(rdt[(i, t)])
            for j in range(4):
                d = v(AC + 16*j + 4*t, 4)
                A(f"v_mfma_f32_16x16x32_bf16 {d}, {a(aw(i&1,t),4)}, {a(af(i,j),4)}, {'0' if first else d}")
                m += 1
                if ri < len(rd): rd[ri](); ri += 1
                if vi < len(vm_fill) and m % 3 == 0: vm_fill[vi](); vi += 1
        while vi < len(vm_fill): vm_fill[vi](); vi += 1
        if i == 5:
            for j in range(4):
                for r in range(0, 16, 2):
                    A(f"v_pk_mul_f32 {v(ACA+16*j+r,2)}, {v(ACA+16*j+r,2)}, {v(vG+j-(j&1),2)} op_sel:[0,{j&1}] op_sel_hi:[1,{j&1}]")
    A.nop(8)
    for j in range(4):
        for r in range(0, 16, 2):
            A(f"v_pk_fma_f32 {v(ACA+16*j+r,2)}, {v(ACB+16*j+r,2)}, {v(vG+4+j-(j&1),2)}, {v(ACA+16*j+r,2)} op_sel:[0,{j&1},0] op_sel_hi:[1,{j&1},1]")
    for w in range(4):
        if w < 3:
            A(f"s_cmp_lg_u32 s{S_W}, {w}\ns_cbranch_scc1 {kname}_w{w+1}")
        for j in range(4):
            if j == w: continue
            k = (w - j - 1) & 3
            for t in range(4):
                A(f"ds_write_b128 {v(vT+3)}, {v(ACA+16*j+4*t,4)} offset:{(j*3+k)*4096 + t*1024}") if False else None
        A(f"v_add_u32 {v(vT+3)}, {RED}, {v(vFR)}")
        for j in range(4):
            if j == w: continue
            k = (w - j - 1) & 3
            for t in range(4):
                A(f"ds_write_b128 {v(vT+3)}, {v(ACA+16*j+4*t,4)} offset:{(j*3+k)*4096 + t*1024}")
        for r in range(16): A(f"v_mov_b32 {v(vE+r)}, {v(ACA+16*w+r)}")
        A(f"v_mov_b32 {v(vT+4)}, {v(vG+4+w)}")
        if w < 3:
            A(f"s_branch {kname}_wd")
            A.label(f"{kname}_w{w+1}")
    A.label(f"{kname}_wd")
    A(f"s_mul_i32 s{S_T}, s{S_W}, 12288\ns_add_u32 s{S_T}, s{S_T}, {RED}")
    A(f"v_add_u32 {v(vT+3)}, s{S_T}, {v(vFR)}")
    for r in range(16): A(f"v_fmac_f32 {v(vE+r)}, {v(vT+4)}, {v(vB2+r)}")
    A("s_waitcnt lgkmcnt(0)\ns_barrier")
    for k in range(3):
        for t in range(4):
            A(f"ds_read_b128 {v(ACA+16*k+4*t,4)}, {v(vT+3)} offset:{k*4096 + t*1024}")
    A(f"v_and_b32 {v(vT)}, 15, {v(vL)}")
    A(f"v_mul_u32_u24 {v(vT)}, 896, {v(vT)}")
    A(f"v_add_u32 {v(vT)}, {v(vT)}, {v(vT+1)}")
    A(f"""s_lshl_b32 s{S_T}, s{S_TT}, 6
s_lshl_b32 s{S_T2}, s{S_W}, 4
s_add_u32 s{S_T}, s{S_T}, s{S_T2}
s_mul_i32 s{S_T}, s{S_T}, 896
s_add_u32 s{S_T}, s{S_T}, s{S_CO}""")
    for k in range(3):
        A(f"s_waitcnt lgkmcnt({8-4*k})")
        for r in range(0, 16, 2):
            A(f"v_pk_add_f32 {v(vE+r,2)}, {v(vE+r,2)}, {v(ACA+16*k+r,2)}")
    for r in range(8):
        A(f"v_cvt_pk_bf16_f32 {v(vE+16+r)}, {v(vE+2*r)}, {v(vE+2*r+1)}")
    A(f"buffer_store_dwordx4 {v(vE+16,4)}, {v(vT)}, s[{OUT}:{OUT+3}], s{S_T} offen")
    A("s_mov_b32 exec_hi, 0x0000ffff")
    A(f"buffer_store_dwordx4 {v(vE+20,4)}, {v(vT)}, s[{OUT}:{OUT+3}], s{S_T} offen offset:16")
    A.label(f"{kname}_end")
    A("s_endpgm")

def desc(kname, nv, accoff, ns=96):
    return f""".amdhsa_kernel {kname}
  .amdhsa_next_free_vgpr {nv}
  .amdhsa_next_free_sgpr {ns}
  .amdhsa_accum_offset {accoff}
  .amdhsa_group_segment_fixed_size 0
  .amdhsa_kernarg_size 96
  .amdhsa_user_sgpr_count 2
  .amdhsa_user_sgpr_kernarg_segment_ptr 1
  .amdhsa_system_sgpr_workgroup_id_x 1
.end_amdhsa_kernel
"""

if __name__ == "__main__":
    out = sys.argv[1]
    k1, k2 = "p1_kernel", "p2_kernel"
    t = f"; @launch kernel={k1} grid=(256,1,1) block=(256,1,1) lds={5*SLOT}\n"
    t += f"; @launch kernel={k2} grid=(256,1,1) block=(256,1,1) lds=163840\n"
    t += '.amdgcn_target "amdgcn-amd-amdhsa--gfx950"\n.text\n'
    for k, gfn in ((k1, gen_k1), (k2, gen_k2)):
        A = Asm()
        gfn(A, k)
        t += f".globl {k}\n.p2align 8\n.type {k},@function\n" + A.text()
    t += '.section .rodata,"a"\n.p2align 6\n' + desc(k1, 512, 256) + ".p2align 6\n" + desc(k2, 512, 256)
    open(out, "w").write(t)
```

```python
import sys
from asmlib import Asm, v, a, s

NAME = "gated_mix__sliding_local_dilated__dense_activation_squared_relu__prompt"
WS_G = 128 * 72 * 1024
WS_FL = WS_G + 8192
WS_QR = WS_FL + 20480
WS_ST = WS_QR + 16 * 3 * 448 * 64
WS_BYTES = WS_ST + 262144
PAGE = 16384
L_BIAS = 8 * PAGE + 14336
L_GATE = L_BIAS + 256
L_FLG = 8 * PAGE + 15872
STAMPS = False
OPT = {}

def srd(A, d, lo, nbytes):
    A(f"s_mov_b32 s{d}, s{lo}")
    A(f"s_and_b32 s{d+1}, s{lo+1}, 0xffff")
    A(f"s_mov_b32 s{d+2}, {nbytes}")
    A(f"s_mov_b32 s{d+3}, 0x20000")

class Stamper:
    def __init__(self, A, vreg, tag):
        self.A = A; self.n = 0; self.v = vreg; self.tag = tag
    def __call__(self, what=""):
        if not STAMPS: return
        A = self.A
        if self.n == 0:
            A(f"v_mov_b32 v{self.v}, 0")
            A("s_memrealtime s[100:101]")
            A.wait_ds_all()
            A(f"v_writelane_b32 v{self.v}, s100, 62")
        A(f"s_memtime s[100:101]")
        A.wait_ds_all()
        A(f"v_writelane_b32 v{self.v}, s100, {self.n}")
        print(f"stamp {self.tag} {self.n}: {what}")
        self.n += 1
        assert self.n <= 62
    def dump(self, WS, S_W8, vL, vt):
        if not STAMPS: return
        A = self.A
        A("s_mov_b64 exec, -1")
        A("s_memrealtime s[100:101]")
        A.wait_ds_all()
        A(f"v_writelane_b32 v{self.v}, s100, 63")
        A(f"s_and_b32 s100, s{S_W8}, 3\ns_cmp_lg_u32 s100, 0\ns_cbranch_scc1 Lnodump{self.tag}")
        A(f"s_lshl_b32 s100, s2, 1\ns_lshr_b32 s101, s{S_W8}, 2\ns_add_u32 s100, s100, s101\ns_lshl_b32 s100, s100, 8\ns_add_u32 s100, s100, {WS_ST}")
        A(f"v_lshlrev_b32 v{vt}, 2, v{vL}")
        A(f"buffer_store_dword v{self.v}, v{vt}, s[{WS}:{WS+3}], s100 offen")
        A.label(f"Lnodump{self.tag}")

UNITS = [("A", c) for c in range(7)] + [("Q", c) for c in range(7)] + [("P", n) for n in range(18)]
UIDX = {u: i for i, u in enumerate(UNITS)}
NEED = {("A", c): [("H", c), ("X", c)] for c in range(7)}
NEED.update({("Q", c): [("Q", c)] for c in range(7)})
NEED.update({("P", n): [("W", n), ("F", n)] for n in range(18)})
def make_plan():
    page = {}; after = {}
    seq = []
    for c in range(7):
        page[("H", c)] = c % 4; page[("X", c)] = 4 + c % 4
        after[("H", c)] = after[("X", c)] = -1 if c < 4 else UIDX[("A", c - 4)]
        seq += [("H", c), ("X", c)]
    free = [(-1, 8), (-1, 9)]
    for c in range(3, 7): free += [(UIDX[("A", c)], c % 4), (UIDX[("A", c)], 4 + c % 4)]
    order = [("Q", c) for c in range(7)]
    nw0 = OPT.get("nw0", 4)
    order += [("W", n) for n in range(nw0)] + [("F", n) for n in range(nw0)]
    for n in range(nw0, 18): order += [("W", n), ("F", n)]
    for lu in order:
        free.sort()
        rel, pg = free.pop(0)
        page[lu] = pg; after[lu] = rel
        if lu == ("Q", 0): assert pg == 8
        elif lu[0] == "Q": free.append((UIDX[lu], pg))
        else: free.append((UIDX[("P", lu[1])], pg))
    seq += order
    return page, after, seq

def gen(kname):
    page, after, seq = make_plan()
    SEQ = {lu: i for i, lu in enumerate(seq)}
    REPACK = OPT.get("repack", 1)
    S_W8, S_RB, S_HC, S_TT, S_CT = 3, 4, 5, 6, 7
    X, QKV, W1, WS, WO, W2, OUT, B1, GW, B2 = 8, 12, 16, 20, 24, 28, 32, 36, 40, 44
    KA = 48; DBG = 68
    MP, MA, MB, MFIRST, M32, NON = 72, 74, 76, 78, 80, 82
    S_T, S_T2, S_W, S_HW = 84, 85, 86, 87
    S_SPIN = 92
    P = Asm(); C = Asm(); L = Asm()
    A = P
    vTID, vL, vFR, vST = 0, 1, 2, 3
    vZ, vL8, vN = 4, 5, 6
    vT = 8
    vFL, vFLW = 16, 17
    vFV = 20
    vPV = 18
    lab = [0]
    def newlab(t):
        lab[0] += 1; return f"{kname}_{t}{lab[0]}"
    A.label(kname)
    A(f"s_cmp_ge_u32 s2, 256\ns_cbranch_scc1 {kname}_end")
    A(f"s_load_dwordx16 s[{KA}:{KA+15}], s[0:1], 0")
    A(f"s_load_dwordx8 s[{KA+16}:{KA+23}], s[0:1], 64")
    A(f"v_lshrrev_b32 {v(vT)}, 6, {v(vTID)}")
    A(f"v_and_b32 {v(vL)}, 63, {v(vTID)}")
    A(f"v_readfirstlane_b32 s{S_W8}, {v(vT)}")
    A(f"v_lshlrev_b32 {v(vFR)}, 4, {v(vL)}")
    A(f"v_lshlrev_b32 {v(vL8)}, 3, {v(vL)}")
    A(f"v_mov_b32 {v(vZ)}, 0")
    A(f"v_mov_b32 {v(vFL)}, {L_FLG}")
    A(f"""s_and_b32 s{S_W}, s{S_W8}, 3
s_lshr_b32 s{S_T}, s2, 3
s_and_b32 s{S_RB}, s2, 1
s_lshl_b32 s{S_RB}, s{S_RB}, 3
s_and_b32 s{S_T2}, s{S_T}, 7
s_add_u32 s{S_RB}, s{S_RB}, s{S_T2}
s_bfe_u32 s{S_HC}, s2, 0x20001
s_lshl_b32 s{S_HC}, s{S_HC}, 2
s_lshr_b32 s{S_T2}, s{S_T}, 3
s_add_u32 s{S_HC}, s{S_HC}, s{S_T2}
s_and_b32 s{S_TT}, s2, 7
s_lshl_b32 s{S_TT}, s{S_TT}, 2
s_and_b32 s{S_T2}, s{S_T}, 3
s_add_u32 s{S_TT}, s{S_TT}, s{S_T2}
s_lshr_b32 s{S_CT}, s2, 5
s_mov_b32 s{M32}, -1
s_mov_b32 s{M32+1}, 0
s_mov_b32 s{S_SPIN}, 0""")
    c16, g, r8, l7, l3, r16, t0, t1 = [vT + i for i in range(8)]
    A(f"v_and_b32 {v(c16)}, 15, {v(vL)}")
    A(f"v_lshrrev_b32 {v(g)}, 4, {v(vL)}")
    A(f"v_lshrrev_b32 {v(r8)}, 3, {v(vL)}")
    A(f"v_and_b32 {v(l7)}, 7, {v(vL)}")
    A(f"v_and_b32 {v(l3)}, 3, {v(vL)}")
    A(f"v_lshrrev_b32 {v(r16)}, 2, {v(vL)}")
    A(f"""s_and_b32 s{S_T}, s{S_HC}, 3
s_lshl_b32 s{S_T2}, s{S_T}, 8
s_cmp_eq_u32 s{S_T}, 3
s_cselect_b32 s{S_T2}, 640, s{S_T2}
s_lshr_b32 s{S_T}, s{S_HC}, 2
s_mul_i32 s{S_T}, s{S_T}, 896
s_add_u32 s{S_HW}, s{S_T}, s{S_T2}
s_lshl_b32 s{S_T}, s{S_W}, 2
s_add_u32 s{S_T}, s{S_T}, {L_FLG}""")
    A(f"v_mov_b32 {v(vFLW)}, s{S_T}")
    A(f"s_cmp_ge_u32 s{S_W8}, 4\ns_cbranch_scc1 {kname}_L")

    def spin_guard(A, target):
        A(f"s_add_u32 s{S_SPIN}, s{S_SPIN}, 1\ns_cmp_lt_u32 s{S_SPIN}, 0x200000\ns_cbranch_scc1 {target}")
    def lds_post(A, off, val):
        A(f"v_mov_b32 {v(vPV)}, {val}")
        A("s_mov_b64 exec, 1")
        A.dsop(f"ds_write_b32 {v(vFLW)}, {v(vPV)} offset:{off}")
        A("s_mov_b64 exec, -1")
    def lds_flag_read(A, off):
        return A.dsop(f"ds_read_b128 {v(vFV,4)}, {v(vFL)} offset:{off}")
    def lds_wait_min(A, off, val, ticket=None):
        lp, ok = newlab("lw"), newlab("lk")
        if ticket is None: ticket = lds_flag_read(A, off)
        A.wait_ds(ticket)
        A.label(lp)
        A(f"v_min3_u32 {v(vFV)}, {v(vFV)}, {v(vFV+1)}, {v(vFV+2)}")
        A(f"v_min_u32 {v(vFV)}, {v(vFV)}, {v(vFV+3)}")
        A("s_nop 0")
        A(f"v_readfirstlane_b32 s{S_T2}, {v(vFV)}")
        A(f"s_cmp_ge_u32 s{S_T2}, {val}\ns_cbranch_scc1 {ok}")
        A(f"ds_read_b128 {v(vFV,4)}, {v(vFL)} offset:{off}\ns_waitcnt lgkmcnt(0)")
        spin_guard(A, lp)
        A.label(ok)
    def nonce_load(A, last):
        last["N"] = A.vmem(f"global_load_dwordx2 {v(vN,2)}, {v(vZ)}, s[{DBG}:{DBG+1}] sc1")
    def nonce_check(A, last):
        lp, ok = newlab("nc"), newlab("nk")
        A.wait_vm(last["N"])
        A.label(lp)
        A(f"v_readfirstlane_b32 s{NON}, {v(vN)}\nv_readfirstlane_b32 s{NON+1}, {v(vN+1)}")
        A(f"s_cmp_lg_u32 s{NON}, 0\ns_cbranch_scc1 {ok}")
        A(f"global_load_dwordx2 {v(vN,2)}, {v(vZ)}, s[{DBG}:{DBG+1}] sc1\ns_waitcnt vmcnt(0)")
        spin_guard(A, lp)
        A.label(ok)
    def publish(A, sreg, off):
        A(f"v_mov_b32 {v(vN)}, s{NON}\nv_mov_b32 {v(vN+1)}, s{NON+1}")
        A(f"s_add_u32 s{S_T}, s{sreg}, {off}")
        A("s_mov_b64 exec, 1")
        A.vmem(f"buffer_store_dwordx2 {v(vN,2)}, {v(vZ)}, s[{WS}:{WS+3}], s{S_T} offen sc1")
        A("s_mov_b64 exec, -1")

    A = C; ST = Stamper(C, vST, "C"); last = {}
    S_FR, S_FLP, S_GT, S_OS, S_CO = 48, 49, 50, 51, 52
    S_HS = 54
    vHA, vXA, vFR0, vFR3 = 24, 32, 34, 35
    vQA, vXH = 36, 45
    vGA = 51
    XR = 52
    ACC = 164
    WR = 228; NWR = 7
    ACG = 8
    def ax(ks, tb): return XR + 4 * (2 * ks + tb)
    def ach(tb, b): return ACC + 4 * (8 * tb + b)
    def acq(tb, t): return ACC + 4 * (6 * tb + t)
    ACC_HL = ACC + 48
    vBIAS = XR + 80
    vRAW = XR + 64
    ST("start")
    A(f"v_lshl_add_u32 {v(t0)}, {v(vL)}, 2, {v(vFL)}")
    A("s_mov_b64 exec, 0xfff")
    A(f"ds_write_b32 {v(t0)}, {v(vZ)}")
    A("s_mov_b64 exec, -1")
    A("s_waitcnt lgkmcnt(0)")
    A("s_barrier")
    A(f"v_lshlrev_b32 {v(t1)}, 8, {v(r16)}")
    A(f"v_lshl_add_u32 {v(t1)}, {v(l3)}, 3, {v(t1)}")
    A(f"v_and_b32 {v(t0)}, 7, {v(r16)}")
    A(f"v_lshl_add_u32 {v(vHA)}, {v(t0)}, 5, {v(t1)}")
    for b in range(1, 8): A(f"v_xor_b32 {v(vHA+b)}, {32*b}, {v(vHA)}")
    A(f"v_xor_b32 {v(t0)}, {v(g)}, {v(l7)}")
    A(f"v_lshlrev_b32 {v(t1)}, 7, {v(c16)}")
    A(f"v_lshl_add_u32 {v(vXH)}, {v(t0)}, 4, {v(t1)}")
    A(f"s_lshl_b32 s{S_T}, s{S_W}, 12\ns_add_u32 s{S_T2}, s{S_T}, {4*PAGE}")
    A(f"v_add_u32 {v(vXA)}, s{S_T2}, {v(vXH)}")
    A(f"v_xor_b32 {v(vXA+1)}, 64, {v(vXA)}")
    A(f"v_xor_b32 {v(vXH+1)}, 64, {v(vXH)}")
    A(f"v_and_b32 {v(t0)}, 1, {v(g)}")
    A(f"v_lshlrev_b32 {v(vQA)}, 6, {v(r16)}")
    A(f"v_lshl_add_u32 {v(vQA)}, {v(t0)}, 5, {v(vQA)}")
    A(f"v_lshl_add_u32 {v(vQA)}, {v(l3)}, 3, {v(vQA)}")
    A(f"v_xor_b32 {v(vQA+1)}, 32, {v(vQA)}")
    A(f"""s_and_b32 s{S_T}, s{S_W}, 1
s_lshl_b32 s{S_T}, s{S_T}, 5
s_lshr_b32 s{S_T2}, s{S_W}, 1
s_lshl_b32 s{S_T2}, s{S_T2}, 12""")
    A(f"v_xor_b32 {v(vQA+2)}, s{S_T}, {v(vQA)}")
    A(f"v_add_u32 {v(vQA+2)}, s{S_T2}, {v(vQA+2)}")
    for z in (1, 2):
        for i in range(3): A(f"v_add_u32 {v(vQA+3*z+i)}, {z*65536}, {v(vQA+i)}")
        for i in range(2): A(f"v_add_u32 {v(vXH+2*z+i)}, {z*65536}, {v(vXH+i)}")
    A(f"v_lshlrev_b32 {v(vGA)}, 4, {v(g)}")
    A(f"v_add_u32 {v(vGA)}, {L_GATE}, {v(vGA)}")
    vBA = vRAW + 16 - 1 + 1 - 1
    A(f"v_lshlrev_b32 {v(WR)}, 3, {v(g)}")
    A(f"v_add_u32 {v(WR)}, {L_BIAS}, {v(WR)}")
    A(f"v_and_b32 {v(t0)}, 1, {v(c16)}")
    A(f"v_cmp_eq_u32 s[{MP}:{MP+1}], 1, {v(t0)}")
    A(f"v_lshl_add_u32 {v(t1)}, {v(g)}, 2, {v(t0)}")
    A(f"v_cmp_le_u32 s[{MA}:{MA+1}], {v(t1)}, {v(c16)}")
    A(f"v_add_u32 {v(t1)}, 2, {v(t1)}")
    A(f"v_cmp_le_u32 s[{MB}:{MB+1}], {v(t1)}, {v(c16)}")
    srd(A, B2, KA+14, 896)
    srd(A, OUT, KA+18, 2048 * 896)
    srd(A, WS, KA+22, WS_BYTES)
    A(f"""s_or_b32 s{S_T}, s{S_RB}, s{S_W}
s_cmp_eq_u32 s{S_T}, 0
s_cselect_b32 s{MFIRST}, -1, 0
s_cselect_b32 s{MFIRST+1}, -1, 0
s_lshl_b32 s{S_T}, s{S_RB}, 3
s_lshl_b32 s{S_T2}, s{S_W}, 1
s_add_u32 s{S_T}, s{S_T}, s{S_T2}
s_mul_i32 s{S_FR}, s{S_T}, {72*1024}
s_lshl_b32 s{S_GT}, s{S_T}, 6
s_add_u32 s{S_GT}, s{S_GT}, {WS_G}
s_lshl_b32 s{S_T}, s{S_HW}, 4
s_add_u32 s{S_HS}, s{S_FR}, s{S_T}
s_add_u32 s{S_HS+1}, s{S_HS}, 73728
s_and_b32 s{S_T}, s{S_HC}, 3
s_cmp_eq_u32 s{S_T}, 3
s_cselect_b32 s{S_HS+2}, 0x40000000, 0
s_cmp_eq_u32 s{S_T}, 2
s_cselect_b32 s{S_HS+3}, 0x40000000, 0
s_lshl_b32 s{S_T}, s{S_HC}, 10
s_add_u32 s{S_OS}, s{S_FR}, s{S_T}
s_add_u32 s{S_OS}, s{S_OS}, {56*1024}""")
    A(f"v_or_b32 {v(vFR0)}, s{S_HS+2}, {v(vFR)}")
    A(f"v_or_b32 {v(vFR3)}, s{S_HS+3}, {v(vFR)}")
    A(f"""s_lshl_b32 s{S_T}, s{S_RB}, 1
s_lshr_b32 s{S_T2}, s{S_W}, 1
s_add_u32 s{S_T}, s{S_T}, s{S_T2}
s_lshl_b32 s{S_T}, s{S_T}, 4
s_add_u32 s{S_T}, s{S_T}, s{S_HC}
s_lshl_b32 s{S_T}, s{S_T}, 1
s_and_b32 s{S_T2}, s{S_W}, 1
s_add_u32 s{S_T}, s{S_T}, s{S_T2}
s_lshl_b32 s{S_T}, s{S_T}, 3
s_add_u32 s{S_FLP}, s{S_T}, {WS_FL}
s_lshl_b32 s{S_CO}, s{S_CT}, 7""")
    ST("pro done")

    known = [0]
    pre = {}
    def acquire(u):
        val = max(SEQ[lu] for lu in NEED[u]) + 1
        lds_wait_min(A, 0, val, pre.pop("t", None))
        ST(f"acq{u}")
    def release(u):
        lds_post(A, 16, UIDX[u] + 1)
    class Frag:
        def __init__(self, unit, reads, mf): self.unit = unit; self.reads = reads; self.mf = mf
    done = set()
    def run_frags(frags, LA, hooks={}):
        n = len(frags); issued = 0; tk = [None]*n
        state = run_frags.seq
        def issue(i):
            f = frags[i]
            if f.unit not in done:
                acquire(f.unit); done.add(f.unit)
            tk[i] = f.reads(WR + 4*((state + i) % NWR))
            if i + 3 < n and frags[i+3].unit != f.unit and frags[i+2].unit == f.unit: pre["t"] = lds_flag_read(A, 0)
        for i in range(n):
            while issued < min(n, i + LA + 1):
                issue(issued); issued += 1
            A.wait_ds(tk[i])
            frags[i].mf(WR + 4*((state + i) % NWR))
            if i == n - 1 or frags[i+1].unit != frags[i].unit: release(frags[i].unit)
            if i in hooks: hooks[i]()
        run_frags.seq = (state + n) % NWR
    run_frags.seq = 0
    def trr(dst, va, off): return A.dsop(f"ds_read_b64_tr_b16 {v(dst,2)}, {v(va)} offset:{off}")
    acquire(("A", 0)); done.add(("A", 0))
    for b in range(8): tkb = A.dsop(f"ds_read_b64 {v(vRAW+2*b,2)}, {v(WR)} offset:{32*b}")
    A.wait_ds(tkb)
    for i in range(16):
        A(f"v_lshlrev_b32 {v(vBIAS+2*i)}, 16, {v(vRAW+i)}")
        A(f"v_and_b32 {v(vBIAS+2*i+1)}, 0xffff0000, {v(vRAW+i)}")
    fr = []
    for ks in range(14):
        c, s2 = ks // 2, ks % 2
        for b in range(9):
            def reads(r, ks=ks, c=c, s2=s2, b=b):
                if b == 0:
                    for tb in range(2):
                        A.dsop(f"ds_read_b128 {v(ax(ks,tb),4)}, {v(vXA+s2)} offset:{(page[('X',c)]-4)*PAGE + tb*2048}")
                if b == 8: return A.dsop(f"ds_read_b128 {v(r,4)}, {v(vGA)} offset:{64*ks}")
                for hf in range(2): t = trr(r + 2*hf, vHA + b, page[("H", c)]*PAGE + (32*s2 + 16*hf)*256)
                return t
            def mf(r, ks=ks, b=b):
                if b == 8:
                    lb = newlab("g")
                    A(f"s_cmp_lg_u32 s{S_HC}, 2\ns_cbranch_scc1 {lb}")
                    for tb in range(2):
                        d = v(ACG + 4*tb, 4)
                        A(f"v_mfma_f32_16x16x32_bf16 {d}, {v(r,4)}, {v(ax(ks,tb),4)}, {d if ks else '0'}")
                    A.label(lb)
                    return
                for tb in range(2):
                    d = v(ach(tb, b), 4)
                    A(f"v_mfma_f32_16x16x32_bf16 {d}, {v(r,4)}, {v(ax(ks,tb),4)}, {d if ks else v(vBIAS+4*b,4)}")
            fr.append(Frag(("A", c), reads, mf))
    run_frags(fr, NWR - 2, hooks={60: lambda: nonce_load(A, last)})
    ST("A done")
    for tb in range(2):
        for b in range(8):
            r = ach(tb, b)
            for i in range(4): A(f"v_max_f32 {v(r+i)}, 0, {v(r+i)}")
            A(f"v_pk_mul_f32 {v(r,2)}, {v(r,2)}, {v(r,2)}")
            A(f"v_pk_mul_f32 {v(r+2,2)}, {v(r+2,2)}, {v(r+2,2)}")
            dst = ach(tb, b & ~1) + 2 * (b & 1)
            A(f"v_cvt_pk_bf16_f32 {v(dst)}, {v(r)}, {v(r+1)}")
            A(f"v_cvt_pk_bf16_f32 {v(dst+1)}, {v(r+2)}, {v(r+3)}")
            if b & 1:
                p = b // 2
                va = vFR0 if p == 0 else (vFR3 if p == 3 else vFR)
                last["HS"] = A.vmem(f"buffer_store_dwordx4 {v(ach(tb,b-1),4)}, {v(va)}, s[{WS}:{WS+3}], s{S_HS+tb} offen offset:{1024*p} sc1")
    lb = newlab("g")
    A(f"s_cmp_lg_u32 s{S_HC}, 2\ns_cbranch_scc1 {lb}")
    for tb in range(2): A(f"v_mul_f32 {v(ACG+4*tb)}, 0xbfb8aa3b, {v(ACG+4*tb)}")
    for tb in range(2): A(f"v_exp_f32 {v(ACG+4*tb)}, {v(ACG+4*tb)}")
    A(f"v_lshrrev_b32 {v(ACG+1)}, 1, {v(vL8)}")
    for tb in range(2): A(f"v_add_f32 {v(ACG+4*tb)}, 1.0, {v(ACG+4*tb)}")
    for tb in range(2): A(f"v_rcp_f32 {v(ACG+4*tb)}, {v(ACG+4*tb)}")
    A("s_mov_b64 exec, 0xffff")
    for tb in range(2): A(f"buffer_store_dword {v(ACG+4*tb)}, {v(ACG+1)}, s[{WS}:{WS+3}], s{S_GT} offen offset:{64*tb} sc1")
    A("s_mov_b64 exec, -1")
    A.label(lb)
    ST("H epi done")
    nonce_check(A, last)
    fr = []
    for ks in range(14):
        c, s2 = ks // 2, ks % 2; pg = page[("Q", c)]; z = pg // 4; rel = (pg % 4) * PAGE
        hold = {}
        for f in range(8):
            def reads(r, ks=ks, s2=s2, f=f, z=z, rel=rel, hold=hold):
                if f == 6:
                    hold["x"] = r
                    return A.dsop(f"ds_read_b128 {v(r,4)}, {v(vXH+2*z+s2)} offset:{rel + 12288}")
                va = vQA + 3*z + (2 if f == 7 else (f & 1)); ro = 4096 if f == 7 else 4096*(f//2)
                for hf in range(2): t = trr(r + 2*hf, va, rel + ro + (32*s2 + 16*hf)*64)
                return t
            def mf(r, ks=ks, f=f, hold=hold):
                if f == 6: return
                if f == 7:
                    d = v(ACC_HL, 4)
                    A(f"v_mfma_f32_16x16x32_bf16 {d}, {v(r,4)}, {v(hold['x'],4)}, {d if ks else '0'}")
                    return
                for tb in range(2):
                    d = v(acq(tb, f), 4); cc = d if ks else "0"
                    wf, xf = v(r, 4), v(ax(ks, tb), 4)
                    A(f"v_mfma_f32_16x16x32_bf16 {d}, {xf}, {wf}, {cc}" if f >= 4 else f"v_mfma_f32_16x16x32_bf16 {d}, {wf}, {xf}, {cc}")
            fr.append(Frag(("Q", c), reads, mf))
    def pubH():
        A.wait_vm_all(); publish(A, S_FLP, 0); ST("H pub")
    run_frags(fr, NWR - 2, hooks={OPT.get("pubH", 24): pubH})
    ST("B done")
    XCH = 8 * PAGE
    E = XR
    KP, QP, VP, HLP, vXCA = E, E + 12, E + 20, E + 32, E + 34
    SS = E + 40
    TT_ = E + 56
    PPp = E + 64
    OO = E + 72
    OP = E + 88
    vG3, vSEL = E + 96, E + 97
    u0, u1, u2 = E + 104, E + 105, E + 106
    tkc = lds_flag_read(A, 16)
    def pk(dst, src):
        A(f"v_cvt_pk_bf16_f32 {v(dst)}, {v(src)}, {v(src+1)}")
        A(f"v_cvt_pk_bf16_f32 {v(dst+1)}, {v(src+2)}, {v(src+3)}")
    A(f"s_lshl_b32 s{S_T}, s{S_W}, 11\ns_add_u32 s{S_T}, s{S_T}, {XCH}")
    A(f"v_add_u32 {v(vXCA)}, s{S_T}, {v(vFR)}")
    A(f"v_add_u32 {v(vXCA+1)}, s{S_T}, {v(vL8)}")
    pk(KP + 8, acq(1, 2)); pk(KP + 10, acq(1, 3))
    pk(VP + 4, acq(1, 4)); pk(VP + 10, acq(1, 5))
    lds_wait_min(A, 16, UIDX[("Q", 0)] + 1, tkc)
    pk(HLP, ACC_HL)
    A.dsop(f"ds_write_b128 {v(vXCA)}, {v(KP+8,4)} offset:2048")
    A.dsop(f"ds_write_b64 {v(vXCA+1)}, {v(VP+4,2)} offset:{2048+1024}")
    A.dsop(f"ds_write_b64 {v(vXCA+1)}, {v(VP+10,2)} offset:{2048+1536}")
    A(f"s_cmp_ge_u32 s{S_W}, 2\ns_cbranch_scc1 {kname}_hv")
    A(f"s_lshl_b32 s{S_T}, s{S_W}, 3\ns_add_u32 s{S_T}, s{S_T}, {XCH}")
    A(f"v_add_u32 {v(vXCA+2)}, s{S_T}, {v(vFR)}")
    A(f"ds_write_b64 {v(vXCA+2)}, {v(HLP,2)}")
    A(f"s_branch {kname}_hd")
    A.label(f"{kname}_hv")
    A(f"s_and_b32 s{S_T}, s{S_W}, 1\ns_lshl_b32 s{S_T}, s{S_T}, 9\ns_add_u32 s{S_T}, s{S_T}, {XCH+1024}")
    A(f"v_bfe_u32 {v(vXCA+2)}, {v(vL)}, 2, 2")
    A(f"v_lshlrev_b32 {v(vXCA+2)}, 7, {v(vXCA+2)}")
    A(f"v_lshrrev_b32 {v(vXCA+3)}, 4, {v(vL)}")
    A(f"v_lshl_add_u32 {v(vXCA+2)}, {v(vXCA+3)}, 5, {v(vXCA+2)}")
    A(f"v_and_b32 {v(vXCA+3)}, 3, {v(vL)}")
    A(f"v_lshl_add_u32 {v(vXCA+2)}, {v(vXCA+3)}, 1, {v(vXCA+2)}")
    A(f"v_add_u32 {v(vXCA+2)}, s{S_T}, {v(vXCA+2)}")
    A(f"ds_write_b16 {v(vXCA+2)}, {v(HLP)}")
    A(f"ds_write_b16_d16_hi {v(vXCA+2)}, {v(HLP)} offset:8")
    A(f"ds_write_b16 {v(vXCA+2)}, {v(HLP+1)} offset:16")
    A(f"ds_write_b16_d16_hi {v(vXCA+2)}, {v(HLP+1)} offset:24")
    A.label(f"{kname}_hd")
    lds_post(A, 32, 1)
    A.ds_done = 0 if False else A.ds_done
    A(f"v_lshrrev_b32 {v(u0)}, 4, {v(vL)}")
    A(f"v_cmp_eq_u32 vcc, 3, {v(u0)}")
    A(f"v_mov_b32 {v(u0)}, 0x0c0c0100\nv_mov_b32 {v(u1)}, 0x01000c0c\nv_mov_b32 {v(u2)}, 0x0c0c0c0c")
    A(f"v_cndmask_b32 {v(vG3)}, -1, 0, vcc")
    A(f"v_cndmask_b32 {v(u0)}, {v(u0)}, {v(u1)}, s[{MP}:{MP+1}]")
    A(f"v_cndmask_b32 {v(vSEL+0)}, {v(u0)}, {v(u2)}, s[{MA}:{MA+1}]")
    A(f"v_cndmask_b32 {v(vSEL+2)}, {v(u2)}, {v(u0)}, s[{MA}:{MA+1}]")
    A(f"v_mov_b32 {v(u0)}, 0x0c0c0302\nv_mov_b32 {v(u1)}, 0x03020c0c")
    A(f"v_cndmask_b32 {v(u0)}, {v(u0)}, {v(u1)}, s[{MP}:{MP+1}]")
    A(f"v_cndmask_b32 {v(vSEL+1)}, {v(u0)}, {v(u2)}, s[{MB}:{MB+1}]")
    A(f"v_cndmask_b32 {v(vSEL+3)}, {v(u2)}, {v(u0)}, s[{MB}:{MB+1}]")
    pk(KP + 4, acq(0, 2)); pk(KP + 6, acq(0, 3))
    pk(VP + 2, acq(0, 4)); pk(VP + 8, acq(0, 5))
    for tb in (1, 0):
        pk(QP + 4*tb, acq(tb, 0)); pk(QP + 2 + 4*tb, acq(tb, 1))
        A(f"v_and_b32 {v(QP+2+4*tb)}, {v(vG3)}, {v(QP+2+4*tb)}")
        A(f"v_and_b32 {v(QP+3+4*tb)}, {v(vG3)}, {v(QP+3+4*tb)}")
    A.wait_ds_all()
    lds_wait_min(A, 32, 1)
    A.dsop(f"ds_read_b128 {v(KP,4)}, {v(vXCA)}")
    A.dsop(f"ds_read_b64 {v(VP,2)}, {v(vXCA+1)} offset:1024")
    tkx = A.dsop(f"ds_read_b64 {v(VP+6,2)}, {v(vXCA+1)} offset:1536")
    A(f"s_add_u32 s{S_GT}, s{S_OS}, 73728")
    CSC = "0x3e8b97f6"
    def S_(tb, cur): return SS + 8*tb + 4*cur
    A(f"v_mfma_f32_16x16x32_bf16 {v(S_(1,0),4)}, {v(KP+4,4)}, {v(QP+4,4)}, 0")
    A(f"v_mfma_f32_16x16x32_bf16 {v(S_(1,1),4)}, {v(KP+8,4)}, {v(QP+4,4)}, 0")
    A(f"v_mfma_f32_16x16x32_bf16 {v(S_(0,1),4)}, {v(KP+4,4)}, {v(QP,4)}, 0")
    A.wait_ds(tkx)
    A(f"v_mfma_f32_16x16x32_bf16 {v(S_(0,0),4)}, {v(KP,4)}, {v(QP,4)}, 0")
    A(f"v_mov_b32 {v(u0)}, 0xf149f2ca")
    A.nop(5)
    def both(fn):
        for tb in (1, 0): fn(tb, TT_ + 4*tb, TT_ + 4*tb + 1, TT_ + 4*tb + 2, TT_ + 4*tb + 3)
    both(lambda tb, tA, tB, tC, tD: A(f"v_cndmask_b32 {v(tC)}, {v(S_(tb,1))}, {v(S_(tb,1)+1)}, s[{MP}:{MP+1}]\nv_cndmask_b32 {v(tD)}, {v(S_(tb,1)+2)}, {v(S_(tb,1)+3)}, s[{MP}:{MP+1}]"))
    both(lambda tb, tA, tB, tC, tD: A(f"v_cndmask_b32 {v(tA)}, {v(S_(tb,0))}, {v(S_(tb,0)+1)}, s[{MP}:{MP+1}]\nv_cndmask_b32 {v(tB)}, {v(S_(tb,0)+2)}, {v(S_(tb,0)+3)}, s[{MP}:{MP+1}]"))
    A(f"v_cndmask_b32 {v(TT_)}, {v(TT_)}, {v(u0)}, s[{MFIRST}:{MFIRST+1}]")
    A(f"v_cndmask_b32 {v(TT_+1)}, {v(TT_+1)}, {v(u0)}, s[{MFIRST}:{MFIRST+1}]")
    both(lambda tb, tA, tB, tC, tD: A(f"v_cndmask_b32 {v(tA)}, {v(tA)}, {v(tC)}, s[{MA}:{MA+1}]\nv_cndmask_b32 {v(tB)}, {v(tB)}, {v(tD)}, s[{MB}:{MB+1}]"))
    both(lambda tb, tA, tB, tC, tD: A(f"v_max_f32 {v(tC)}, {v(tA)}, {v(tB)}"))
    def xreduce(op):
        for sw in ("v_permlane16_swap_b32", "v_permlane32_swap_b32"):
            both(lambda tb, tA, tB, tC, tD: A(f"v_mov_b32 {v(tD)}, {v(tC)}"))
            A("s_nop 0")
            both(lambda tb, tA, tB, tC, tD: A(f"{sw} {v(tC)}, {v(tD)}"))
            A("s_nop 0")
            both(lambda tb, tA, tB, tC, tD: A(f"{op} {v(tC)}, {v(tC)}, {v(tD)}"))
    xreduce("v_max_f32")
    both(lambda tb, tA, tB, tC, tD: A(f"v_sub_f32 {v(tA)}, {v(tA)}, {v(tC)}\nv_sub_f32 {v(tB)}, {v(tB)}, {v(tC)}"))
    both(lambda tb, tA, tB, tC, tD: A(f"v_mul_f32 {v(tA)}, {CSC}, {v(tA)}\nv_mul_f32 {v(tB)}, {CSC}, {v(tB)}"))
    both(lambda tb, tA, tB, tC, tD: A(f"v_exp_f32 {v(tA)}, {v(tA)}\nv_exp_f32 {v(tB)}, {v(tB)}"))
    A("s_nop 0")
    both(lambda tb, tA, tB, tC, tD: A(f"v_add_f32 {v(tC)}, {v(tA)}, {v(tB)}"))
    xreduce("v_add_f32")
    both(lambda tb, tA, tB, tC, tD: A(f"v_rcp_f32 {v(tC)}, {v(tC)}"))
    A("s_nop 0")
    both(lambda tb, tA, tB, tC, tD: A(f"v_mul_f32 {v(tA)}, {v(tA)}, {v(tC)}\nv_mul_f32 {v(tB)}, {v(tB)}, {v(tC)}"))
    both(lambda tb, tA, tB, tC, tD: A(f"v_cvt_pk_bf16_f32 {v(tA)}, {v(tA)}, {v(tB)}"))
    both(lambda tb, tA, tB, tC, tD: A("\n".join(f"v_perm_b32 {v(PPp+4*tb+i)}, {v(tA)}, {v(tA)}, {v(vSEL+i)}" for i in range(4))))
    A("s_nop 0")
    for tb in (1, 0):
        A(f"v_mfma_f32_16x16x32_bf16 {v(OO+8*tb,4)}, {v(VP+2*tb,4)}, {v(PPp+4*tb,4)}, 0")
        A(f"v_mfma_f32_16x16x32_bf16 {v(OO+8*tb+4,4)}, {v(VP+6+2*tb,4)}, {v(PPp+4*tb,4)}, 0")
    A.nop(6)
    for tb in (1, 0):
        op = OP + 4*tb
        pk(op, OO + 8*tb); pk(op + 2, OO + 8*tb + 4)
        A(f"v_and_b32 {v(op+2)}, {v(vG3)}, {v(op+2)}")
        A(f"v_and_b32 {v(op+3)}, {v(vG3)}, {v(op+3)}")
        last["OS"] = A.vmem(f"buffer_store_dwordx4 {v(op,4)}, {v(vFR)}, s[{WS}:{WS+3}], s{S_OS if tb == 0 else S_GT} offen sc1")
    ST("attn done")
    A(f"s_cmp_lt_u32 s{S_CT}, 7\ns_cbranch_scc1 {kname}_p2")
    A("s_waitcnt vmcnt(0)")
    sv = (A.vm, A.vm_done)
    publish(A, S_FLP, 8192)
    A.vm, A.vm_done = sv
    A(f"s_branch {kname}_cfin")
    A.label(f"{kname}_p2")
    vPA, vFA = 24, 30
    vG, vB2, vB2R = 36, 40, 48
    AB, AA = ACC, ACC + 16
    A(f"v_lshrrev_b32 {v(t0)}, 2, {v(vL)}")
    A(f"v_bfe_u32 {v(t1)}, {v(vL)}, 3, 2")
    A(f"s_and_b32 s{S_T}, s{S_W}, 1\ns_lshl_b32 s{S_T}, s{S_T}, 1")
    A(f"v_xor_b32 {v(t1)}, s{S_T}, {v(t1)}")
    A(f"v_lshlrev_b32 {v(t0)}, 7, {v(t0)}")
    A(f"v_lshl_add_u32 {v(t0)}, {v(t1)}, 5, {v(t0)}")
    A(f"v_and_b32 {v(t1)}, 3, {v(vL)}")
    A(f"v_lshl_add_u32 {v(vPA)}, {v(t1)}, 3, {v(t0)}")
    A(f"v_xor_b32 {v(vPA+1)}, 32, {v(vPA)}")
    A(f"s_lshr_b32 s{S_T}, s{S_W}, 1\ns_lshl_b32 s{S_T}, s{S_T}, 11")
    A(f"v_add_u32 {v(vFA)}, s{S_T}, {v(vFR)}")
    for z in (1, 2):
        for i in range(2): A(f"v_add_u32 {v(vPA+2*z+i)}, {z*65536}, {v(vPA+i)}")
        A(f"v_add_u32 {v(vFA+z)}, {z*65536}, {v(vFA)}")
    R2 = XR
    tk2 = {}
    def small_loads():
        A(f"v_and_b32 {v(t0)}, 15, {v(vL)}")
        A(f"v_lshlrev_b32 {v(t0)}, 2, {v(t0)}")
        A(f"s_lshl_b32 s{S_T}, s{S_TT}, 8\ns_lshr_b32 s{S_T2}, s{S_W}, 1\ns_lshl_b32 s{S_T2}, s{S_T2}, 7\ns_add_u32 s{S_T}, s{S_T}, s{S_T2}\ns_add_u32 s{S_T}, s{S_T}, {WS_G}")
        for j in range(2):
            A.vmem(f"buffer_load_dword {v(vG+j)}, {v(t0)}, s[{WS}:{WS+3}], s{S_T} offen offset:{64*j} sc1")
        A(f"v_lshrrev_b32 {v(t1)}, 4, {v(vL)}")
        A(f"v_lshlrev_b32 {v(t1)}, 3, {v(t1)}")
        A(f"s_and_b32 s{S_T}, s{S_W}, 1\ns_lshl_b32 s{S_T}, s{S_T}, 6\ns_add_u32 s{S_T}, s{S_T}, s{S_CO}")
        A.vmem(f"buffer_load_dwordx2 {v(vB2R,2)}, {v(t1)}, s[{B2}:{B2+3}], s{S_T} offen")
        last["SM"] = A.vmem(f"buffer_load_dwordx2 {v(vB2R+2,2)}, {v(t1)}, s[{B2}:{B2+3}], s{S_T} offen offset:32")
    def p2_reads(ks):
        n, q = ks // 4, ks % 4
        if q == 0:
            acquire(("P", n))
        base = R2 + 16 * (ks % 5)
        pf, pw = page[("F", n)], page[("W", n)]
        for j in range(2):
            A.dsop(f"ds_read_b128 {v(base+4*j,4)}, {v(vFA+pf//4)} offset:{(pf%4)*PAGE + q*4096 + j*1024}")
        for t in range(2):
            for hf in range(2):
                tk2[ks] = trr(base + 8 + 4*t + 2*hf, vPA + 2*(pw//4) + t, (pw%4)*PAGE + q*4096 + hf*2048)
        if q == 3 and n < 17: pre["t"] = lds_flag_read(A, 0)
    LA2 = 2
    issued = 0
    for ks in range(72):
        while issued < min(72, ks + LA2 + 1):
            p2_reads(issued); issued += 1
        A.wait_ds(tk2[ks])
        base = R2 + 16 * (ks % 5)
        AC = AB if ks < 56 else AA
        for t in range(2):
            for j in range(2):
                d = v(AC + 8*j + 4*t, 4)
                A(f"v_mfma_f32_16x16x32_bf16 {d}, {v(base+8+4*t,4)}, {v(base+4*j,4)}, {'0' if ks in (0, 56) else d}")
        if ks % 4 == 3 and ks < 56: release(("P", ks // 4))
        if ks == OPT.get("pubO", 6):
            A.wait_vm(last["OS"]); publish(A, S_FLP, 8192); ST("O pub")
        if ks == 12: small_loads()
        if ks == 60:
            A.wait_vm(last["SM"])
            for j in range(2): A(f"v_sub_f32 {v(vG+2+j)}, 1.0, {v(vG+j)}")
            for k in range(4):
                A(f"v_lshlrev_b32 {v(vB2+2*k)}, 16, {v(vB2R+k)}")
                A(f"v_and_b32 {v(vB2+2*k+1)}, 0xffff0000, {v(vB2R+k)}")
            for j in range(2):
                for r in range(8):
                    A(f"v_add_f32 {v(AB+8*j+r)}, {v(AB+8*j+r)}, {v(vB2+r)}")
                    A(f"v_mul_f32 {v(AB+8*j+r)}, {v(AB+8*j+r)}, {v(vG+2+j)}")
            A(f"v_and_b32 {v(t0)}, 15, {v(vL)}")
            A(f"v_mul_u32_u24 {v(t0)}, 896, {v(t0)}")
            A(f"v_bfe_u32 {v(t1)}, {v(vL)}, 4, 1")
            A(f"v_lshl_add_u32 {v(t0)}, {v(t1)}, 5, {v(t0)}")
            A(f"v_lshrrev_b32 {v(t1)}, 5, {v(vL)}")
            A(f"v_lshl_add_u32 {v(t0)}, {v(t1)}, 4, {v(t0)}")
            A(f"""s_lshl_b32 s{S_T}, s{S_TT}, 6
s_lshr_b32 s{S_T2}, s{S_W}, 1
s_lshl_b32 s{S_T2}, s{S_T2}, 5
s_add_u32 s{S_T}, s{S_T}, s{S_T2}
s_mul_i32 s{S_OS}, s{S_T}, 896
s_add_u32 s{S_OS}, s{S_OS}, s{S_CO}
s_and_b32 s{S_T}, s{S_W}, 1
s_lshl_b32 s{S_T}, s{S_T}, 6
s_add_u32 s{S_OS}, s{S_OS}, s{S_T}
s_add_u32 s{S_GT}, s{S_OS}, {16*896}""")
    ST("p2 done")
    A.nop(8)
    OB = WR
    for j in range(2):
        for r in range(8): A(f"v_fmac_f32 {v(AB+8*j+r)}, {v(AA+8*j+r)}, {v(vG+j)}")
        for k in range(4): A(f"v_cvt_pk_bf16_f32 {v(OB+4*j+k)}, {v(AB+8*j+2*k)}, {v(AB+8*j+2*k+1)}")
        A("s_nop 1")
        A(f"v_permlane16_swap_b32 {v(OB+4*j)}, {v(OB+4*j+2)}")
        A(f"v_permlane16_swap_b32 {v(OB+4*j+1)}, {v(OB+4*j+3)}")
        A("s_nop 1")
        A(f"buffer_store_dwordx4 {v(OB+4*j,4)}, {v(t0)}, s[{OUT}:{OUT+3}], s{S_OS if j == 0 else S_GT} offen")
    ST("end")
    A.label(f"{kname}_cfin")
    ST.dump(WS, S_W8, vL, vT)
    A("s_endpgm")

    A = L; ST = Stamper(L, vST, "L"); last = {}
    A.label(f"{kname}_L")
    S_XO, S_HO, S_QO, S_XH, S_M4, S_M1, S_MXH, S_FLC, S_FO, S_WOB, S_W2B, S_RF, S_GW = 48, 49, 50, 51, 52, 53, 54, 55, 56, 57, 58, 59, 60
    SW = 88
    vXD, vXHD, vHD0, vHD1, vQD, vW2D, vRS, vRD = 24, 25, 26, 27, 28, 29, 30, 31
    vD = 32
    ST("start")
    A(f"v_mul_u32_u24 {v(t1)}, 896, {v(r8)}")
    A(f"v_xor_b32 {v(t0)}, {v(l7)}, {v(r8)}")
    A(f"v_lshl_add_u32 {v(vXD)}, {v(t0)}, 4, {v(t1)}")
    A(f"v_lshlrev_b32 {v(t0)}, 1, {v(g)}")
    A(f"v_xor_b32 {v(t0)}, {v(t0)}, {v(l7)}")
    A(f"v_lshl_add_u32 {v(vW2D)}, {v(t0)}, 4, {v(t1)}")
    A(f"v_mul_u32_u24 {v(t1)}, 3584, {v(g)}")
    A(f"v_lshlrev_b32 {v(t0)}, 1, {v(g)}")
    A(f"v_xor_b32 {v(t0)}, {v(t0)}, {v(c16)}")
    A(f"v_lshl_add_u32 {v(vHD0)}, {v(t0)}, 4, {v(t1)}")
    A(f"v_xor_b32 {v(vHD1)}, 0x80, {v(vHD0)}")
    A("s_waitcnt lgkmcnt(0)")
    A("s_barrier")
    srd(A, X, KA, 2048 * 896)
    srd(A, W1, KA+8, 448 * 3584)
    srd(A, QKV, KA+2, 448 * 2688)
    srd(A, WO, KA+4, 448 * 896)
    srd(A, W2, KA+12, 1792 * 896)
    srd(A, B1, KA+10, 3584)
    srd(A, GW, KA+16, 896)
    srd(A, WS, KA+22, WS_BYTES)
    SWEEP = OPT.get("sweep", 1)
    A(f"s_lshl_b32 s{S_GW}, s2, 2\ns_add_u32 s{S_GW}, s{S_GW}, s{S_W}")
    if SWEEP == 2:
        A(f"s_mul_i32 s{S_T}, s{S_GW}, 1792")
        A.vmem(f"buffer_load_dwordx4 {v(vD,4)}, {v(vFR)}, s[{X}:{X+3}], s{S_T} offen")
        A("s_mov_b32 exec_hi, 0xffff")
        A.vmem(f"buffer_load_dwordx4 {v(vD,4)}, {v(vFR)}, s[{X}:{X+3}], s{S_T} offen offset:1024")
        A("s_mov_b32 exec_hi, -1")
        A(f"s_mul_i32 s{S_T}, s{S_GW}, 1664")
        A.vmem(f"buffer_load_dwordx4 {v(vD,4)}, {v(vFR)}, s[{W1}:{W1+3}], s{S_T} offen")
        A("s_mov_b32 exec_hi, 0xff")
        A.vmem(f"buffer_load_dwordx4 {v(vD,4)}, {v(vFR)}, s[{W1}:{W1+3}], s{S_T} offen offset:1024")
        A("s_mov_b32 exec_hi, -1")
    QROW = 64 if REPACK else 2688
    A(f"""s_lshr_b32 s{S_T}, s{S_W}, 1
s_lshl_b32 s{S_T}, s{S_T}, 5
s_and_b32 s{S_T2}, s{S_W}, 1
s_lshl_b32 s{S_T2}, s{S_T2}, 2
s_add_u32 s{S_T}, s{S_T}, s{S_T2}
s_mul_i32 s{S_HO}, s{S_T}, 3584
s_add_u32 s{S_HO}, s{S_HO}, s{S_HW}
s_mul_i32 s{S_QO}, s{S_T}, {QROW}
s_mul_i32 s{S_T2}, s{S_HC}, {3*448*64 if REPACK else 56}
s_add_u32 s{S_QO}, s{S_QO}, s{S_T2}
s_lshl_b32 s{S_T}, s{S_RB}, 7
s_lshl_b32 s{S_T2}, s{S_W}, 5
s_add_u32 s{S_T2}, s{S_T}, s{S_T2}
s_mul_i32 s{S_XO}, s{S_T2}, 896
s_sub_i32 s{S_T}, s{S_T}, 16
s_max_i32 s{S_T}, s{S_T}, 0
s_lshl_b32 s{S_T2}, s{S_W}, 2
s_add_u32 s{S_T}, s{S_T}, s{S_T2}
s_mul_i32 s{S_XH}, s{S_T}, 896
s_lshl_b32 s{S_M4}, s{S_W}, 12
s_lshl_b32 s{S_M1}, s{S_W}, 10
s_lshl_b32 s{S_MXH}, s{S_W}, 9""")
    S_R1, S_R2, S_R3 = 94, 95, 96
    if OPT.get("rot", 1):
        A(f"""s_lshl_b32 s{S_T}, s{S_HC}, 1
s_add_u32 s{S_T}, s{S_T}, s{S_RB}
s_mul_i32 s{S_T2}, s{S_T}, 37
s_lshr_b32 s{S_T2}, s{S_T2}, 8
s_mul_i32 s{S_T2}, s{S_T2}, 7
s_sub_u32 s{S_R1}, s{S_T}, s{S_T2}
s_and_b32 s{S_T}, s{S_TT}, 3
s_mul_i32 s{S_T}, s{S_T}, 7
s_add_u32 s{S_T}, s{S_T}, 1
s_lshr_b32 s{S_T}, s{S_T}, 1
s_lshl_b32 s{S_T2}, s{S_CT}, 1
s_add_u32 s{S_T}, s{S_T}, s{S_T2}
s_sub_u32 s{S_T2}, s{S_T}, 14
s_cmp_ge_u32 s{S_T}, 14
s_cselect_b32 s{S_R2}, s{S_T2}, s{S_T}
s_add_u32 s{S_T}, s{S_TT}, s{S_CT}
s_and_b32 s{S_R3}, s{S_T}, 3""")
    else:
        A(f"s_mov_b32 s{S_R1}, 0\ns_mov_b32 s{S_R2}, 0\ns_mov_b32 s{S_R3}, 0")
    lb = newlab("w0")
    A(f"s_cmp_lg_u32 s{S_W}, 0\ns_cbranch_scc1 {lb}")
    A(f"s_mov_b32 m0, {L_BIAS}\ns_mov_b64 exec, 0xffff")
    A(f"buffer_load_dwordx4 {v(vFR)}, s[{B1}:{B1+3}], s{S_HW} offen lds")
    A(f"s_mov_b32 m0, {L_GATE}\ns_mov_b32 exec_lo, -1\ns_mov_b32 exec_hi, 0xffffff")
    A(f"s_lshl_b32 s{S_T}, s{S_R1}, 7")
    A(f"v_add_u32 {v(t0)}, s{S_T}, {v(vFR)}")
    A(f"v_subrev_u32 {v(t1)}, 896, {v(t0)}")
    A(f"v_min_u32 {v(t0)}, {v(t0)}, {v(t1)}")
    A(f"buffer_load_dwordx4 {v(t0)}, s[{GW}:{GW+3}], 0 offen lds")
    A("s_mov_b64 exec, -1")
    A(f"s_cmp_lg_u32 s2, 0\ns_cbranch_scc1 {lb}")
    A(f"s_memrealtime s[{NON}:{NON+1}]\ns_waitcnt lgkmcnt(0)\ns_or_b32 s{NON}, s{NON}, 1")
    A(f"v_mov_b32 {v(vN)}, s{NON}\nv_mov_b32 {v(vN+1)}, s{NON+1}")
    A("s_mov_b64 exec, 1")
    A(f"global_store_dwordx2 {v(vZ)}, {v(vN,2)}, s[{DBG}:{DBG+1}] sc1")
    A("s_mov_b64 exec, -1")
    A.label(lb)
    S_CB = 93
    def rot_base(sdst, srot, idx, mod, mult, sadd):
        A(f"s_add_u32 s{sdst}, s{srot}, {idx}")
        A(f"s_sub_u32 s{S_T2}, s{sdst}, {mod}")
        A(f"s_cmp_ge_u32 s{sdst}, {mod}")
        A(f"s_cselect_b32 s{sdst}, s{S_T2}, s{sdst}")
        A(f"s_mul_i32 s{sdst}, s{sdst}, {mult}")
        A(f"s_add_u32 s{sdst}, s{sdst}, s{sadd}")
    def dma(m0reg, m0off, sreg, soff, va, sr, flags=""):
        A(f"s_add_u32 m0, s{m0reg}, {m0off}")
        A(f"s_add_u32 s{S_T}, s{sreg}, {soff}")
        return A.vmem(f"buffer_load_dwordx4 {v(va)}, s[{sr}:{sr+3}], s{S_T} offen {flags} lds")
    def load(lu):
        k, c = lu; pb = page[lu] * PAGE
        if k == "H":
            rot_base(S_CB, S_R1, c, 7, 64*3584, S_HO)
            for gi in range(4): t = dma(S_M4, pb + gi*1024, S_CB, 8*gi*3584, vHD1 if gi & 1 else vHD0, W1)
        elif k == "X":
            rot_base(S_CB, S_R1, c, 7, 128, S_XO)
            for q in range(4): t = dma(S_M4, pb + q*1024, S_CB, q*8*896, vXD, X)
        elif k == "Q":
            rot_base(S_CB, S_R1, c, 7, 4096 if REPACK else 172032, S_QO)
            for p in range(3):
                if REPACK: dma(S_M1, pb + p*4096, S_CB, WS_QR + p*448*64, vQD, WS, "sc1")
                else: dma(S_M1, pb + p*4096, S_CB, 896*p, vQD, QKV)
            rot_base(S_CB, S_R1, c, 7, 128, S_XH)
            A(f"s_mov_b64 exec, s[{M32}:{M32+1}]")
            t = dma(S_MXH, pb + 12288, S_CB, 0, vXHD, X)
            A("s_mov_b64 exec, -1")
        elif k == "W":
            if c < 14: rot_base(S_CB, S_R2, c, 14, 128*896, S_W2B)
            else: rot_base(S_CB, S_R3, c - 14, 4, 112*896, S_WOB)
            for q in range(4): t = dma(S_M4, pb + q*1024, S_CB, 8*q*896, vW2D, W2 if c < 14 else WO)
        elif k == "F":
            if c < 14: rot_base(S_CB, S_R2, c, 14, 4096, S_FO)
            else: rot_base(S_CB, S_R3, c - 14, 4, 4096, S_FO)
            for j in range(4): t = dma(S_M4, pb + j*1024, S_CB, j*73728 + (0 if c < 14 else 14*4096), vFR, WS, "sc1")
        last[lu] = t
    def poll(tag, sreg, off, wide=False):
        lp, ok = newlab("pl"), newlab("pk")
        A(f"s_add_u32 s{S_T}, s{sreg}, {off}")
        if not wide: A(f"s_mov_b64 exec, s[{M32}:{M32+1}]")
        A.label(lp)
        if wide:
            A(f"buffer_load_dwordx4 {v(vD+12,4)}, {v(vFR)}, s[{WS}:{WS+3}], s{S_T} offen sc1")
            A(f"buffer_load_dwordx4 {v(vD+16,4)}, {v(vFR)}, s[{WS}:{WS+3}], s{S_T} offen offset:768 sc1")
            A("s_waitcnt vmcnt(0)")
            A(f"v_cmp_ne_u64 vcc, s[{NON}:{NON+1}], {v(vD+12,2)}")
            for i in range(1, 4):
                A(f"v_cmp_ne_u64 s[{SW}:{SW+1}], s[{NON}:{NON+1}], {v(vD+12+2*i,2)}")
                A(f"s_or_b64 vcc, vcc, s[{SW}:{SW+1}]")
            A(f"s_cmp_eq_u64 vcc, 0\ns_cbranch_scc1 {ok}")
        else:
            A(f"buffer_load_dwordx2 {v(vD+12,2)}, {v(vL8)}, s[{WS}:{WS+3}], s{S_T} offen sc1")
            A("s_waitcnt vmcnt(0)")
            A(f"v_cmp_ne_u64 vcc, s[{NON}:{NON+1}], {v(vD+12,2)}")
            A(f"s_cbranch_vccz {ok}")
        spin_guard(A, lp)
        A.label(ok)
        A("s_mov_b64 exec, -1")
        A.vm_done = A.vm
        ST(f"poll {tag} ok")
    ST("addr done")
    posted = [0]
    def post_upto(n):
        if n <= posted[0]: return
        A.wait_vm(last[seq[n-1]])
        lds_post(A, 0, n)
        posted[0] = n
        ST(f"post {seq[n-1]}")
    load(seq[0]); load(seq[1])
    A(f"s_and_b32 s{S_T}, s{S_W}, 1\ns_lshl_b32 s{S_T}, s{S_T}, 6")
    A(f"v_xor_b32 {v(vXHD)}, s{S_T}, {v(vXD)}")
    A(f"v_and_b32 {v(t0)}, 3, {v(r16)}")
    A(f"v_lshl_add_u32 {v(t0)}, {v(g)}, 3, {v(t0)}")
    A(f"v_mul_u32_u24 {v(vQD)}, {QROW}, {v(t0)}")
    A(f"v_and_b32 {v(t0)}, 1, {v(g)}")
    A(f"v_lshlrev_b32 {v(t1)}, 1, {v(t0)}")
    A(f"v_xor_b32 {v(t1)}, {v(t1)}, {v(l3)}")
    A(f"v_lshl_add_u32 {v(vQD)}, {v(t1)}, 4, {v(vQD)}")
    A(f"s_getpc_b64 s[{SW}:{SW+1}]")
    A.label(f"{kname}_pc")
    A(f"s_sub_u32 s{SW}, s{SW}, {kname}_pc-{kname}\ns_subb_u32 s{SW+1}, s{SW+1}, 0")
    A(f"s_lshr_b32 s{S_T}, s2, 3\ns_and_b32 s{S_T}, s{S_T}, 7\ns_lshl_b32 s{S_T}, s{S_T}, 2\ns_add_u32 s{S_T}, s{S_T}, s{S_W}\ns_lshl_b32 s{S_T}, s{S_T}, 10")
    A(f"v_add_u32 {v(t0)}, s{S_T}, {v(vFR)}")
    A(f"v_min_u32 {v(t0)}, {kname}_end-{kname}-16, {v(t0)}")
    A.vmem(f"global_load_dwordx4 {v(vD,4)}, {v(t0)}, s[{SW}:{SW+1}]")
    if REPACK:
        A(f"v_bfe_u32 {v(t0)}, {v(vL)}, 2, 1")
        A(f"v_mul_u32_u24 {v(vRS)}, 2688, {v(t0)}")
        A(f"v_mul_u32_u24 {v(t1)}, 56, {v(r8)}")
        A(f"v_add_u32 {v(vRS)}, {v(vRS)}, {v(t1)}")
        A(f"v_lshl_add_u32 {v(vRS)}, {v(l3)}, 4, {v(vRS)}")
        A(f"v_mul_u32_u24 {v(vRD)}, {3*448*64}, {v(r8)}")
        A(f"v_lshl_add_u32 {v(vRD)}, {v(l7)}, 4, {v(vRD)}")
        A(f"s_cmp_ge_u32 s2, 224\ns_cselect_b32 s{S_T}, 0x40000000, 0\ns_cmp_eq_u32 s{S_W}, 3\ns_cselect_b32 s{S_T}, 0x40000000, s{S_T}")
        A(f"v_or_b32 {v(vRS)}, s{S_T}, {v(vRS)}")
        A(f"v_or_b32 {v(vRD)}, s{S_T}, {v(vRD)}")
        A(f"s_mul_i32 s{S_T}, s2, {2*2688}\ns_mul_i32 s{S_T2}, s{S_W}, 896\ns_add_u32 s{S_T}, s{S_T}, s{S_T2}")
        A.vmem(f"buffer_load_dwordx4 {v(vD+4,4)}, {v(vRS)}, s[{QKV}:{QKV+3}], s{S_T} offen")
        last["RL"] = A.vmem(f"buffer_load_dwordx4 {v(vD+8,4)}, {v(vRS)}, s[{QKV}:{QKV+3}], s{S_T} offen offset:448")
    elif SWEEP:
        A(f"s_mul_i32 s{S_T}, s{S_GW}, 1280")
        A.vmem(f"buffer_load_dwordx4 {v(vD,4)}, {v(vFR)}, s[{QKV}:{QKV+3}], s{S_T} offen")
        A("s_mov_b64 exec, 0xffff")
        A.vmem(f"buffer_load_dwordx4 {v(vD,4)}, {v(vFR)}, s[{QKV}:{QKV+3}], s{S_T} offen offset:1024")
        A("s_mov_b64 exec, -1")
    def sweep2():
        A(f"s_mul_i32 s{S_T}, s{S_GW}, 1664")
        A.vmem(f"buffer_load_dwordx4 {v(vD,4)}, {v(vFR)}, s[{W2}:{W2+3}], s{S_T} offen")
        A("s_mov_b32 exec_hi, 0xff")
        A.vmem(f"buffer_load_dwordx4 {v(vD,4)}, {v(vFR)}, s[{W2}:{W2+3}], s{S_T} offen offset:1024")
        A(f"s_mov_b32 exec_hi, 0\ns_lshl_b32 s{S_T}, s{S_GW}, 9")
        A.vmem(f"buffer_load_dwordx4 {v(vD,4)}, {v(vFR)}, s[{WO}:{WO+3}], s{S_T} offen")
        A("s_mov_b32 exec_hi, -1")
    A(f"""s_lshl_b32 s{S_T}, s{S_TT}, 8
s_add_u32 s{S_FLC}, s{S_T}, {WS_FL}
s_lshl_b32 s{S_RF}, s2, 3
s_add_u32 s{S_RF}, s{S_RF}, {WS_FL + 16384}
s_mul_i32 s{S_FO}, s{S_TT}, {4*73728}
s_add_u32 s{S_FO}, s{S_FO}, s{S_M1}
s_lshl_b32 s{S_T}, s{S_CT}, 7
s_mul_i32 s{S_WOB}, s{S_W}, {28*896}
s_add_u32 s{S_WOB}, s{S_WOB}, s{S_T}
s_mul_i32 s{S_W2B}, s{S_W}, {32*896}
s_add_u32 s{S_W2B}, s{S_W2B}, s{S_T}""")
    LAG = OPT.get("lag", 2)
    released = -1
    for n in range(2, len(seq)):
        lu = seq[n]
        if lu == ("W", 0):
            post_upto(n)
            A(f"s_cmp_ge_u32 s{S_CT}, 7\ns_cbranch_scc1 {kname}_lfin")
        if after[lu] > released:
            req = max(SEQ[x] for u in UNITS[:after[lu] + 2] for x in NEED[u]) + 1
            assert req <= n, (lu, req, n)
            post_upto(req)
            lds_wait_min(A, 16, after[lu] + 1)
            released = after[lu]
        if lu == ("Q", 0) and REPACK:
            post_upto(n)
            A(f"s_mov_b32 s{SW+2}, {WS_FL + 16384}")
            poll("R", SW + 2, 0, wide=True)
        if lu == ("F", 0): post_upto(n); poll("H", S_FLC, 0)
        if lu == ("F", 14): post_upto(n); poll("O", S_FLC, 8192)
        load(lu)
        if n == 3:
            post_upto(2)
            if REPACK:
                A.wait_vm(last["RL"])
                A(f"s_mul_i32 s{S_T}, s{S_W}, {448*64}\ns_lshl_b32 s{S_T2}, s2, 7\ns_add_u32 s{S_T}, s{S_T}, s{S_T2}\ns_add_u32 s{S_T}, s{S_T}, {WS_QR}\ns_add_u32 s{S_T2}, s{S_T}, {8*3*448*64}")
                A.vmem(f"buffer_store_dwordx4 {v(vD+4,4)}, {v(vRD)}, s[{WS}:{WS+3}], s{S_T} offen sc1")
                A.vmem(f"buffer_store_dwordx4 {v(vD+8,4)}, {v(vRD)}, s[{WS}:{WS+3}], s{S_T2} offen sc1")
            nonce_load(A, last)
        if n == 5 and SWEEP: sweep2()
        m = n + 1 - LAG
        if m >= 2 and (seq[m-1][0] != "H" and seq[m-1][0] != "W"): post_upto(m)
        if posted[0] >= 6 and "nc" not in last:
            last["nc"] = 1
            nonce_check(A, last)
            if REPACK:
                lb = newlab("rp")
                A(f"s_cmp_lg_u32 s{S_W}, 0\ns_cbranch_scc1 {lb}")
                A(f"s_cmp_ge_u32 s2, 224\ns_cbranch_scc1 {lb}")
                sv = (A.vm, A.vm_done, A.ds, A.ds_done)
                lds_wait_min(A, 0, 6)
                publish(A, S_RF, 0)
                A.vm, A.vm_done, A.ds, A.ds_done = sv
                A.label(lb)
                ST("R pub")
    post_upto(len(seq))
    A.label(f"{kname}_lfin")
    ST.dump(WS, S_W8, vL, vT)
    A.label(f"{kname}_end")
    A("s_endpgm")
    return P.text() + C.text() + L.text(), page, after

def desc(kname, nv, accoff, ns=102):
    return f""".amdhsa_kernel {kname}
  .amdhsa_next_free_vgpr {nv}
  .amdhsa_next_free_sgpr {ns}
  .amdhsa_accum_offset {accoff}
  .amdhsa_group_segment_fixed_size 0
  .amdhsa_kernarg_size 96
  .amdhsa_user_sgpr_count 2
  .amdhsa_user_sgpr_kernarg_segment_ptr 1
  .amdhsa_system_sgpr_workgroup_id_x 1
.end_amdhsa_kernel
"""

if __name__ == "__main__":
    out = sys.argv[1]
    STAMPS = "--stamps" in sys.argv
    for x in sys.argv[2:]:
        if "=" in x:
            k_, v_ = x.split("="); OPT[k_] = int(v_)
    k = NAME + "_kernel"
    t = f"; @launch grid=(256,1,1) block=(512,1,1) lds=163840\n"
    t += '.amdgcn_target "amdgcn-amd-amdhsa--gfx950"\n.text\n'
    body, page, after = gen(k)
    if "--plan" in sys.argv:
        for lu in page: print(lu, "page", page[lu], "after", UNITS[after[lu]] if after.get(lu, -1) >= 0 else None)
    t += f".globl {k}\n.p2align 8\n.type {k},@function\n" + body
    t += '.section .rodata,"a"\n.p2align 6\n' + desc(k, 256, 256)
    open(out, "w").write(t)
```

```python
import sys
from asmlib import Asm, v, a, s

NAME = "gated_mix__sliding_local_dilated__dense_activation_squared_relu__prompt"
WS_G = 128 * 72 * 1024
WS_FL = WS_G + 8192
WS_QR = WS_FL + 20480
WS_ST = WS_QR + 16 * 3 * 448 * 64
WS_BYTES = WS_ST + 262144
PAGE = 16384
STAMPS = False
OPT = {}

def srd(A, d, lo, nbytes):
    A(f"s_mov_b32 s{d}, s{lo}")
    A(f"s_and_b32 s{d+1}, s{lo+1}, 0xffff")
    A(f"s_mov_b32 s{d+2}, {nbytes}")
    A(f"s_mov_b32 s{d+3}, 0x20000")

class Stamper:
    def __init__(self, A, vreg, tag):
        self.A = A; self.n = 0; self.v = vreg; self.tag = tag
    def __call__(self, what=""):
        if not STAMPS: return
        A = self.A
        if self.n == 0:
            A(f"v_mov_b32 v{self.v}, 0")
            A("s_memrealtime s[100:101]")
            A.wait_ds_all()
            A(f"v_writelane_b32 v{self.v}, s100, 62")
        A(f"s_memtime s[100:101]")
        A.wait_ds_all()
        A(f"v_writelane_b32 v{self.v}, s100, {self.n}")
        print(f"stamp {self.tag} {self.n}: {what}")
        self.n += 1
        assert self.n <= 62
    def dump(self, WS, S_W8, vL, vt):
        if not STAMPS: return
        A = self.A
        A("s_mov_b64 exec, -1")
        A("s_memrealtime s[100:101]")
        A.wait_ds_all()
        A(f"v_writelane_b32 v{self.v}, s100, 63")
        A(f"s_and_b32 s100, s{S_W8}, 3\ns_cmp_lg_u32 s100, 0\ns_cbranch_scc1 Lnodump{self.tag}")
        A(f"s_lshl_b32 s100, s2, 1\ns_lshr_b32 s101, s{S_W8}, 2\ns_add_u32 s100, s100, s101\ns_lshl_b32 s100, s100, 8\ns_add_u32 s100, s100, {WS_ST}")
        A(f"v_lshlrev_b32 v{vt}, 2, v{vL}")
        A(f"buffer_store_dword v{self.v}, v{vt}, s[{WS}:{WS+3}], s100 offen")
        A.label(f"Lnodump{self.tag}")

UNITS = [("A", c) for c in range(7)] + [("Q", c) for c in range(7)] + [("XC", 0)] + [("P", n) for n in range(18)]
UIDX = {u: i for i, u in enumerate(UNITS)}
def make_plan():
    page = {}; after = {}
    for c in range(7):
        page[("H", c)] = c % 4; page[("X", c)] = 4 + c % 4
        after[("H", c)] = after[("X", c)] = -1 if c < 4 else UIDX[("A", c - 3)]
    free = []
    free += [(-1, 8), (-1, 9)]
    for c in range(3, 7):
        rel = UIDX[("A", c + 1)] if c < 6 else UIDX[("Q", 0)]
        free += [(rel, c % 4), (rel, 4 + c % 4)]
    order = [("Q", c) for c in range(7)]
    nw0 = OPT.get("nw0", 3)
    order += [("W", n) for n in range(nw0)] + [("F", n) for n in range(nw0)]
    for n in range(nw0, 18): order += [("W", n), ("F", n)]
    def nxt(u):
        i = UIDX[u] + 1
        return i
    for lu in order:
        free.sort()
        rel, pg = free.pop(0)
        page[lu] = pg; after[lu] = rel
        if lu == ("Q", 0):
            page[("XC", 0)] = pg
            free.append((UIDX[("P", 0)], pg))
        elif lu[0] == "Q": free.append((nxt(lu), pg))
        else:
            n = lu[1]
            if n < 17: free.append((UIDX[("P", n + 1)], pg))
    return page, after, order

def gen(kname):
    page, after, order = make_plan()
    REPACK = OPT.get("repack", 1)
    S_W8, S_RB, S_HC, S_TT, S_CT = 3, 4, 5, 6, 7
    X, QKV, W1, WS, WO, W2, OUT, B1, GW, B2 = 8, 12, 16, 20, 24, 28, 32, 36, 40, 44
    KA = 48; DBG = 68
    MP, MA, MB, MFIRST, M32, NON = 72, 74, 76, 78, 80, 82
    S_T, S_T2, S_W = 84, 85, 86
    P = Asm()
    C = Asm()
    L = Asm()
    A = P
    vTID, vL, vFR, vST = 0, 1, 2, 3
    vZ, vN = 4, 6
    vL8 = 5
    vT = 8
    A.label(kname)
    A(f"s_cmp_ge_u32 s2, 256\ns_cbranch_scc1 {kname}_end")
    A(f"s_load_dwordx16 s[{KA}:{KA+15}], s[0:1], 0")
    A(f"s_load_dwordx8 s[{KA+16}:{KA+23}], s[0:1], 64")
    A(f"v_lshrrev_b32 {v(vT)}, 6, {v(vTID)}")
    A(f"v_and_b32 {v(vL)}, 63, {v(vTID)}")
    A(f"v_readfirstlane_b32 s{S_W8}, {v(vT)}")
    A(f"v_lshlrev_b32 {v(vFR)}, 4, {v(vL)}")
    A(f"v_lshlrev_b32 {v(vL8)}, 3, {v(vL)}")
    A(f"v_mov_b32 {v(vZ)}, 0")
    A(f"""s_and_b32 s{S_W}, s{S_W8}, 3
s_lshr_b32 s{S_T}, s2, 3
s_and_b32 s{S_RB}, s2, 1
s_lshl_b32 s{S_RB}, s{S_RB}, 3
s_and_b32 s{S_T2}, s{S_T}, 7
s_add_u32 s{S_RB}, s{S_RB}, s{S_T2}
s_bfe_u32 s{S_HC}, s2, 0x20001
s_lshl_b32 s{S_HC}, s{S_HC}, 2
s_lshr_b32 s{S_T2}, s{S_T}, 3
s_add_u32 s{S_HC}, s{S_HC}, s{S_T2}
s_and_b32 s{S_TT}, s2, 7
s_lshl_b32 s{S_TT}, s{S_TT}, 2
s_and_b32 s{S_T2}, s{S_T}, 3
s_add_u32 s{S_TT}, s{S_TT}, s{S_T2}
s_lshr_b32 s{S_CT}, s2, 5
s_mov_b32 s{M32}, -1
s_mov_b32 s{M32+1}, 0""")
    c16, g, r8, l7, l3, r16, t0, t1 = [vT + i for i in range(8)]
    A(f"v_and_b32 {v(c16)}, 15, {v(vL)}")
    A(f"v_lshrrev_b32 {v(g)}, 4, {v(vL)}")
    A(f"v_lshrrev_b32 {v(r8)}, 3, {v(vL)}")
    A(f"v_and_b32 {v(l7)}, 7, {v(vL)}")
    A(f"v_and_b32 {v(l3)}, 3, {v(vL)}")
    A(f"v_lshrrev_b32 {v(r16)}, 2, {v(vL)}")
    S_HW = 87
    A(f"""s_and_b32 s{S_T}, s{S_HC}, 3
s_lshl_b32 s{S_T2}, s{S_T}, 8
s_cmp_eq_u32 s{S_T}, 3
s_cselect_b32 s{S_T2}, 640, s{S_T2}
s_lshr_b32 s{S_T}, s{S_HC}, 2
s_mul_i32 s{S_T}, s{S_T}, 896
s_add_u32 s{S_HW}, s{S_T}, s{S_T2}""")
    A(f"s_cmp_ge_u32 s{S_W8}, 4\ns_cbranch_scc1 {kname}_L")

    def nonce_load(A, last):
        last["N"] = A.vmem(f"global_load_dwordx2 {v(vN,2)}, {v(vZ)}, s[{DBG}:{DBG+1}] sc1")
    def nonce_check(A, last, tag):
        A.wait_vm(last["N"])
        A(f"s_mov_b32 s{S_T2}, 0")
        A.label(f"{kname}_nc{tag}")
        A(f"v_readfirstlane_b32 s{NON}, {v(vN)}\nv_readfirstlane_b32 s{NON+1}, {v(vN+1)}")
        A(f"s_cmp_lg_u32 s{NON}, 0\ns_cbranch_scc1 {kname}_nk{tag}")
        A(f"s_add_u32 s{S_T2}, s{S_T2}, 1\ns_cmp_gt_u32 s{S_T2}, 0x40000\ns_cbranch_scc1 {kname}_nk{tag}")
        A(f"global_load_dwordx2 {v(vN,2)}, {v(vZ)}, s[{DBG}:{DBG+1}] sc1\ns_waitcnt vmcnt(0)\ns_branch {kname}_nc{tag}")
        A.label(f"{kname}_nk{tag}")
    def publish(A, sreg, off):
        A(f"v_mov_b32 {v(vN)}, s{NON}\nv_mov_b32 {v(vN+1)}, s{NON+1}")
        A(f"s_add_u32 s{S_T}, s{sreg}, {off}")
        A("s_mov_b64 exec, 1")
        A.vmem(f"buffer_store_dwordx2 {v(vN,2)}, {v(vZ)}, s[{WS}:{WS+3}], s{S_T} offen sc1")
        A("s_mov_b64 exec, -1")

    A = C; ST = Stamper(C, vST, "C"); last = {}
    S_FR, S_FLP, S_GT, S_OS, S_CO = 48, 49, 50, 51, 52
    S_HS = 54
    vHA, vXA, vFR0, vFR3 = 16, 24, 26, 27
    vQA, vXH = 28, 37
    XR = 44
    ACC = 156
    WR = 220; NWR = 9
    def ax(ks, tb): return XR + 4 * (2 * ks + tb)
    def ach(tb, b): return ACC + 4 * (8 * tb + b)
    def acq(tb, t): return ACC + 4 * (6 * tb + t)
    ACC_HL = ACC + 48
    vBIAS = XR + 80
    vGT = XR + 48
    ST("start")
    A(f"v_lshlrev_b32 {v(t1)}, 8, {v(r16)}")
    A(f"v_lshl_add_u32 {v(t1)}, {v(l3)}, 3, {v(t1)}")
    A(f"v_and_b32 {v(t0)}, 7, {v(r16)}")
    A(f"v_lshl_add_u32 {v(vHA)}, {v(t0)}, 5, {v(t1)}")
    for b in range(1, 8): A(f"v_xor_b32 {v(vHA+b)}, {32*b}, {v(vHA)}")
    A(f"v_xor_b32 {v(t0)}, {v(g)}, {v(l7)}")
    A(f"v_lshlrev_b32 {v(t1)}, 7, {v(c16)}")
    A(f"v_lshl_add_u32 {v(vXH)}, {v(t0)}, 4, {v(t1)}")
    A(f"s_lshl_b32 s{S_T}, s{S_W}, 12\ns_add_u32 s{S_T2}, s{S_T}, {4*PAGE}")
    A(f"v_add_u32 {v(vXA)}, s{S_T2}, {v(vXH)}")
    A(f"v_xor_b32 {v(vXA+1)}, 64, {v(vXA)}")
    A(f"v_xor_b32 {v(vXH+1)}, 64, {v(vXH)}")
    A(f"v_and_b32 {v(t0)}, 1, {v(g)}")
    A(f"v_lshlrev_b32 {v(vQA)}, 6, {v(r16)}")
    A(f"v_lshl_add_u32 {v(vQA)}, {v(t0)}, 5, {v(vQA)}")
    A(f"v_lshl_add_u32 {v(vQA)}, {v(l3)}, 3, {v(vQA)}")
    A(f"v_xor_b32 {v(vQA+1)}, 32, {v(vQA)}")
    A(f"""s_and_b32 s{S_T}, s{S_W}, 1
s_lshl_b32 s{S_T}, s{S_T}, 5
s_lshr_b32 s{S_T2}, s{S_W}, 1
s_lshl_b32 s{S_T2}, s{S_T2}, 12""")
    A(f"v_xor_b32 {v(vQA+2)}, s{S_T}, {v(vQA)}")
    A(f"v_add_u32 {v(vQA+2)}, s{S_T2}, {v(vQA+2)}")
    for z in (1, 2):
        for i in range(3): A(f"v_add_u32 {v(vQA+3*z+i)}, {z*65536}, {v(vQA+i)}")
        for i in range(2): A(f"v_add_u32 {v(vXH+2*z+i)}, {z*65536}, {v(vXH+i)}")
    A(f"v_and_b32 {v(t0)}, 31, {v(vL)}")
    A(f"v_mul_u32_u24 {v(t0)}, 28, {v(t0)}")
    A(f"v_lshrrev_b32 {v(t1)}, 5, {v(vL)}")
    A(f"v_mul_u32_u24 {v(t1)}, 896, {v(t1)}")
    A(f"v_add_u32 {v(t1)}, {v(t1)}, {v(t0)}")
    A(f"v_lshlrev_b32 {v(r8)}, 3, {v(g)}")
    A("s_waitcnt lgkmcnt(0)")
    srd(A, X, KA, 2048 * 896)
    srd(A, B1, KA+10, 3584)
    srd(A, B2, KA+14, 896)
    srd(A, GW, KA+16, 896)
    srd(A, OUT, KA+18, 2048 * 896)
    srd(A, WS, KA+22, WS_BYTES)
    A(f"""s_lshl_b32 s{S_GT}, s{S_RB}, 7
s_lshr_b32 s{S_T}, s{S_W}, 1
s_lshl_b32 s{S_T}, s{S_T}, 6
s_add_u32 s{S_GT}, s{S_GT}, s{S_T}
s_lshl_b32 s{S_T}, s{S_HC}, 2
s_add_u32 s{S_GT}, s{S_GT}, s{S_T}
s_and_b32 s{S_T}, s{S_W}, 1
s_lshl_b32 s{S_T}, s{S_T}, 1
s_add_u32 s{S_GT}, s{S_GT}, s{S_T}
s_mul_i32 s{S_T}, s{S_GT}, 896""")
    for b in range(8):
        A.vmem(f"buffer_load_dwordx2 {v(vGT+16+2*b,2)}, {v(r8)}, s[{B1}:{B1+3}], s{S_HW} offen offset:{32*b}")
    A.vmem(f"buffer_load_dwordx4 {v(vGT,4)}, {v(t1)}, s[{X}:{X+3}], s{S_T} offen")
    A.vmem(f"buffer_load_dwordx3 {v(vGT+4,3)}, {v(t1)}, s[{X}:{X+3}], s{S_T} offen offset:16")
    A.vmem(f"buffer_load_dwordx4 {v(vGT+8,4)}, {v(t0)}, s[{GW}:{GW+3}], 0 offen")
    tk_small = A.vmem(f"buffer_load_dwordx3 {v(vGT+12,3)}, {v(t0)}, s[{GW}:{GW+3}], 0 offen offset:16")
    A(f"v_and_b32 {v(t0)}, 1, {v(c16)}")
    A(f"v_cmp_eq_u32 s[{MP}:{MP+1}], 1, {v(t0)}")
    A(f"v_lshl_add_u32 {v(t1)}, {v(g)}, 2, {v(t0)}")
    A(f"v_cmp_le_u32 s[{MA}:{MA+1}], {v(t1)}, {v(c16)}")
    A(f"v_add_u32 {v(t1)}, 2, {v(t1)}")
    A(f"v_cmp_le_u32 s[{MB}:{MB+1}], {v(t1)}, {v(c16)}")
    A(f"""s_or_b32 s{S_T}, s{S_RB}, s{S_W}
s_cmp_eq_u32 s{S_T}, 0
s_cselect_b32 s{MFIRST}, -1, 0
s_cselect_b32 s{MFIRST+1}, -1, 0""")
    A(f"""s_lshl_b32 s{S_T}, s{S_RB}, 3
s_lshl_b32 s{S_T2}, s{S_W}, 1
s_add_u32 s{S_T}, s{S_T}, s{S_T2}
s_mul_i32 s{S_FR}, s{S_T}, {72*1024}
s_lshl_b32 s{S_T}, s{S_HW}, 4
s_add_u32 s{S_HS}, s{S_FR}, s{S_T}
s_add_u32 s{S_HS+1}, s{S_HS}, 73728
s_and_b32 s{S_T}, s{S_HC}, 3
s_cmp_eq_u32 s{S_T}, 3
s_cselect_b32 s{S_HS+2}, 0x40000000, 0
s_cmp_eq_u32 s{S_T}, 2
s_cselect_b32 s{S_HS+3}, 0x40000000, 0
s_lshl_b32 s{S_T}, s{S_HC}, 10
s_add_u32 s{S_OS}, s{S_FR}, s{S_T}
s_add_u32 s{S_OS}, s{S_OS}, {56*1024}""")
    A(f"v_or_b32 {v(vFR0)}, s{S_HS+2}, {v(vFR)}")
    A(f"v_or_b32 {v(vFR3)}, s{S_HS+3}, {v(vFR)}")
    A(f"""s_lshl_b32 s{S_T}, s{S_RB}, 1
s_lshr_b32 s{S_T2}, s{S_W}, 1
s_add_u32 s{S_T}, s{S_T}, s{S_T2}
s_lshl_b32 s{S_T}, s{S_T}, 4
s_add_u32 s{S_T}, s{S_T}, s{S_HC}
s_lshl_b32 s{S_T}, s{S_T}, 1
s_and_b32 s{S_T2}, s{S_W}, 1
s_add_u32 s{S_T}, s{S_T}, s{S_T2}
s_lshl_b32 s{S_T}, s{S_T}, 3
s_add_u32 s{S_FLP}, s{S_T}, {WS_FL}
s_lshl_b32 s{S_CO}, s{S_CT}, 7""")
    A.wait_vm(tk_small)
    gz = t0
    A(f"v_mov_b32 {v(gz)}, 0")
    for i in range(7): A(f"v_dot2c_f32_bf16 {v(gz)}, {v(vGT+i)}, {v(vGT+8+i)}")
    for i in range(16):
        A(f"v_lshlrev_b32 {v(vBIAS+2*i)}, 16, {v(vGT+16+i)}")
        A(f"v_and_b32 {v(vBIAS+2*i+1)}, 0xffff0000, {v(vGT+16+i)}")
    for dpp in ("quad_perm:[1,0,3,2]", "quad_perm:[2,3,0,1]", "row_half_mirror", "row_mirror"):
        A("s_nop 1")
        A(f"v_add_f32_dpp {v(gz)}, {v(gz)}, {v(gz)} {dpp} row_mask:0xf bank_mask:0xf")
    A(f"v_mov_b32 {v(gz+1)}, {v(gz)}\ns_nop 1\nv_permlane16_swap_b32 {v(gz)}, {v(gz+1)}\ns_nop 1")
    A(f"v_add_f32 {v(gz)}, {v(gz)}, {v(gz+1)}")
    A(f"v_mul_f32 {v(gz)}, 0xbfb8aa3b, {v(gz)}")
    A(f"v_exp_f32 {v(gz)}, {v(gz)}\ns_nop 0")
    A(f"v_add_f32 {v(gz)}, 1.0, {v(gz)}")
    A(f"v_rcp_f32 {v(gz)}, {v(gz)}")
    A(f"v_lshrrev_b32 {v(gz+1)}, 5, {v(vL)}")
    A(f"v_lshlrev_b32 {v(gz+1)}, 2, {v(gz+1)}")
    A(f"s_lshl_b32 s{S_T}, s{S_GT}, 2\ns_add_u32 s{S_T}, s{S_T}, {WS_G}")
    A("s_mov_b32 exec_lo, 1\ns_mov_b32 exec_hi, 1")
    A.vmem(f"buffer_store_dword {v(gz)}, {v(gz+1)}, s[{WS}:{WS+3}], s{S_T} offen sc1")
    A("s_mov_b64 exec, -1")
    ST("pro done")

    rdt = {}
    def barrier(u):
        A.wait_ds_all()
        A("s_barrier")
        ST(f"b{u}")
    class Frag:
        def __init__(self, unit, reads, mf): self.unit = unit; self.reads = reads; self.mf = mf
    def run_frags(frags, pre_done, LA, hooks={}):
        n = len(frags); issued = 0; tk = [None]*n
        state = run_frags.seq
        def issue(i):
            f = frags[i]
            if f.unit not in pre_done:
                barrier(f.unit); pre_done.add(f.unit)
            tk[i] = f.reads(WR + 4*((state + i) % NWR))
        for i in range(n):
            while issued < min(n, i + LA + 1):
                issue(issued); issued += 1
            A.wait_ds(tk[i])
            frags[i].mf(WR + 4*((state + i) % NWR))
            if i in hooks: hooks[i]()
        run_frags.seq = (state + n) % NWR
    run_frags.seq = 0
    done = set()
    def trr(dst, va, off): return A.dsop(f"ds_read_b64_tr_b16 {v(dst,2)}, {v(va)} offset:{off}")
    fr = []
    for ks in range(14):
        c, s2 = ks // 2, ks % 2
        for b in range(8):
            def reads(r, ks=ks, c=c, s2=s2, b=b):
                if b == 0:
                    for tb in range(2):
                        A.dsop(f"ds_read_b128 {v(ax(ks,tb),4)}, {v(vXA+s2)} offset:{(page[('X',c)]-4)*PAGE + tb*2048}")
                for hf in range(2): t = trr(r + 2*hf, vHA + b, page[("H", c)]*PAGE + (32*s2 + 16*hf)*256)
                return t
            def mf(r, ks=ks, b=b):
                for tb in range(2):
                    d = v(ach(tb, b), 4)
                    A(f"v_mfma_f32_16x16x32_bf16 {d}, {v(r,4)}, {v(ax(ks,tb),4)}, {d if ks else v(vBIAS+4*b,4)}")
            fr.append(Frag(("A", c), reads, mf))
    run_frags(fr, done, NWR - 2, hooks={40: lambda: nonce_load(A, last)})
    ST("A done")
    A.nop(4)
    for tb in range(2):
        for b in range(8):
            r = ach(tb, b)
            for i in range(4): A(f"v_max_f32 {v(r+i)}, 0, {v(r+i)}")
            A(f"v_pk_mul_f32 {v(r,2)}, {v(r,2)}, {v(r,2)}")
            A(f"v_pk_mul_f32 {v(r+2,2)}, {v(r+2,2)}, {v(r+2,2)}")
            dst = ach(tb, b & ~1) + 2 * (b & 1)
            A(f"v_cvt_pk_bf16_f32 {v(dst)}, {v(r)}, {v(r+1)}")
            A(f"v_cvt_pk_bf16_f32 {v(dst+1)}, {v(r+2)}, {v(r+3)}")
            if b & 1:
                p = b // 2
                va = vFR0 if p == 0 else (vFR3 if p == 3 else vFR)
                last["HS"] = A.vmem(f"buffer_store_dwordx4 {v(ach(tb,b-1),4)}, {v(va)}, s[{WS}:{WS+3}], s{S_HS+tb} offen offset:{1024*p} sc1")
    ST("H epi done")
    nonce_check(A, last, "C")
    fr = []
    for ks in range(14):
        c, s2 = ks // 2, ks % 2; pg = page[("Q", c)]; z = pg // 4; rel = (pg % 4) * PAGE
        hold = {}
        for f in range(8):
            def reads(r, ks=ks, s2=s2, f=f, z=z, rel=rel, hold=hold):
                if f == 6:
                    hold["x"] = r
                    return A.dsop(f"ds_read_b128 {v(r,4)}, {v(vXH+2*z+s2)} offset:{rel + 12288}")
                va = vQA + 3*z + (2 if f == 7 else (f & 1)); ro = 4096 if f == 7 else 4096*(f//2)
                for hf in range(2): t = trr(r + 2*hf, va, rel + ro + (32*s2 + 16*hf)*64)
                return t
            def mf(r, ks=ks, f=f, hold=hold):
                if f == 6: return
                if f == 7:
                    d = v(ACC_HL, 4)
                    A(f"v_mfma_f32_16x16x32_bf16 {d}, {v(r,4)}, {v(hold['x'],4)}, {d if ks else '0'}")
                    return
                for tb in range(2):
                    d = v(acq(tb, f), 4); cc = d if ks else "0"
                    wf, xf = v(r, 4), v(ax(ks, tb), 4)
                    A(f"v_mfma_f32_16x16x32_bf16 {d}, {xf}, {wf}, {cc}" if f >= 4 else f"v_mfma_f32_16x16x32_bf16 {d}, {wf}, {xf}, {cc}")
            fr.append(Frag(("Q", c), reads, mf))
    def pubH():
        A.wait_vm(last["HS"]); publish(A, S_FLP, 0); ST("H pub")
    PUBH = OPT.get("pubH", 20)
    run_frags(fr, done, NWR - 3, hooks={PUBH: pubH})
    ST("B done")
    XCH = page[("XC", 0)] * PAGE
    E = XR
    KP, QP, VP, HLP, vXCA = E, E + 12, E + 20, E + 32, E + 34
    SP, SC = E + 40, E + 44
    tA, tB, tC, tD = E + 48, E + 49, E + 50, E + 51
    PPp, OO, OP = E + 52, E + 56, E + 64
    vG3, vSEL = E + 72, E + 73
    u0, u1, u2 = E + 80, E + 81, E + 82
    A(f"v_lshrrev_b32 {v(u0)}, 4, {v(vL)}")
    A(f"v_cmp_eq_u32 vcc, 3, {v(u0)}")
    A(f"v_mov_b32 {v(u0)}, 0x0c0c0100\nv_mov_b32 {v(u1)}, 0x01000c0c\nv_mov_b32 {v(u2)}, 0x0c0c0c0c")
    A(f"v_cndmask_b32 {v(vG3)}, -1, 0, vcc")
    A(f"v_cndmask_b32 {v(u0)}, {v(u0)}, {v(u1)}, s[{MP}:{MP+1}]")
    A(f"v_cndmask_b32 {v(vSEL+0)}, {v(u0)}, {v(u2)}, s[{MA}:{MA+1}]")
    A(f"v_cndmask_b32 {v(vSEL+2)}, {v(u2)}, {v(u0)}, s[{MA}:{MA+1}]")
    A(f"v_mov_b32 {v(u0)}, 0x0c0c0302\nv_mov_b32 {v(u1)}, 0x03020c0c")
    A(f"v_cndmask_b32 {v(u0)}, {v(u0)}, {v(u1)}, s[{MP}:{MP+1}]")
    A(f"v_cndmask_b32 {v(vSEL+1)}, {v(u0)}, {v(u2)}, s[{MB}:{MB+1}]")
    A(f"v_cndmask_b32 {v(vSEL+3)}, {v(u2)}, {v(u0)}, s[{MB}:{MB+1}]")
    def pk(dst, src):
        A(f"v_cvt_pk_bf16_f32 {v(dst)}, {v(src)}, {v(src+1)}")
        A(f"v_cvt_pk_bf16_f32 {v(dst+1)}, {v(src+2)}, {v(src+3)}")
    for tb in (1, 0):
        pk(KP + 4 + 4*tb, acq(tb, 2)); pk(KP + 6 + 4*tb, acq(tb, 3))
        pk(VP + 2 + 2*tb, acq(tb, 4)); pk(VP + 8 + 2*tb, acq(tb, 5))
    pk(HLP, ACC_HL)
    A(f"s_lshl_b32 s{S_T}, s{S_W}, 11\ns_add_u32 s{S_T}, s{S_T}, {XCH}")
    A(f"v_add_u32 {v(vXCA)}, s{S_T}, {v(vFR)}")
    A(f"v_add_u32 {v(vXCA+1)}, s{S_T}, {v(vL8)}")
    A.dsop(f"ds_write_b128 {v(vXCA)}, {v(KP+8,4)} offset:2048")
    A.dsop(f"ds_write_b64 {v(vXCA+1)}, {v(VP+4,2)} offset:{2048+1024}")
    A.dsop(f"ds_write_b64 {v(vXCA+1)}, {v(VP+10,2)} offset:{2048+1536}")
    A(f"s_cmp_ge_u32 s{S_W}, 2\ns_cbranch_scc1 {kname}_hv")
    A(f"s_lshl_b32 s{S_T}, s{S_W}, 3\ns_add_u32 s{S_T}, s{S_T}, {XCH}")
    A(f"v_add_u32 {v(vXCA+2)}, s{S_T}, {v(vFR)}")
    A(f"ds_write_b64 {v(vXCA+2)}, {v(HLP,2)}")
    A(f"s_branch {kname}_hd")
    A.label(f"{kname}_hv")
    A(f"s_and_b32 s{S_T}, s{S_W}, 1\ns_lshl_b32 s{S_T}, s{S_T}, 9\ns_add_u32 s{S_T}, s{S_T}, {XCH+1024}")
    A(f"v_bfe_u32 {v(vXCA+2)}, {v(vL)}, 2, 2")
    A(f"v_lshlrev_b32 {v(vXCA+2)}, 7, {v(vXCA+2)}")
    A(f"v_lshrrev_b32 {v(vXCA+3)}, 4, {v(vL)}")
    A(f"v_lshl_add_u32 {v(vXCA+2)}, {v(vXCA+3)}, 5, {v(vXCA+2)}")
    A(f"v_and_b32 {v(vXCA+3)}, 3, {v(vL)}")
    A(f"v_lshl_add_u32 {v(vXCA+2)}, {v(vXCA+3)}, 1, {v(vXCA+2)}")
    A(f"v_add_u32 {v(vXCA+2)}, s{S_T}, {v(vXCA+2)}")
    A(f"ds_write_b16 {v(vXCA+2)}, {v(HLP)}")
    A(f"ds_write_b16_d16_hi {v(vXCA+2)}, {v(HLP)} offset:8")
    A(f"ds_write_b16 {v(vXCA+2)}, {v(HLP+1)} offset:16")
    A(f"ds_write_b16_d16_hi {v(vXCA+2)}, {v(HLP+1)} offset:24")
    A.label(f"{kname}_hd")
    for tb in (1, 0):
        pk(QP + 4*tb, acq(tb, 0)); pk(QP + 2 + 4*tb, acq(tb, 1))
        A(f"v_and_b32 {v(QP+2+4*tb)}, {v(vG3)}, {v(QP+2+4*tb)}")
        A(f"v_and_b32 {v(QP+3+4*tb)}, {v(vG3)}, {v(QP+3+4*tb)}")
    barrier(("XC", 0))
    A.dsop(f"ds_read_b128 {v(KP,4)}, {v(vXCA)}")
    A.dsop(f"ds_read_b64 {v(VP,2)}, {v(vXCA+1)} offset:1024")
    tkx = A.dsop(f"ds_read_b64 {v(VP+6,2)}, {v(vXCA+1)} offset:1536")
    A(f"s_add_u32 s{S_T2}, s{S_OS}, 73728")
    CSC = "0x3e8b97f6"
    def attention(tb):
        kprev, kcur, q = KP + 4*tb, KP + 4 + 4*tb, QP + 4*tb
        op = OP + 4*tb
        A(f"v_mfma_f32_16x16x32_bf16 {v(SP,4)}, {v(kprev,4)}, {v(q,4)}, 0")
        A(f"v_mfma_f32_16x16x32_bf16 {v(SC,4)}, {v(kcur,4)}, {v(q,4)}, 0")
        A.nop(8)
        A(f"v_cndmask_b32 {v(tA)}, {v(SP)}, {v(SP+1)}, s[{MP}:{MP+1}]")
        A(f"v_cndmask_b32 {v(tB)}, {v(SP+2)}, {v(SP+3)}, s[{MP}:{MP+1}]")
        if tb == 0:
            A(f"v_mov_b32 {v(tC)}, 0xf149f2ca")
            A(f"v_cndmask_b32 {v(tA)}, {v(tA)}, {v(tC)}, s[{MFIRST}:{MFIRST+1}]")
            A(f"v_cndmask_b32 {v(tB)}, {v(tB)}, {v(tC)}, s[{MFIRST}:{MFIRST+1}]")
        A(f"v_cndmask_b32 {v(tC)}, {v(SC)}, {v(SC+1)}, s[{MP}:{MP+1}]")
        A(f"v_cndmask_b32 {v(tD)}, {v(SC+2)}, {v(SC+3)}, s[{MP}:{MP+1}]")
        A(f"v_cndmask_b32 {v(tA)}, {v(tA)}, {v(tC)}, s[{MA}:{MA+1}]")
        A(f"v_cndmask_b32 {v(tB)}, {v(tB)}, {v(tD)}, s[{MB}:{MB+1}]")
        A(f"v_max_f32 {v(tC)}, {v(tA)}, {v(tB)}")
        for sw in ("v_permlane16_swap_b32", "v_permlane32_swap_b32"):
            A(f"v_mov_b32 {v(tD)}, {v(tC)}\ns_nop 1\n{sw} {v(tC)}, {v(tD)}\ns_nop 1\nv_max_f32 {v(tC)}, {v(tC)}, {v(tD)}")
        A(f"v_sub_f32 {v(tA)}, {v(tA)}, {v(tC)}\nv_sub_f32 {v(tB)}, {v(tB)}, {v(tC)}")
        A(f"v_mul_f32 {v(tA)}, {CSC}, {v(tA)}\nv_mul_f32 {v(tB)}, {CSC}, {v(tB)}")
        A(f"v_exp_f32 {v(tA)}, {v(tA)}\nv_exp_f32 {v(tB)}, {v(tB)}\ns_nop 0")
        A(f"v_add_f32 {v(tC)}, {v(tA)}, {v(tB)}")
        for sw in ("v_permlane16_swap_b32", "v_permlane32_swap_b32"):
            A(f"v_mov_b32 {v(tD)}, {v(tC)}\ns_nop 1\n{sw} {v(tC)}, {v(tD)}\ns_nop 1\nv_add_f32 {v(tC)}, {v(tC)}, {v(tD)}")
        A(f"v_rcp_f32 {v(tC)}, {v(tC)}\ns_nop 0")
        A(f"v_mul_f32 {v(tA)}, {v(tA)}, {v(tC)}\nv_mul_f32 {v(tB)}, {v(tB)}, {v(tC)}")
        A(f"v_cvt_pk_bf16_f32 {v(tA)}, {v(tA)}, {v(tB)}")
        for i in range(4): A(f"v_perm_b32 {v(PPp+i)}, {v(tA)}, {v(tA)}, {v(vSEL+i)}")
        A("s_nop 1")
        A(f"v_mfma_f32_16x16x32_bf16 {v(OO,4)}, {v(VP+2*tb,4)}, {v(PPp,4)}, 0")
        A(f"v_mfma_f32_16x16x32_bf16 {v(OO+4,4)}, {v(VP+6+2*tb,4)}, {v(PPp,4)}, 0")
        A.nop(8)
        pk(op, OO); pk(op + 2, OO + 4)
        A(f"v_and_b32 {v(op+2)}, {v(vG3)}, {v(op+2)}")
        A(f"v_and_b32 {v(op+3)}, {v(vG3)}, {v(op+3)}")
        last["OS"] = A.vmem(f"buffer_store_dwordx4 {v(op,4)}, {v(vFR)}, s[{WS}:{WS+3}], s{S_OS if tb == 0 else S_T2} offen sc1")
    attention(1)
    A.wait_ds(tkx)
    attention(0)
    ST("attn done")
    A(f"s_cmp_lt_u32 s{S_CT}, 7\ns_cbranch_scc1 {kname}_p2")
    A("s_waitcnt vmcnt(0)")
    sv = (A.vm, A.vm_done)
    publish(A, S_FLP, 8192)
    A.vm, A.vm_done = sv
    A(f"s_branch {kname}_cfin")
    A.label(f"{kname}_p2")
    vPA, vFA = 16, 22
    vG, vB2, vB2R = 28, 32, 40
    AB, AA = ACC, ACC + 16
    FR2 = XR + 84
    A(f"v_lshrrev_b32 {v(t0)}, 2, {v(vL)}")
    A(f"v_bfe_u32 {v(t1)}, {v(vL)}, 3, 2")
    A(f"s_and_b32 s{S_T}, s{S_W}, 1\ns_lshl_b32 s{S_T}, s{S_T}, 1")
    A(f"v_xor_b32 {v(t1)}, s{S_T}, {v(t1)}")
    A(f"v_lshlrev_b32 {v(t0)}, 7, {v(t0)}")
    A(f"v_lshl_add_u32 {v(t0)}, {v(t1)}, 5, {v(t0)}")
    A(f"v_and_b32 {v(t1)}, 3, {v(vL)}")
    A(f"v_lshl_add_u32 {v(vPA)}, {v(t1)}, 3, {v(t0)}")
    A(f"v_xor_b32 {v(vPA+1)}, 32, {v(vPA)}")
    A(f"s_lshr_b32 s{S_T}, s{S_W}, 1\ns_lshl_b32 s{S_T}, s{S_T}, 11")
    A(f"v_add_u32 {v(vFA)}, s{S_T}, {v(vFR)}")
    for z in (1, 2):
        for i in range(2): A(f"v_add_u32 {v(vPA+2*z+i)}, {z*65536}, {v(vPA+i)}")
        A(f"v_add_u32 {v(vFA+z)}, {z*65536}, {v(vFA)}")
    NR2 = 20; R2 = XR
    seq = [0]
    tk2 = {}
    def p2_reads(ks):
        n, q = ks // 4, ks % 4
        if ("P", n) not in done:
            barrier(("P", n)); done.add(("P", n))
            if n == 0: small_loads()
            if n == OPT.get("pubO", 2):
                A.wait_vm(last["OS"]); publish(A, S_FLP, 8192); ST("O pub")
        base = R2 + 16 * (ks % 5)
        pf, pw = page[("F", n)], page[("W", n)]
        for j in range(2):
            A.dsop(f"ds_read_b128 {v(base+4*j,4)}, {v(vFA+pf//4)} offset:{(pf%4)*PAGE + q*4096 + j*1024}")
        for t in range(2):
            for hf in range(2):
                tk2[ks] = trr(base + 8 + 4*t + 2*hf, vPA + 2*(pw//4) + t, (pw%4)*PAGE + q*4096 + hf*2048)
    def small_loads():
        A(f"v_and_b32 {v(t0)}, 15, {v(vL)}")
        A(f"v_lshlrev_b32 {v(t0)}, 2, {v(t0)}")
        A(f"s_lshl_b32 s{S_T}, s{S_TT}, 8\ns_lshr_b32 s{S_T2}, s{S_W}, 1\ns_lshl_b32 s{S_T2}, s{S_T2}, 7\ns_add_u32 s{S_T}, s{S_T}, s{S_T2}\ns_add_u32 s{S_T}, s{S_T}, {WS_G}")
        for j in range(2):
            A.vmem(f"buffer_load_dword {v(vG+j)}, {v(t0)}, s[{WS}:{WS+3}], s{S_T} offen offset:{64*j} sc1")
        A(f"v_lshrrev_b32 {v(t1)}, 4, {v(vL)}")
        A(f"v_lshlrev_b32 {v(t1)}, 3, {v(t1)}")
        A(f"s_and_b32 s{S_T}, s{S_W}, 1\ns_lshl_b32 s{S_T}, s{S_T}, 6\ns_add_u32 s{S_T}, s{S_T}, s{S_CO}")
        A.vmem(f"buffer_load_dwordx2 {v(vB2R,2)}, {v(t1)}, s[{B2}:{B2+3}], s{S_T} offen")
        last["SM"] = A.vmem(f"buffer_load_dwordx2 {v(vB2R+2,2)}, {v(t1)}, s[{B2}:{B2+3}], s{S_T} offen offset:32")
    LA2 = 3
    issued = 0
    for ks in range(72):
        while issued < min(72, ks + LA2 + 1):
            p2_reads(issued); issued += 1
        A.wait_ds(tk2[ks])
        base = R2 + 16 * (ks % 5)
        AC = AB if ks < 56 else AA
        for t in range(2):
            for j in range(2):
                d = v(AC + 8*j + 4*t, 4)
                A(f"v_mfma_f32_16x16x32_bf16 {d}, {v(base+8+4*t,4)}, {v(base+4*j,4)}, {'0' if ks in (0, 56) else d}")
        if ks == 60:
            A.wait_vm(last["SM"])
            for j in range(2): A(f"v_sub_f32 {v(vG+2+j)}, 1.0, {v(vG+j)}")
            for k in range(4):
                A(f"v_lshlrev_b32 {v(vB2+2*k)}, 16, {v(vB2R+k)}")
                A(f"v_and_b32 {v(vB2+2*k+1)}, 0xffff0000, {v(vB2R+k)}")
            for j in range(2):
                for r in range(8):
                    A(f"v_add_f32 {v(AB+8*j+r)}, {v(AB+8*j+r)}, {v(vB2+r)}")
                    A(f"v_mul_f32 {v(AB+8*j+r)}, {v(AB+8*j+r)}, {v(vG+2+j)}")
            A(f"v_and_b32 {v(t0)}, 15, {v(vL)}")
            A(f"v_mul_u32_u24 {v(t0)}, 896, {v(t0)}")
            A(f"v_bfe_u32 {v(t1)}, {v(vL)}, 4, 1")
            A(f"v_lshl_add_u32 {v(t0)}, {v(t1)}, 5, {v(t0)}")
            A(f"v_lshrrev_b32 {v(t1)}, 5, {v(vL)}")
            A(f"v_lshl_add_u32 {v(t0)}, {v(t1)}, 4, {v(t0)}")
            A(f"""s_lshl_b32 s{S_T}, s{S_TT}, 6
s_lshr_b32 s{S_T2}, s{S_W}, 1
s_lshl_b32 s{S_T2}, s{S_T2}, 5
s_add_u32 s{S_T}, s{S_T}, s{S_T2}
s_mul_i32 s{S_OS}, s{S_T}, 896
s_add_u32 s{S_OS}, s{S_OS}, s{S_CO}
s_and_b32 s{S_T}, s{S_W}, 1
s_lshl_b32 s{S_T}, s{S_T}, 6
s_add_u32 s{S_OS}, s{S_OS}, s{S_T}
s_add_u32 s{S_GT}, s{S_OS}, {16*896}""")
    ST("p2 done")
    A.nop(8)
    OB = WR
    for j in range(2):
        for r in range(8): A(f"v_fmac_f32 {v(AB+8*j+r)}, {v(AA+8*j+r)}, {v(vG+j)}")
        for k in range(4): A(f"v_cvt_pk_bf16_f32 {v(OB+4*j+k)}, {v(AB+8*j+2*k)}, {v(AB+8*j+2*k+1)}")
        A("s_nop 1")
        A(f"v_permlane16_swap_b32 {v(OB+4*j)}, {v(OB+4*j+2)}")
        A(f"v_permlane16_swap_b32 {v(OB+4*j+1)}, {v(OB+4*j+3)}")
        A("s_nop 1")
        A(f"buffer_store_dwordx4 {v(OB+4*j,4)}, {v(t0)}, s[{OUT}:{OUT+3}], s{S_OS if j == 0 else S_GT} offen")
    ST("end")
    A.label(f"{kname}_cfin")
    ST.dump(WS, S_W8, vL, vT)
    A("s_endpgm")

    A = L; ST = Stamper(L, vST, "L"); last = {}
    A.label(f"{kname}_L")
    S_XO, S_HO, S_QO, S_XH, S_M4, S_M1, S_MXH, S_FLC, S_FO, S_WOB, S_W2B, S_RF = 48, 49, 50, 51, 52, 53, 54, 55, 56, 57, 58, 59
    SW = 88
    vXD, vXHD, vHD0, vHD1, vQD, vW2D, vRS, vRD, vFD = 16, 17, 18, 19, 20, 21, 22, 23, 24
    vD = 28
    ST("start")
    A(f"v_mul_u32_u24 {v(t1)}, 896, {v(r8)}")
    A(f"v_xor_b32 {v(t0)}, {v(l7)}, {v(r8)}")
    A(f"v_lshl_add_u32 {v(vXD)}, {v(t0)}, 4, {v(t1)}")
    A(f"s_and_b32 s{S_T}, s{S_W}, 1\ns_lshl_b32 s{S_T}, s{S_T}, 6")
    A(f"v_xor_b32 {v(vXHD)}, s{S_T}, {v(vXD)}")
    A(f"v_lshlrev_b32 {v(t0)}, 1, {v(g)}")
    A(f"v_xor_b32 {v(t0)}, {v(t0)}, {v(l7)}")
    A(f"v_lshl_add_u32 {v(vW2D)}, {v(t0)}, 4, {v(t1)}")
    A(f"v_mul_u32_u24 {v(t1)}, 3584, {v(g)}")
    A(f"v_lshlrev_b32 {v(t0)}, 1, {v(g)}")
    A(f"v_xor_b32 {v(t0)}, {v(t0)}, {v(c16)}")
    A(f"v_lshl_add_u32 {v(vHD0)}, {v(t0)}, 4, {v(t1)}")
    A(f"v_xor_b32 {v(vHD1)}, 0x80, {v(vHD0)}")
    QROW = 64 if REPACK else 2688
    A(f"v_and_b32 {v(t0)}, 3, {v(r16)}")
    A(f"v_lshl_add_u32 {v(t0)}, {v(g)}, 3, {v(t0)}")
    A(f"v_mul_u32_u24 {v(vQD)}, {QROW}, {v(t0)}")
    A(f"v_and_b32 {v(t0)}, 1, {v(g)}")
    A(f"v_lshlrev_b32 {v(t1)}, 1, {v(t0)}")
    A(f"v_xor_b32 {v(t1)}, {v(t1)}, {v(l3)}")
    A(f"v_lshl_add_u32 {v(vQD)}, {v(t1)}, 4, {v(vQD)}")
    if REPACK:
        A(f"v_bfe_u32 {v(t0)}, {v(vL)}, 2, 1")
        A(f"v_mul_u32_u24 {v(vRS)}, 2688, {v(t0)}")
        A(f"v_mul_u32_u24 {v(t1)}, 56, {v(r8)}")
        A(f"v_add_u32 {v(vRS)}, {v(vRS)}, {v(t1)}")
        A(f"v_lshl_add_u32 {v(vRS)}, {v(l3)}, 4, {v(vRS)}")
        A(f"v_mul_u32_u24 {v(vRD)}, {3*448*64}, {v(r8)}")
        A(f"v_lshl_add_u32 {v(vRD)}, {v(l7)}, 4, {v(vRD)}")
        A(f"s_cmp_ge_u32 s2, 224\ns_cselect_b32 s{S_T}, 0x40000000, 0\ns_cmp_eq_u32 s{S_W}, 3\ns_cselect_b32 s{S_T}, 0x40000000, s{S_T}")
        A(f"v_or_b32 {v(vRS)}, s{S_T}, {v(vRS)}")
        A(f"v_or_b32 {v(vRD)}, s{S_T}, {v(vRD)}")
    A(f"s_cmp_ge_u32 s{S_CT}, 7\ns_cselect_b32 s{S_T}, 0x40000000, 0")
    A(f"v_or_b32 {v(vFD)}, s{S_T}, {v(vFR)}")
    A(f"s_getpc_b64 s[{SW}:{SW+1}]")
    A.label(f"{kname}_pc")
    A(f"s_sub_u32 s{SW}, s{SW}, {kname}_pc-{kname}\ns_subb_u32 s{SW+1}, s{SW+1}, 0")
    A(f"s_lshr_b32 s{S_T}, s2, 3\ns_and_b32 s{S_T}, s{S_T}, 7\ns_lshl_b32 s{S_T}, s{S_T}, 2\ns_add_u32 s{S_T}, s{S_T}, s{S_W}\ns_lshl_b32 s{S_T}, s{S_T}, 10")
    A(f"v_add_u32 {v(t0)}, s{S_T}, {v(vFR)}")
    A(f"v_min_u32 {v(t0)}, {kname}_end-{kname}-16, {v(t0)}")
    A.vmem(f"global_load_dwordx4 {v(vD,4)}, {v(t0)}, s[{SW}:{SW+1}]")
    A("s_waitcnt lgkmcnt(0)")
    srd(A, X, KA, 2048 * 896)
    srd(A, W1, KA+8, 448 * 3584)
    srd(A, QKV, KA+2, 448 * 2688)
    srd(A, WO, KA+4, 448 * 896)
    srd(A, W2, KA+12, 1792 * 896)
    srd(A, WS, KA+22, WS_BYTES)
    A(f"s_or_b32 s{S_T}, s2, s{S_W}\ns_cmp_lg_u32 s{S_T}, 0\ns_cbranch_scc1 {kname}_nn")
    A(f"s_memrealtime s[{NON}:{NON+1}]\ns_waitcnt lgkmcnt(0)\ns_or_b32 s{NON}, s{NON}, 1")
    A(f"v_mov_b32 {v(vN)}, s{NON}\nv_mov_b32 {v(vN+1)}, s{NON+1}")
    A("s_mov_b64 exec, 1")
    A(f"global_store_dwordx2 {v(vZ)}, {v(vN,2)}, s[{DBG}:{DBG+1}] sc1")
    A("s_mov_b64 exec, -1")
    A.label(f"{kname}_nn")
    SWEEP = OPT.get("sweep", 1)
    A(f"s_lshl_b32 s{S_FO}, s2, 2\ns_add_u32 s{S_FO}, s{S_FO}, s{S_W}")
    if SWEEP:
        A(f"s_mul_i32 s{S_T}, s{S_FO}, 1792")
        A.vmem(f"buffer_load_dwordx4 {v(vD,4)}, {v(vFR)}, s[{X}:{X+3}], s{S_T} offen")
        A("s_mov_b32 exec_hi, 0xffff")
        A.vmem(f"buffer_load_dwordx4 {v(vD,4)}, {v(vFR)}, s[{X}:{X+3}], s{S_T} offen offset:1024")
        A("s_mov_b32 exec_hi, -1")
        A(f"s_mul_i32 s{S_T}, s{S_FO}, 1664")
        A.vmem(f"buffer_load_dwordx4 {v(vD,4)}, {v(vFR)}, s[{W1}:{W1+3}], s{S_T} offen")
        A("s_mov_b32 exec_hi, 0xff")
        A.vmem(f"buffer_load_dwordx4 {v(vD,4)}, {v(vFR)}, s[{W1}:{W1+3}], s{S_T} offen offset:1024")
        A("s_mov_b32 exec_hi, -1")
    if REPACK:
        A(f"s_mul_i32 s{S_T}, s2, {2*2688}\ns_mul_i32 s{S_T2}, s{S_W}, 896\ns_add_u32 s{S_T}, s{S_T}, s{S_T2}")
        A.vmem(f"buffer_load_dwordx4 {v(vD+4,4)}, {v(vRS)}, s[{QKV}:{QKV+3}], s{S_T} offen")
        last["RL"] = A.vmem(f"buffer_load_dwordx4 {v(vD+8,4)}, {v(vRS)}, s[{QKV}:{QKV+3}], s{S_T} offen offset:448")
    elif SWEEP:
        A(f"s_mul_i32 s{S_T}, s{S_FO}, 1280")
        A.vmem(f"buffer_load_dwordx4 {v(vD,4)}, {v(vFR)}, s[{QKV}:{QKV+3}], s{S_T} offen")
        A("s_mov_b64 exec, 0xffff")
        A.vmem(f"buffer_load_dwordx4 {v(vD,4)}, {v(vFR)}, s[{QKV}:{QKV+3}], s{S_T} offen offset:1024")
        A("s_mov_b64 exec, -1")
    def sweep2():
        A(f"s_mul_i32 s{S_T}, s{S_FO}, 1664")
        A.vmem(f"buffer_load_dwordx4 {v(vD,4)}, {v(vFR)}, s[{W2}:{W2+3}], s{S_T} offen")
        A("s_mov_b32 exec_hi, 0xff")
        A.vmem(f"buffer_load_dwordx4 {v(vD,4)}, {v(vFR)}, s[{W2}:{W2+3}], s{S_T} offen offset:1024")
        A(f"s_mov_b32 exec_hi, 0\ns_lshl_b32 s{S_T}, s{S_FO}, 9")
        A.vmem(f"buffer_load_dwordx4 {v(vD,4)}, {v(vFR)}, s[{WO}:{WO+3}], s{S_T} offen")
        A("s_mov_b32 exec_hi, -1")
    if SWEEP == 1: sweep2()
    A(f"""s_lshr_b32 s{S_T}, s{S_W}, 1
s_lshl_b32 s{S_T}, s{S_T}, 5
s_and_b32 s{S_T2}, s{S_W}, 1
s_lshl_b32 s{S_T2}, s{S_T2}, 2
s_add_u32 s{S_T}, s{S_T}, s{S_T2}
s_mul_i32 s{S_HO}, s{S_T}, 3584
s_add_u32 s{S_HO}, s{S_HO}, s{S_HW}
s_mul_i32 s{S_QO}, s{S_T}, {QROW}
s_mul_i32 s{S_T2}, s{S_HC}, {3*448*64 if REPACK else 56}
s_add_u32 s{S_QO}, s{S_QO}, s{S_T2}
s_lshl_b32 s{S_T}, s{S_RB}, 7
s_lshl_b32 s{S_T2}, s{S_W}, 5
s_add_u32 s{S_T2}, s{S_T}, s{S_T2}
s_mul_i32 s{S_XO}, s{S_T2}, 896
s_sub_i32 s{S_T}, s{S_T}, 16
s_max_i32 s{S_T}, s{S_T}, 0
s_lshl_b32 s{S_T2}, s{S_W}, 2
s_add_u32 s{S_T}, s{S_T}, s{S_T2}
s_mul_i32 s{S_XH}, s{S_T}, 896
s_lshl_b32 s{S_M4}, s{S_W}, 12
s_lshl_b32 s{S_M1}, s{S_W}, 10
s_lshl_b32 s{S_MXH}, s{S_W}, 9""")
    def dma(m0reg, m0off, sreg, soff, va, sr, flags=""):
        A(f"s_add_u32 m0, s{m0reg}, {m0off}")
        A(f"s_add_u32 s{S_T}, s{sreg}, {soff}")
        return A.vmem(f"buffer_load_dwordx4 {v(va)}, s[{sr}:{sr+3}], s{S_T} offen {flags} lds")
    def load(lu):
        k, c = lu; pb = page[lu] * PAGE
        if k == "H":
            for gi in range(4): t = dma(S_M4, pb + gi*1024, S_HO, (64*c + 8*gi)*3584, vHD1 if gi & 1 else vHD0, W1)
        elif k == "X":
            for q in range(4): t = dma(S_M4, pb + q*1024, S_XO, q*8*896 + 128*c, vXD, X)
        elif k == "Q":
            for p in range(3):
                if REPACK: dma(S_M1, pb + p*4096, S_QO, WS_QR + c*4096 + p*448*64, vQD, WS, "sc1")
                else: dma(S_M1, pb + p*4096, S_QO, c*172032 + 896*p, vQD, QKV)
            A(f"s_mov_b64 exec, s[{M32}:{M32+1}]")
            t = dma(S_MXH, pb + 12288, S_XH, 128*c, vXHD, X)
            A("s_mov_b64 exec, -1")
        elif k == "W":
            for q in range(4):
                if c < 14: t = dma(S_M4, pb + q*1024, S_W2B, (128*c + 8*q)*896, vW2D, W2)
                else: t = dma(S_M4, pb + q*1024, S_WOB, (112*(c-14) + 8*q)*896, vW2D, WO)
        elif k == "F":
            for j in range(4): t = dma(S_M4, pb + j*1024, S_FO, j*73728 + c*4096, vFD, WS, "sc1")
        last[lu] = t
    def poll(tag, sreg, off, nlanes_mask, wide=False):
        A(f"s_add_u32 s{S_T}, s{sreg}, {off}")
        A(f"s_mov_b32 s{S_T2}, 0")
        if not wide: A(f"s_mov_b64 exec, s[{M32}:{M32+1}]")
        A.label(f"{kname}_pl{tag}")
        if wide:
            A(f"buffer_load_dwordx4 {v(vD+12,4)}, {v(vFR)}, s[{WS}:{WS+3}], s{S_T} offen sc1")
            A(f"buffer_load_dwordx4 {v(vD+16,4)}, {v(vFR)}, s[{WS}:{WS+3}], s{S_T} offen offset:768 sc1")
            A("s_waitcnt vmcnt(0)")
            A(f"v_cmp_ne_u64 vcc, s[{NON}:{NON+1}], {v(vD+12,2)}")
            for i in range(1, 4):
                A(f"v_cmp_ne_u64 s[{SW}:{SW+1}], s[{NON}:{NON+1}], {v(vD+12+2*i,2)}")
                A(f"s_or_b64 vcc, vcc, s[{SW}:{SW+1}]")
            A(f"s_cmp_eq_u64 vcc, 0\ns_cbranch_scc1 {kname}_pk{tag}")
        else:
            A(f"buffer_load_dwordx2 {v(vD+12,2)}, {v(vL8)}, s[{WS}:{WS+3}], s{S_T} offen sc1")
            A("s_waitcnt vmcnt(0)")
            A(f"v_cmp_ne_u64 vcc, s[{NON}:{NON+1}], {v(vD+12,2)}")
            A(f"s_cbranch_vccz {kname}_pk{tag}")
        A(f"s_add_u32 s{S_T2}, s{S_T2}, 1\ns_cmp_le_u32 s{S_T2}, 0x40000\ns_cbranch_scc1 {kname}_pl{tag}")
        A.label(f"{kname}_pk{tag}")
        A("s_mov_b64 exec, -1")
        ST(f"poll {tag} ok")
    ST("addr done")
    load(("H", 0)); load(("X", 0)); load(("H", 1)); load(("X", 1))
    if SWEEP == 2: sweep2()
    A(f"""s_lshl_b32 s{S_T}, s{S_TT}, 8
s_add_u32 s{S_FLC}, s{S_T}, {WS_FL}
s_lshl_b32 s{S_RF}, s2, 3
s_add_u32 s{S_RF}, s{S_RF}, {WS_FL + 16384}
s_mul_i32 s{S_FO}, s{S_TT}, {4*73728}
s_add_u32 s{S_FO}, s{S_FO}, s{S_M1}
s_lshl_b32 s{S_T}, s{S_CT}, 7
s_mul_i32 s{S_WOB}, s{S_W}, {28*896}
s_add_u32 s{S_WOB}, s{S_WOB}, s{S_T}
s_mul_i32 s{S_W2B}, s{S_W}, {32*896}
s_add_u32 s{S_W2B}, s{S_W2B}, s{S_T}""")
    if REPACK:
        A.wait_vm(last["RL"])
        A(f"s_mul_i32 s{S_T}, s{S_W}, {448*64}\ns_lshl_b32 s{S_T2}, s2, 7\ns_add_u32 s{S_T}, s{S_T}, s{S_T2}\ns_add_u32 s{S_T}, s{S_T}, {WS_QR}\ns_add_u32 s{S_T2}, s{S_T}, {8*3*448*64}")
        A.vmem(f"buffer_store_dwordx4 {v(vD+4,4)}, {v(vRD)}, s[{WS}:{WS+3}], s{S_T} offen sc1")
        last["RS"] = A.vmem(f"buffer_store_dwordx4 {v(vD+8,4)}, {v(vRD)}, s[{WS}:{WS+3}], s{S_T2} offen sc1")
    nonce_load(A, last)
    load(("H", 2)); load(("X", 2))
    pend = [("H", 3), ("X", 3)] + [(k, c) for c in range(4, 7) for k in "HX"] + order
    HPOLL = UIDX[("Q", OPT.get("hpoll", 3))]
    OPOLL_BEFORE = ("F", 14)
    need = {("A", c): [("H", c), ("X", c)] for c in range(7)}
    need.update({("Q", c): [("Q", c)] for c in range(7)})
    need[("XC", 0)] = []
    need.update({("P", n): [("W", n), ("F", n)] for n in range(18)})
    rpolled = not REPACK; hpolled = False
    for k, u in enumerate(UNITS):
        while pend:
            lu = pend[0]
            if after[lu] >= k: break
            if lu[0] == "Q" and not rpolled:
                if k <= UIDX[("A", OPT.get("rpoll", 4))]: break
                poll("R", S_FLC, 0, None, wide=True) if False else None
                A(f"s_mov_b32 s{SW+2}, {WS_FL + 16384}")
                poll("R", SW + 2, 0, None, wide=True); rpolled = True
            if lu[0] in "WF" and lu == ("W", 0):
                pass
            if lu[0] == "F" and not hpolled:
                if k <= HPOLL: break
                A(f"s_cmp_ge_u32 s{S_CT}, 7\ns_cbranch_scc1 {kname}_pkH")
                poll("H", S_FLC, 0, None); hpolled = True
            if lu == OPOLL_BEFORE: poll("O", S_FLC, 8192, None)
            load(lu); pend.pop(0)
        if u == ("P", 0):
            A(f"s_cmp_ge_u32 s{S_CT}, 7\ns_cbranch_scc1 {kname}_lfin")
        for lu in need[u]: A.wait_vm(last[lu])
        if REPACK and u == ("A", 1): A.wait_vm(last["RS"])
        A("s_barrier")
        ST(f"b{u}")
        if u == ("A", 1):
            nonce_check(A, last, "L")
            if REPACK:
                A(f"s_cmp_lg_u32 s{S_W}, 0\ns_cbranch_scc1 {kname}_rp")
                A(f"s_cmp_ge_u32 s2, 224\ns_cbranch_scc1 {kname}_rp")
                sv = (A.vm, A.vm_done)
                publish(A, S_RF, 0)
                A.vm, A.vm_done = sv
                A.label(f"{kname}_rp")
            A(f"s_cmp_lt_u32 s{S_CT}, 7\ns_cselect_b32 s{WO+2}, s{WO+2}, 0\ns_cselect_b32 s{W2+2}, s{W2+2}, 0")
    assert not pend
    A.label(f"{kname}_lfin")
    ST.dump(WS, S_W8, vL, vT)
    A.label(f"{kname}_end")
    A("s_endpgm")
    return P.text() + C.text() + L.text(), page, after

def desc(kname, nv, accoff, ns=102):
    return f""".amdhsa_kernel {kname}
  .amdhsa_next_free_vgpr {nv}
  .amdhsa_next_free_sgpr {ns}
  .amdhsa_accum_offset {accoff}
  .amdhsa_group_segment_fixed_size 0
  .amdhsa_kernarg_size 96
  .amdhsa_user_sgpr_count 2
  .amdhsa_user_sgpr_kernarg_segment_ptr 1
  .amdhsa_system_sgpr_workgroup_id_x 1
.end_amdhsa_kernel
"""

if __name__ == "__main__":
    out = sys.argv[1]
    STAMPS = "--stamps" in sys.argv
    for x in sys.argv[2:]:
        if "=" in x:
            k_, v_ = x.split("="); OPT[k_] = int(v_)
    k = NAME + "_kernel"
    t = f"; @launch grid=(256,1,1) block=(512,1,1) lds=163840\n"
    t += '.amdgcn_target "amdgcn-amd-amdhsa--gfx950"\n.text\n'
    body, page, after = gen(k)
    if "--plan" in sys.argv:
        for lu in page: print(lu, "page", page[lu], "after", UNITS[after[lu]] if after.get(lu, -1) >= 0 else None)
    t += f".globl {k}\n.p2align 8\n.type {k},@function\n" + body
    t += '.section .rodata,"a"\n.p2align 6\n' + desc(k, 256, 256)
    open(out, "w").write(t)
```

```python
import sys
from asmlib import Asm, v, a, s

NAME = "gated_mix__sliding_local_dilated__dense_activation_squared_relu__prompt"
WS_G = 128 * 72 * 1024
WS_FL = WS_G + 8192
WS_QR = WS_FL + 20480
WS_ST = WS_QR + 16 * 3 * 448 * 64
WS_BYTES = WS_ST + 262144
PAGE = 16384
L_BIAS = 8 * PAGE + 14336
L_GATE = L_BIAS + 256
L_FLG = 8 * PAGE + 15872
STAMPS = False
OPT = {}

def srd(A, d, lo, nbytes):
    A(f"s_mov_b32 s{d}, s{lo}")
    A(f"s_and_b32 s{d+1}, s{lo+1}, 0xffff")
    A(f"s_mov_b32 s{d+2}, {nbytes}")
    A(f"s_mov_b32 s{d+3}, 0x20000")

class Stamper:
    def __init__(self, A, vreg, tag, pairs):
        self.A = A; self.n = 0; self.v = vreg; self.tag = tag; self.pairs = pairs
    def __call__(self, what=""):
        if not STAMPS: return
        sel = OPT.get("sel" + self.tag)
        if sel is not None and what != "start" and not any(what.startswith(x) for x in sel): return
        A = self.A
        if self.n == 0:
            A(f"v_mov_b32 v{self.v}, 0")
            A("s_memrealtime s[100:101]")
            A("s_waitcnt lgkmcnt(0)")
            A(f"v_writelane_b32 v{self.v}, s100, 62")
            for p in self.pairs[1:]:
                if not 48 <= p < 72: A(f"s_mov_b32 s{p}, 0")
        assert self.n < len(self.pairs), "too many stamps"
        p = self.pairs[self.n]
        A(f"s_memtime s[{p}:{p+1}]")
        print(f"stamp {self.tag} {self.n}: {what}")
        self.n += 1
    def dump(self, WS, S_W8, vL, vt):
        if not STAMPS: return
        A = self.A
        A("s_mov_b64 exec, -1")
        A("s_memrealtime s[100:101]")
        A("s_waitcnt lgkmcnt(0)")
        A(f"v_writelane_b32 v{self.v}, s100, 63")
        if OPT.get("dbgout", 0):
            for i in range(1, self.n):
                A(f"s_sub_u32 s101, s{self.pairs[i]}, s{self.pairs[0]}")
                A(f"s_cmp_eq_u32 s{self.pairs[i]}, 0\ns_cselect_b32 s101, 0, s101")
                A(f"v_writelane_b32 v{self.v}, s101, {i}")
            A(f"v_readlane_b32 s101, v{self.v}, 62\ns_not_b32 s101, s101")
            base = 2 if self.tag == "C" else 2 + OPT.get("nC", 7)
            A(f"v_writelane_b32 v{self.v}, s101, 0") if self.tag == "C" else A(f"v_writelane_b32 v{self.v}, s100, 0")
            A(f"s_and_b32 s100, s{S_W8}, 3\ns_cmp_lg_u32 s100, 0\ns_cbranch_scc1 Lnodump{self.tag}")
            A(f"v_lshlrev_b32 v{vt}, 2, v{vL}")
            A(f"s_mov_b64 exec, {(1 << self.n) - 1}")
            A(f"global_atomic_umax v{vt}, v{self.v}, s[68:69] offset:{4*base} sc1")
            A.label(f"Lnodump{self.tag}")
            return
        for i in range(self.n): A(f"v_writelane_b32 v{self.v}, s{self.pairs[i]}, {i}")
        A(f"s_and_b32 s100, s{S_W8}, 3\ns_cmp_lg_u32 s100, 0\ns_cbranch_scc1 Lnodump{self.tag}")
        A(f"s_lshl_b32 s100, s2, 1\ns_lshr_b32 s101, s{S_W8}, 2\ns_add_u32 s100, s100, s101\ns_lshl_b32 s100, s100, 8\ns_add_u32 s100, s100, {WS_ST}")
        A(f"v_lshlrev_b32 v{vt}, 2, v{vL}")
        A(f"buffer_store_dword v{self.v}, v{vt}, s[{WS}:{WS+3}], s100 offen")
        A.label(f"Lnodump{self.tag}")

UNITS = [("A", c) for c in range(7)] + [("Q", c) for c in range(7)]
UIDX = {u: i for i, u in enumerate(UNITS)}
NEED = {("A", c): [("H", c), ("X", c)] for c in range(7)}
NEED.update({("Q", c): [("Q", c)] for c in range(7)})
def make_plan():
    page = {}; after = {}
    seq = []
    for c in range(7):
        page[("H", c)] = c % 4; page[("X", c)] = 4 + c % 4
        after[("H", c)] = after[("X", c)] = -1 if c < 4 else UIDX[("A", c - 4)]
        seq += [("H", c), ("X", c)]
    free = [(-1, 8), (-1, 9)]
    for c in range(3, 7): free += [(UIDX[("A", c)], c % 4), (UIDX[("A", c)], 4 + c % 4)]
    for c in range(7):
        lu = ("Q", c)
        free.sort()
        rel, pg = free.pop(0)
        page[lu] = pg; after[lu] = rel
        if c: free.append((UIDX[lu], pg))
        else: assert pg == 8
        seq.append(lu)
    free.sort()
    return page, after, seq, free

def gen(kname):
    page, after, seq, p2free = make_plan()
    SEQ = {lu: i for i, lu in enumerate(seq)}
    REPACK = OPT.get("repack", 1)
    S_W8, S_RB, S_HC, S_TT, S_CT = 3, 4, 5, 6, 7
    X, QKV, W1, WS, WO, W2, OUT, B1, GW, B2 = 8, 12, 16, 20, 24, 28, 32, 36, 40, 44
    KA = 48; DBG = 68
    MP, MA, MB, MFIRST, M32, NON = 72, 74, 76, 78, 80, 82
    S_T, S_T2, S_W, S_HW = 84, 85, 86, 87
    S_SPIN = 92
    P = Asm(); C = Asm(); L = Asm()
    A = P
    vTID, vL, vFR, vST = 0, 1, 2, 3
    vZ, vL8, vN = 4, 5, 6
    vT = 8
    vFL, vFLW = 16, 17
    vFV = 20
    vPV = 18
    lab = [0]
    def newlab(t):
        lab[0] += 1; return f"{kname}_{t}{lab[0]}"
    A.label(kname)
    A(f"s_cmp_ge_u32 s2, 256\ns_cbranch_scc1 {kname}_end")
    A(f"s_load_dwordx16 s[{KA}:{KA+15}], s[0:1], 0")
    A(f"s_load_dwordx8 s[{KA+16}:{KA+23}], s[0:1], 64")
    A(f"v_lshrrev_b32 {v(vT)}, 6, {v(vTID)}")
    A(f"v_and_b32 {v(vL)}, 63, {v(vTID)}")
    A(f"v_readfirstlane_b32 s{S_W8}, {v(vT)}")
    A(f"v_lshlrev_b32 {v(vFR)}, 4, {v(vL)}")
    A(f"v_lshlrev_b32 {v(vL8)}, 3, {v(vL)}")
    A(f"v_mov_b32 {v(vZ)}, 0")
    A(f"v_mov_b32 {v(vFL)}, {L_FLG}")
    A(f"""s_and_b32 s{S_W}, s{S_W8}, 3
s_lshr_b32 s{S_T}, s2, 3
s_and_b32 s{S_RB}, s2, 1
s_lshl_b32 s{S_RB}, s{S_RB}, 3
s_and_b32 s{S_T2}, s{S_T}, 7
s_add_u32 s{S_RB}, s{S_RB}, s{S_T2}
s_bfe_u32 s{S_HC}, s2, 0x20001
s_lshl_b32 s{S_HC}, s{S_HC}, 2
s_lshr_b32 s{S_T2}, s{S_T}, 3
s_add_u32 s{S_HC}, s{S_HC}, s{S_T2}
s_and_b32 s{S_TT}, s2, 7
s_lshl_b32 s{S_TT}, s{S_TT}, 2
s_and_b32 s{S_T2}, s{S_T}, 3
s_add_u32 s{S_TT}, s{S_TT}, s{S_T2}
s_lshr_b32 s{S_CT}, s2, 5
s_mov_b32 s{M32}, -1
s_mov_b32 s{M32+1}, 0
s_mov_b32 s{S_SPIN}, 0""")
    c16, g, r8, l7, l3, r16, t0, t1 = [vT + i for i in range(8)]
    A(f"v_and_b32 {v(c16)}, 15, {v(vL)}")
    A(f"v_lshrrev_b32 {v(g)}, 4, {v(vL)}")
    A(f"v_lshrrev_b32 {v(r8)}, 3, {v(vL)}")
    A(f"v_and_b32 {v(l7)}, 7, {v(vL)}")
    A(f"v_and_b32 {v(l3)}, 3, {v(vL)}")
    A(f"v_lshrrev_b32 {v(r16)}, 2, {v(vL)}")
    A(f"""s_and_b32 s{S_T}, s{S_HC}, 3
s_lshl_b32 s{S_T2}, s{S_T}, 8
s_cmp_eq_u32 s{S_T}, 3
s_cselect_b32 s{S_T2}, 640, s{S_T2}
s_lshr_b32 s{S_T}, s{S_HC}, 2
s_mul_i32 s{S_T}, s{S_T}, 896
s_add_u32 s{S_HW}, s{S_T}, s{S_T2}
s_lshl_b32 s{S_T}, s{S_W}, 2
s_add_u32 s{S_T}, s{S_T}, {L_FLG}""")
    A(f"v_mov_b32 {v(vFLW)}, s{S_T}")
    A(f"s_cmp_ge_u32 s{S_W8}, 4\ns_cbranch_scc1 {kname}_L")

    def spin_guard(A, target):
        A(f"s_add_u32 s{S_SPIN}, s{S_SPIN}, 1\ns_cmp_lt_u32 s{S_SPIN}, 0x200000\ns_cbranch_scc1 {target}")
    def lds_post(A, off, val):
        A(f"v_mov_b32 {v(vPV)}, {val}")
        A("s_mov_b64 exec, 1")
        A.dsop(f"ds_write_b32 {v(vFLW)}, {v(vPV)} offset:{off}")
        A("s_mov_b64 exec, -1")
    def lds_flag_read(A, off):
        A("s_mov_b64 exec, 1")
        t = A.dsop(f"ds_read_b128 {v(vFV,4)}, {v(vFL)} offset:{off}")
        A("s_mov_b64 exec, -1")
        return t
    def lds_wait_min(A, off, val, ticket=None):
        lp, ok = newlab("lw"), newlab("lk")
        if ticket is None: ticket = lds_flag_read(A, off)
        A.wait_ds(ticket)
        A.label(lp)
        A(f"v_min3_u32 {v(vFV)}, {v(vFV)}, {v(vFV+1)}, {v(vFV+2)}")
        A(f"v_min_u32 {v(vFV)}, {v(vFV)}, {v(vFV+3)}")
        A("s_nop 0")
        A(f"v_readfirstlane_b32 s{S_T2}, {v(vFV)}")
        A(f"s_cmp_ge_u32 s{S_T2}, {val}\ns_cbranch_scc1 {ok}")
        A(f"s_sleep 1\ns_mov_b64 exec, 1\nds_read_b128 {v(vFV,4)}, {v(vFL)} offset:{off}\ns_mov_b64 exec, -1\ns_waitcnt lgkmcnt(0)")
        spin_guard(A, lp)
        A.label(ok)
    def nonce_load(A, last):
        last["N"] = A.vmem(f"global_load_dwordx2 {v(vN,2)}, {v(vZ)}, s[{DBG}:{DBG+1}] sc1")
    def nonce_check(A, last):
        lp, ok = newlab("nc"), newlab("nk")
        A.wait_vm(last["N"])
        A.label(lp)
        A(f"v_readfirstlane_b32 s{NON}, {v(vN)}\nv_readfirstlane_b32 s{NON+1}, {v(vN+1)}")
        A(f"s_cmp_lg_u32 s{NON}, 0\ns_cbranch_scc1 {ok}")
        A(f"global_load_dwordx2 {v(vN,2)}, {v(vZ)}, s[{DBG}:{DBG+1}] sc1\ns_waitcnt vmcnt(0)")
        spin_guard(A, lp)
        A.label(ok)
    def publish(A, sreg, off):
        A(f"v_mov_b32 {v(vN)}, s{NON}\nv_mov_b32 {v(vN+1)}, s{NON+1}")
        A(f"s_add_u32 s{S_T}, s{sreg}, {off}")
        A("s_mov_b64 exec, 1")
        A.vmem(f"buffer_store_dwordx2 {v(vN,2)}, {v(vZ)}, s[{WS}:{WS+3}], s{S_T} offen sc1")
        A("s_mov_b64 exec, -1")

    A = C; ST = Stamper(C, vST, "C", [98, 8, 10, 12, 14, 16, 18, 24, 26, 28, 30, 32, 34, 36, 38, 40, 42, 44, 46, 88, 90, 94, 96]); last = {}
    S_FR, S_FLP, S_GT, S_OS, S_CO = 48, 49, 50, 51, 52
    S_HS = 54
    vHA, vXA, vXO, vFRa, vFRb, vGA = 24, 28, 30, 32, 33, 34
    XT = 36
    vQA, vXH = 36, 45
    XR = 52
    ACC = 164
    WR = 228; NWR = 7
    ACG = 8
    def ax(ks, tb): return XR + 4 * (2 * ks + tb)
    def axa(ks, jj): return ax(ks, jj) if jj < 2 else XT + 8 * (ks & 1) + 4 * (jj - 2)
    def ach(jj, bb): return ACC + 4 * (4 * jj + bb)
    def acq(tb, t): return ACC + 4 * (6 * tb + t)
    ACC_HL = ACC + 48
    vBIAS = XR + 80
    vRAW = XR + 64
    ST("start")
    A(f"v_lshl_add_u32 {v(t0)}, {v(vL)}, 2, {v(vFL)}")
    A("s_mov_b64 exec, 0xfff")
    A(f"ds_write_b32 {v(t0)}, {v(vZ)}")
    A("s_mov_b64 exec, -1")
    A("s_waitcnt lgkmcnt(0)")
    if OPT.get("tlb", 0):
        for i, off in enumerate((0, 8, 2, 12, 4, 10, 16, 14, 18, 20)):
            A(f"s_load_dword s{S_SPIN+1}, s[{KA+off}:{KA+off+1}], 0")
        for k in range(6):
            A(f"s_add_u32 s{S_T}, s{KA+22}, {k << 21}\ns_addc_u32 s{S_T2}, s{KA+23}, 0")
            A(f"s_load_dword s{S_SPIN+1}, s[{S_T}:{S_T2}], 0")
    A("s_barrier")
    A(f"v_lshlrev_b32 {v(t1)}, 8, {v(r16)}")
    A(f"v_lshl_add_u32 {v(t1)}, {v(l3)}, 3, {v(t1)}")
    A(f"v_and_b32 {v(t0)}, 7, {v(r16)}")
    A(f"v_lshl_add_u32 {v(vHA)}, {v(t0)}, 5, {v(t1)}")
    A(f"s_and_b32 s{S_T}, s{S_W}, 1\ns_lshl_b32 s{S_T}, s{S_T}, 7")
    A(f"v_xor_b32 {v(vHA)}, s{S_T}, {v(vHA)}")
    for b in range(1, 4): A(f"v_xor_b32 {v(vHA+b)}, {32*b}, {v(vHA)}")
    A(f"v_xor_b32 {v(t0)}, {v(g)}, {v(l7)}")
    A(f"v_lshlrev_b32 {v(t1)}, 7, {v(c16)}")
    A(f"v_lshl_add_u32 {v(t1)}, {v(t0)}, 4, {v(t1)}")
    A(f"s_lshl_b32 s{S_T}, s{S_W}, 12\ns_add_u32 s{S_T2}, s{S_T}, {4*PAGE}")
    A(f"v_add_u32 {v(vXA)}, s{S_T2}, {v(t1)}")
    A(f"v_xor_b32 {v(vXA+1)}, 64, {v(vXA)}")
    A(f"v_xor_b32 {v(vXO)}, 0x1000, {v(vXA)}")
    A(f"v_xor_b32 {v(vXO+1)}, 64, {v(vXO)}")
    A(f"v_lshlrev_b32 {v(vGA)}, 4, {v(g)}")
    A(f"v_add_u32 {v(vGA)}, {L_GATE}, {v(vGA)}")
    A(f"s_and_b32 s{S_T}, s{S_W}, 1\ns_lshl_b32 s{S_T}, s{S_T}, 7\ns_add_u32 s{S_T}, s{S_T}, {L_BIAS}")
    A(f"v_lshlrev_b32 {v(WR)}, 3, {v(g)}")
    A(f"v_add_u32 {v(WR)}, s{S_T}, {v(WR)}")
    A(f"v_and_b32 {v(t0)}, 1, {v(c16)}")
    A(f"v_cmp_eq_u32 s[{MP}:{MP+1}], 1, {v(t0)}")
    A(f"v_lshl_add_u32 {v(t1)}, {v(g)}, 2, {v(t0)}")
    A(f"v_cmp_le_u32 s[{MA}:{MA+1}], {v(t1)}, {v(c16)}")
    A(f"v_add_u32 {v(t1)}, 2, {v(t1)}")
    A(f"v_cmp_le_u32 s[{MB}:{MB+1}], {v(t1)}, {v(c16)}")
    srd(A, WS, KA+22, WS_BYTES)
    A(f"""s_or_b32 s{S_T}, s{S_RB}, s{S_W}
s_cmp_eq_u32 s{S_T}, 0
s_cselect_b32 s{MFIRST}, -1, 0
s_cselect_b32 s{MFIRST+1}, -1, 0
s_lshl_b32 s{S_T}, s{S_RB}, 3
s_lshl_b32 s{S_T2}, s{S_W}, 1
s_add_u32 s{S_T}, s{S_T}, s{S_T2}
s_mul_i32 s{S_FR}, s{S_T}, {72*1024}
s_lshl_b32 s{S_GT}, s{S_T}, 6
s_add_u32 s{S_GT}, s{S_GT}, {WS_G}
s_xor_b32 s{S_T}, s{S_T}, 2
s_mul_i32 s{S_CO}, s{S_T}, {72*1024}
s_lshl_b32 s{S_T}, s{S_HW}, 4
s_and_b32 s{S_T2}, s{S_W}, 1
s_lshl_b32 s{S_T2}, s{S_T2}, 11
s_add_u32 s{S_T}, s{S_T}, s{S_T2}
s_add_u32 s{S_HS}, s{S_FR}, s{S_T}
s_add_u32 s{S_HS+1}, s{S_HS}, 73728
s_add_u32 s{S_HS+2}, s{S_CO}, s{S_T}
s_add_u32 s{S_HS+3}, s{S_HS+2}, 73728
s_and_b32 s{S_T}, s{S_HC}, 3
s_lshl_b32 s{S_T}, s{S_T}, 1
s_and_b32 s{S_T2}, s{S_W}, 1
s_add_u32 s{S_T}, s{S_T}, s{S_T2}
s_cmp_eq_u32 s{S_T}, 6
s_cselect_b32 s{S_T2}, 0x40000000, 0""")
    A(f"v_or_b32 {v(vFRa)}, s{S_T2}, {v(vFR)}")
    A(f"s_cmp_eq_u32 s{S_T}, 5\ns_cselect_b32 s{S_T2}, 0x40000000, 0")
    A(f"v_or_b32 {v(vFRb)}, s{S_T2}, {v(vFR)}")
    A(f"""s_lshl_b32 s{S_T}, s{S_HC}, 10
s_add_u32 s{S_OS}, s{S_FR}, s{S_T}
s_add_u32 s{S_OS}, s{S_OS}, {56*1024}
s_lshl_b32 s{S_T}, s{S_RB}, 1
s_lshr_b32 s{S_T2}, s{S_W}, 1
s_add_u32 s{S_T}, s{S_T}, s{S_T2}
s_lshl_b32 s{S_T}, s{S_T}, 4
s_add_u32 s{S_T}, s{S_T}, s{S_HC}
s_lshl_b32 s{S_T}, s{S_T}, 1
s_and_b32 s{S_T2}, s{S_W}, 1
s_add_u32 s{S_T}, s{S_T}, s{S_T2}
s_lshl_b32 s{S_T}, s{S_T}, 3
s_add_u32 s{S_FLP}, s{S_T}, {WS_FL}""")
    ST("pro done")
    if OPT.get("lonly", 0):
        lds_post(A, 16, 99)
        A(f"s_branch {kname}_cfin")

    known = [0]
    pre = {}
    def acquire(u):
        val = max(SEQ[lu] for lu in NEED[u]) + 1
        lds_wait_min(A, 0, val, pre.pop("t", None))
        ST(f"acq{u}")
    def release(u):
        lds_post(A, 16, UIDX[u] + 1)
    class Frag:
        def __init__(self, unit, reads, mf): self.unit = unit; self.reads = reads; self.mf = mf
    done = set()
    def run_frags(frags, LA, hooks={}):
        n = len(frags); issued = 0; tk = [None]*n
        state = run_frags.seq
        def issue(i):
            f = frags[i]
            if f.unit not in done:
                acquire(f.unit); done.add(f.unit)
            tk[i] = f.reads(WR + 4*((state + i) % NWR))
            if i + 3 < n and frags[i+3].unit != f.unit and frags[i+2].unit == f.unit: pre["t"] = lds_flag_read(A, 0)
        for i in range(n):
            while issued < min(n, i + LA + 1):
                issue(issued); issued += 1
            A.wait_ds(tk[i])
            frags[i].mf(WR + 4*((state + i) % NWR))
            if i == n - 1 or frags[i+1].unit != frags[i].unit: release(frags[i].unit)
            if i in hooks: hooks[i]()
        run_frags.seq = (state + n) % NWR
    run_frags.seq = 0
    def trr(dst, va, off): return A.dsop(f"ds_read_b64_tr_b16 {v(dst,2)}, {v(va)} offset:{off}")
    acquire(("A", 0)); done.add(("A", 0))
    for b in range(4): tkb = A.dsop(f"ds_read_b64 {v(vRAW+2*b,2)}, {v(WR)} offset:{32*b}")
    A.wait_ds(tkb)
    for i in range(8):
        A(f"v_lshlrev_b32 {v(vBIAS+2*i)}, 16, {v(vRAW+i)}")
        A(f"v_and_b32 {v(vBIAS+2*i+1)}, 0xffff0000, {v(vRAW+i)}")
    fr = []
    for ks in range(14):
        c, s2 = ks // 2, ks % 2
        for b in range(5):
            def reads(r, ks=ks, c=c, s2=s2, b=b):
                if b == 0:
                    for jj in range(4):
                        A.dsop(f"ds_read_b128 {v(axa(ks,jj),4)}, {v((vXA if jj < 2 else vXO)+s2)} offset:{(page[('X',c)]-4)*PAGE + (jj&1)*2048}")
                if b == 4: return A.dsop(f"ds_read_b128 {v(r,4)}, {v(vGA)} offset:{64*ks}")
                for hf in range(2): t = trr(r + 2*hf, vHA + b, page[("H", c)]*PAGE + (32*s2 + 16*hf)*256)
                return t
            def mf(r, ks=ks, b=b):
                if b == 4:
                    for tb in range(2):
                        d = v(ACG + 4*tb, 4)
                        A(f"v_mfma_f32_16x16x32_bf16 {d}, {v(r,4)}, {v(ax(ks,tb),4)}, {d if ks else '0'}")
                    return
                for jj in range(4):
                    d = v(ach(jj, b), 4)
                    A(f"v_mfma_f32_16x16x32_bf16 {d}, {v(r,4)}, {v(axa(ks,jj),4)}, {d if ks else v(vBIAS+4*b,4)}")
            fr.append(Frag(("A", c), reads, mf))
    run_frags(fr, 5, hooks={30: lambda: nonce_load(A, last)})
    ST("A done")
    for pp in range(2):
        for jj in range(4):
            for bb in (2*pp, 2*pp + 1):
                r = ach(jj, bb)
                for i in range(4): A(f"v_max_f32 {v(r+i)}, 0, {v(r+i)}")
                A(f"v_pk_mul_f32 {v(r,2)}, {v(r,2)}, {v(r,2)}")
                A(f"v_pk_mul_f32 {v(r+2,2)}, {v(r+2,2)}, {v(r+2,2)}")
                dst = ach(jj, 2*pp) + 2 * (bb & 1)
                A(f"v_cvt_pk_bf16_f32 {v(dst)}, {v(r)}, {v(r+1)}")
                A(f"v_cvt_pk_bf16_f32 {v(dst+1)}, {v(r+2)}, {v(r+3)}")
            last["HS"] = A.vmem(f"buffer_store_dwordx4 {v(ach(jj,2*pp),4)}, {v(vFRb if pp else vFRa)}, s[{WS}:{WS+3}], s{S_HS+jj} offen offset:{1024*pp} sc1")
    for tb in range(2): A(f"v_mul_f32 {v(ACG+4*tb)}, 0xbfb8aa3b, {v(ACG+4*tb)}")
    for tb in range(2): A(f"v_exp_f32 {v(ACG+4*tb)}, {v(ACG+4*tb)}")
    A(f"v_lshrrev_b32 {v(ACG+1)}, 1, {v(vL8)}")
    for tb in range(2): A(f"v_add_f32 {v(ACG+4*tb)}, 1.0, {v(ACG+4*tb)}")
    for tb in range(2): A(f"v_rcp_f32 {v(ACG+4*tb)}, {v(ACG+4*tb)}")
    lb = newlab("g")
    A(f"s_cmp_lg_u32 s{S_HC}, 2\ns_cbranch_scc1 {lb}")
    A("s_mov_b64 exec, 0xffff")
    for tb in range(2): A(f"buffer_store_dword {v(ACG+4*tb)}, {v(ACG+1)}, s[{WS}:{WS+3}], s{S_GT} offen offset:{64*tb} sc1")
    A("s_mov_b64 exec, -1")
    A.label(lb)
    ST("H epi done")
    q0, q1, q2, q3 = 9, 10, 11, 13
    A(f"v_lshrrev_b32 {v(q0)}, 2, {v(vL)}")
    A(f"v_bfe_u32 {v(q1)}, {v(vL)}, 4, 1")
    A(f"v_and_b32 {v(q2)}, 3, {v(vL)}")
    A(f"v_lshlrev_b32 {v(vQA)}, 6, {v(q0)}")
    A(f"v_lshl_add_u32 {v(vQA)}, {v(q1)}, 5, {v(vQA)}")
    A(f"v_lshl_add_u32 {v(vQA)}, {v(q2)}, 3, {v(vQA)}")
    A(f"v_xor_b32 {v(vQA+1)}, 32, {v(vQA)}")
    A(f"""s_and_b32 s{S_T}, s{S_W}, 1
s_lshl_b32 s{S_T}, s{S_T}, 5
s_lshr_b32 s{S_T2}, s{S_W}, 1
s_lshl_b32 s{S_T2}, s{S_T2}, 12""")
    A(f"v_xor_b32 {v(vQA+2)}, s{S_T}, {v(vQA)}")
    A(f"v_add_u32 {v(vQA+2)}, s{S_T2}, {v(vQA+2)}")
    A(f"v_and_b32 {v(vXH)}, 0x7ff, {v(vXA)}")
    A(f"v_xor_b32 {v(vXH+1)}, 64, {v(vXH)}")
    for z in (1, 2):
        for i in range(3): A(f"v_add_u32 {v(vQA+3*z+i)}, {z*65536}, {v(vQA+i)}")
        for i in range(2): A(f"v_add_u32 {v(vXH+2*z+i)}, {z*65536}, {v(vXH+i)}")
    nonce_check(A, last)
    fr = []
    for ks in range(14):
        c, s2 = ks // 2, ks % 2; pg = page[("Q", c)]; z = pg // 4; rel = (pg % 4) * PAGE
        hold = {}
        for f in range(8):
            def reads(r, ks=ks, s2=s2, f=f, z=z, rel=rel, hold=hold):
                if f == 6:
                    hold["x"] = r
                    return A.dsop(f"ds_read_b128 {v(r,4)}, {v(vXH+2*z+s2)} offset:{rel + 12288}")
                va = vQA + 3*z + (2 if f == 7 else (f & 1)); ro = 4096 if f == 7 else 4096*(f//2)
                for hf in range(2): t = trr(r + 2*hf, va, rel + ro + (32*s2 + 16*hf)*64)
                return t
            def mf(r, ks=ks, f=f, hold=hold):
                if f == 6: return
                if f == 7:
                    d = v(ACC_HL, 4)
                    A(f"v_mfma_f32_16x16x32_bf16 {d}, {v(r,4)}, {v(hold['x'],4)}, {d if ks else '0'}")
                    return
                for tb in range(2):
                    d = v(acq(tb, f), 4); cc = d if ks else "0"
                    wf, xf = v(r, 4), v(ax(ks, tb), 4)
                    A(f"v_mfma_f32_16x16x32_bf16 {d}, {xf}, {wf}, {cc}" if f >= 4 else f"v_mfma_f32_16x16x32_bf16 {d}, {wf}, {xf}, {cc}")
            fr.append(Frag(("Q", c), reads, mf))
    def pubH():
        A.wait_vm_all(); publish(A, S_FLP, 0); ST("H pub")
    run_frags(fr, NWR - 2, hooks={OPT.get("pubH", 8): pubH})
    ST("B done")
    XCH = 8 * PAGE
    E = XR
    KP, QP, VP, HLP, vXCA = E, E + 12, E + 20, E + 32, E + 34
    SS = E + 40
    TT_ = E + 56
    PPp = E + 64
    OO = E + 72
    OP = E + 88
    vG3, vSEL = E + 96, E + 97
    u0, u1, u2 = E + 104, E + 105, E + 106
    tkc = lds_flag_read(A, 16)
    def pk(dst, src):
        A(f"v_cvt_pk_bf16_f32 {v(dst)}, {v(src)}, {v(src+1)}")
        A(f"v_cvt_pk_bf16_f32 {v(dst+1)}, {v(src+2)}, {v(src+3)}")
    A(f"s_lshl_b32 s{S_T}, s{S_W}, 11\ns_add_u32 s{S_T}, s{S_T}, {XCH}")
    A(f"v_add_u32 {v(vXCA)}, s{S_T}, {v(vFR)}")
    A(f"v_add_u32 {v(vXCA+1)}, s{S_T}, {v(vL8)}")
    pk(KP + 8, acq(1, 2)); pk(KP + 10, acq(1, 3))
    pk(VP + 4, acq(1, 4)); pk(VP + 10, acq(1, 5))
    lds_wait_min(A, 16, UIDX[("Q", 0)] + 1, tkc)
    pk(HLP, ACC_HL)
    A.dsop(f"ds_write_b128 {v(vXCA)}, {v(KP+8,4)} offset:2048")
    A.dsop(f"ds_write_b64 {v(vXCA+1)}, {v(VP+4,2)} offset:{2048+1024}")
    A.dsop(f"ds_write_b64 {v(vXCA+1)}, {v(VP+10,2)} offset:{2048+1536}")
    A(f"s_cmp_ge_u32 s{S_W}, 2\ns_cbranch_scc1 {kname}_hv")
    A(f"s_lshl_b32 s{S_T}, s{S_W}, 3\ns_add_u32 s{S_T}, s{S_T}, {XCH}")
    A(f"v_add_u32 {v(vXCA+2)}, s{S_T}, {v(vFR)}")
    A(f"ds_write_b64 {v(vXCA+2)}, {v(HLP,2)}")
    A(f"s_branch {kname}_hd")
    A.label(f"{kname}_hv")
    A(f"s_and_b32 s{S_T}, s{S_W}, 1\ns_lshl_b32 s{S_T}, s{S_T}, 9\ns_add_u32 s{S_T}, s{S_T}, {XCH+1024}")
    A(f"v_bfe_u32 {v(vXCA+2)}, {v(vL)}, 2, 2")
    A(f"v_lshlrev_b32 {v(vXCA+2)}, 7, {v(vXCA+2)}")
    A(f"v_lshrrev_b32 {v(vXCA+3)}, 4, {v(vL)}")
    A(f"v_lshl_add_u32 {v(vXCA+2)}, {v(vXCA+3)}, 5, {v(vXCA+2)}")
    A(f"v_and_b32 {v(vXCA+3)}, 3, {v(vL)}")
    A(f"v_lshl_add_u32 {v(vXCA+2)}, {v(vXCA+3)}, 1, {v(vXCA+2)}")
    A(f"v_add_u32 {v(vXCA+2)}, s{S_T}, {v(vXCA+2)}")
    A(f"ds_write_b16 {v(vXCA+2)}, {v(HLP)}")
    A(f"ds_write_b16_d16_hi {v(vXCA+2)}, {v(HLP)} offset:8")
    A(f"ds_write_b16 {v(vXCA+2)}, {v(HLP+1)} offset:16")
    A(f"ds_write_b16_d16_hi {v(vXCA+2)}, {v(HLP+1)} offset:24")
    A.label(f"{kname}_hd")
    lds_post(A, 32, 1)
    A.ds_done = 0 if False else A.ds_done
    A(f"v_lshrrev_b32 {v(u0)}, 4, {v(vL)}")
    A(f"v_cmp_eq_u32 vcc, 3, {v(u0)}")
    A(f"v_mov_b32 {v(u0)}, 0x0c0c0100\nv_mov_b32 {v(u1)}, 0x01000c0c\nv_mov_b32 {v(u2)}, 0x0c0c0c0c")
    A(f"v_cndmask_b32 {v(vG3)}, -1, 0, vcc")
    A(f"v_cndmask_b32 {v(u0)}, {v(u0)}, {v(u1)}, s[{MP}:{MP+1}]")
    A(f"v_cndmask_b32 {v(vSEL+0)}, {v(u0)}, {v(u2)}, s[{MA}:{MA+1}]")
    A(f"v_cndmask_b32 {v(vSEL+2)}, {v(u2)}, {v(u0)}, s[{MA}:{MA+1}]")
    A(f"v_mov_b32 {v(u0)}, 0x0c0c0302\nv_mov_b32 {v(u1)}, 0x03020c0c")
    A(f"v_cndmask_b32 {v(u0)}, {v(u0)}, {v(u1)}, s[{MP}:{MP+1}]")
    A(f"v_cndmask_b32 {v(vSEL+1)}, {v(u0)}, {v(u2)}, s[{MB}:{MB+1}]")
    A(f"v_cndmask_b32 {v(vSEL+3)}, {v(u2)}, {v(u0)}, s[{MB}:{MB+1}]")
    pk(KP + 4, acq(0, 2)); pk(KP + 6, acq(0, 3))
    pk(VP + 2, acq(0, 4)); pk(VP + 8, acq(0, 5))
    for tb in (1, 0):
        pk(QP + 4*tb, acq(tb, 0)); pk(QP + 2 + 4*tb, acq(tb, 1))
        A(f"v_and_b32 {v(QP+2+4*tb)}, {v(vG3)}, {v(QP+2+4*tb)}")
        A(f"v_and_b32 {v(QP+3+4*tb)}, {v(vG3)}, {v(QP+3+4*tb)}")
    A.wait_ds_all()
    lds_wait_min(A, 32, 1)
    A.dsop(f"ds_read_b128 {v(KP,4)}, {v(vXCA)}")
    A.dsop(f"ds_read_b64 {v(VP,2)}, {v(vXCA+1)} offset:1024")
    tkx = A.dsop(f"ds_read_b64 {v(VP+6,2)}, {v(vXCA+1)} offset:1536")
    A(f"s_add_u32 s{S_GT}, s{S_OS}, 73728")
    CSC = "0x3e8b97f6"
    def S_(tb, cur): return SS + 8*tb + 4*cur
    A(f"v_mfma_f32_16x16x32_bf16 {v(S_(1,0),4)}, {v(KP+4,4)}, {v(QP+4,4)}, 0")
    A(f"v_mfma_f32_16x16x32_bf16 {v(S_(1,1),4)}, {v(KP+8,4)}, {v(QP+4,4)}, 0")
    A(f"v_mfma_f32_16x16x32_bf16 {v(S_(0,1),4)}, {v(KP+4,4)}, {v(QP,4)}, 0")
    A.wait_ds(tkx)
    A(f"v_mfma_f32_16x16x32_bf16 {v(S_(0,0),4)}, {v(KP,4)}, {v(QP,4)}, 0")
    A(f"v_mov_b32 {v(u0)}, 0xf149f2ca")
    A.nop(5)
    def both(fn):
        for tb in (1, 0): fn(tb, TT_ + 4*tb, TT_ + 4*tb + 1, TT_ + 4*tb + 2, TT_ + 4*tb + 3)
    both(lambda tb, tA, tB, tC, tD: A(f"v_cndmask_b32 {v(tC)}, {v(S_(tb,1))}, {v(S_(tb,1)+1)}, s[{MP}:{MP+1}]\nv_cndmask_b32 {v(tD)}, {v(S_(tb,1)+2)}, {v(S_(tb,1)+3)}, s[{MP}:{MP+1}]"))
    both(lambda tb, tA, tB, tC, tD: A(f"v_cndmask_b32 {v(tA)}, {v(S_(tb,0))}, {v(S_(tb,0)+1)}, s[{MP}:{MP+1}]\nv_cndmask_b32 {v(tB)}, {v(S_(tb,0)+2)}, {v(S_(tb,0)+3)}, s[{MP}:{MP+1}]"))
    A(f"v_cndmask_b32 {v(TT_)}, {v(TT_)}, {v(u0)}, s[{MFIRST}:{MFIRST+1}]")
    A(f"v_cndmask_b32 {v(TT_+1)}, {v(TT_+1)}, {v(u0)}, s[{MFIRST}:{MFIRST+1}]")
    both(lambda tb, tA, tB, tC, tD: A(f"v_cndmask_b32 {v(tA)}, {v(tA)}, {v(tC)}, s[{MA}:{MA+1}]\nv_cndmask_b32 {v(tB)}, {v(tB)}, {v(tD)}, s[{MB}:{MB+1}]"))
    both(lambda tb, tA, tB, tC, tD: A(f"v_max_f32 {v(tC)}, {v(tA)}, {v(tB)}"))
    def xreduce(op):
        for sw in ("v_permlane16_swap_b32", "v_permlane32_swap_b32"):
            both(lambda tb, tA, tB, tC, tD: A(f"v_mov_b32 {v(tD)}, {v(tC)}"))
            A("s_nop 0")
            both(lambda tb, tA, tB, tC, tD: A(f"{sw} {v(tC)}, {v(tD)}"))
            A("s_nop 0")
            both(lambda tb, tA, tB, tC, tD: A(f"{op} {v(tC)}, {v(tC)}, {v(tD)}"))
    xreduce("v_max_f32")
    both(lambda tb, tA, tB, tC, tD: A(f"v_sub_f32 {v(tA)}, {v(tA)}, {v(tC)}\nv_sub_f32 {v(tB)}, {v(tB)}, {v(tC)}"))
    both(lambda tb, tA, tB, tC, tD: A(f"v_mul_f32 {v(tA)}, {CSC}, {v(tA)}\nv_mul_f32 {v(tB)}, {CSC}, {v(tB)}"))
    both(lambda tb, tA, tB, tC, tD: A(f"v_exp_f32 {v(tA)}, {v(tA)}\nv_exp_f32 {v(tB)}, {v(tB)}"))
    A("s_nop 0")
    both(lambda tb, tA, tB, tC, tD: A(f"v_add_f32 {v(tC)}, {v(tA)}, {v(tB)}"))
    xreduce("v_add_f32")
    both(lambda tb, tA, tB, tC, tD: A(f"v_rcp_f32 {v(tC)}, {v(tC)}"))
    A("s_nop 0")
    both(lambda tb, tA, tB, tC, tD: A(f"v_mul_f32 {v(tC)}, {v(tC)}, {v(ACG+4*tb)}"))
    both(lambda tb, tA, tB, tC, tD: A(f"v_mul_f32 {v(tA)}, {v(tA)}, {v(tC)}\nv_mul_f32 {v(tB)}, {v(tB)}, {v(tC)}"))
    both(lambda tb, tA, tB, tC, tD: A(f"v_cvt_pk_bf16_f32 {v(tA)}, {v(tA)}, {v(tB)}"))
    both(lambda tb, tA, tB, tC, tD: A("\n".join(f"v_perm_b32 {v(PPp+4*tb+i)}, {v(tA)}, {v(tA)}, {v(vSEL+i)}" for i in range(4))))
    A("s_nop 0")
    for tb in (1, 0):
        A(f"v_mfma_f32_16x16x32_bf16 {v(OO+8*tb,4)}, {v(VP+2*tb,4)}, {v(PPp+4*tb,4)}, 0")
        A(f"v_mfma_f32_16x16x32_bf16 {v(OO+8*tb+4,4)}, {v(VP+6+2*tb,4)}, {v(PPp+4*tb,4)}, 0")
    A.nop(6)
    for tb in (1, 0):
        op = OP + 4*tb
        pk(op, OO + 8*tb); pk(op + 2, OO + 8*tb + 4)
        A(f"v_and_b32 {v(op+2)}, {v(vG3)}, {v(op+2)}")
        A(f"v_and_b32 {v(op+3)}, {v(vG3)}, {v(op+3)}")
        last["OS"] = A.vmem(f"buffer_store_dwordx4 {v(op,4)}, {v(vFR)}, s[{WS}:{WS+3}], s{S_OS if tb == 0 else S_GT} offen sc1")
    ST("attn done")
    A.wait_vm_all()
    publish(A, S_FLP, 8192)
    ST("O pub")
    A.label(f"{kname}_cfin")
    ST.dump(WS, S_W8, vL, vT)
    A("s_endpgm")

    A = L; ST = Stamper(L, vST, "L", [98, 72, 74, 76, 78, 64, 66, 70]); last = {}
    A.label(f"{kname}_L")
    S_XO, S_HO, S_QO, S_XH, S_M4, S_M1, S_MXH, S_FLC, S_FO, S_WOB, S_W2B, S_RF, S_GW = 48, 49, 50, 51, 52, 53, 54, 55, 56, 57, 58, 59, 60
    SW = 88
    vXD, vXHD, vHD0, vHD1, vQD, vW2D, vRS, vRD = 24, 25, 26, 27, 28, 29, 30, 31
    vD = 32
    ST("start")
    A(f"v_mul_u32_u24 {v(t1)}, 896, {v(r8)}")
    A(f"v_xor_b32 {v(t0)}, {v(l7)}, {v(r8)}")
    A(f"v_lshl_add_u32 {v(vXD)}, {v(t0)}, 4, {v(t1)}")
    A(f"v_and_b32 {v(t0)}, 1, {v(g)}")
    A(f"v_xor_b32 {v(t0)}, {v(t0)}, {v(l7)}")
    A(f"v_lshl_add_u32 {v(vW2D)}, {v(t0)}, 4, {v(t1)}")
    A(f"v_mul_u32_u24 {v(t1)}, 3584, {v(g)}")
    A(f"v_lshlrev_b32 {v(t0)}, 1, {v(g)}")
    A(f"v_xor_b32 {v(t0)}, {v(t0)}, {v(c16)}")
    A(f"v_lshl_add_u32 {v(vHD0)}, {v(t0)}, 4, {v(t1)}")
    A(f"v_xor_b32 {v(vHD1)}, 0x80, {v(vHD0)}")
    A("s_waitcnt lgkmcnt(0)")
    A("s_barrier")
    srd(A, X, KA, 2048 * 896)
    srd(A, W1, KA+8, 448 * 3584)
    srd(A, QKV, KA+2, 448 * 2688)
    srd(A, WO, KA+4, 448 * 896)
    srd(A, W2, KA+12, 1792 * 896)
    srd(A, B1, KA+10, 3584)
    srd(A, GW, KA+16, 896)
    srd(A, B2, KA+14, 896)
    srd(A, OUT, KA+18, 2048 * 896)
    srd(A, WS, KA+22, WS_BYTES)
    SWEEP = OPT.get("sweep", 1)
    A(f"s_lshl_b32 s{S_GW}, s2, 2\ns_add_u32 s{S_GW}, s{S_GW}, s{S_W}")
    if SWEEP == 2:
        A(f"s_mul_i32 s{S_T}, s{S_GW}, 1792")
        A.vmem(f"buffer_load_dwordx4 {v(vD,4)}, {v(vFR)}, s[{X}:{X+3}], s{S_T} offen")
        A("s_mov_b32 exec_hi, 0xffff")
        A.vmem(f"buffer_load_dwordx4 {v(vD,4)}, {v(vFR)}, s[{X}:{X+3}], s{S_T} offen offset:1024")
        A("s_mov_b32 exec_hi, -1")
        A(f"s_mul_i32 s{S_T}, s{S_GW}, 1664")
        A.vmem(f"buffer_load_dwordx4 {v(vD,4)}, {v(vFR)}, s[{W1}:{W1+3}], s{S_T} offen")
        A("s_mov_b32 exec_hi, 0xff")
        A.vmem(f"buffer_load_dwordx4 {v(vD,4)}, {v(vFR)}, s[{W1}:{W1+3}], s{S_T} offen offset:1024")
        A("s_mov_b32 exec_hi, -1")
    QROW = 64 if REPACK else 2688
    A(f"""s_lshr_b32 s{S_T}, s{S_W}, 1
s_lshl_b32 s{S_T}, s{S_T}, 5
s_and_b32 s{S_T2}, s{S_W}, 1
s_lshl_b32 s{S_T2}, s{S_T2}, 2
s_add_u32 s{S_T}, s{S_T}, s{S_T2}
s_mul_i32 s{S_HO}, s{S_T}, 3584
s_add_u32 s{S_HO}, s{S_HO}, s{S_HW}
s_mul_i32 s{S_QO}, s{S_T}, {QROW}
s_mul_i32 s{S_T2}, s{S_HC}, {3*448*64 if REPACK else 56}
s_add_u32 s{S_QO}, s{S_QO}, s{S_T2}
s_lshl_b32 s{S_T}, s{S_RB}, 7
s_lshl_b32 s{S_T2}, s{S_W}, 5
s_add_u32 s{S_T2}, s{S_T}, s{S_T2}
s_mul_i32 s{S_XO}, s{S_T2}, 896
s_sub_i32 s{S_T}, s{S_T}, 16
s_max_i32 s{S_T}, s{S_T}, 0
s_lshl_b32 s{S_T2}, s{S_W}, 2
s_add_u32 s{S_T}, s{S_T}, s{S_T2}
s_mul_i32 s{S_XH}, s{S_T}, 896
s_lshl_b32 s{S_M4}, s{S_W}, 12
s_lshl_b32 s{S_M1}, s{S_W}, 10
s_lshl_b32 s{S_MXH}, s{S_W}, 9""")
    S_R1, S_R2, S_R3 = 94, 95, 96
    if OPT.get("rot", 1):
        A(f"""s_lshl_b32 s{S_T}, s{S_HC}, 1
s_add_u32 s{S_T}, s{S_T}, s{S_RB}
s_mul_i32 s{S_T2}, s{S_T}, 37
s_lshr_b32 s{S_T2}, s{S_T2}, 8
s_mul_i32 s{S_T2}, s{S_T2}, 7
s_sub_u32 s{S_R1}, s{S_T}, s{S_T2}
s_and_b32 s{S_T}, s{S_TT}, 3
s_mul_i32 s{S_T}, s{S_T}, 7
s_add_u32 s{S_T}, s{S_T}, 1
s_lshr_b32 s{S_T}, s{S_T}, 1
s_lshl_b32 s{S_T2}, s{S_CT}, 1
s_add_u32 s{S_T}, s{S_T}, s{S_T2}
s_sub_u32 s{S_T2}, s{S_T}, 14
s_cmp_ge_u32 s{S_T}, 14
s_cselect_b32 s{S_R2}, s{S_T2}, s{S_T}
s_add_u32 s{S_T}, s{S_TT}, s{S_CT}
s_and_b32 s{S_R3}, s{S_T}, 3""")
    else:
        A(f"s_mov_b32 s{S_R1}, 0\ns_mov_b32 s{S_R2}, 0\ns_mov_b32 s{S_R3}, 0")
    lb = newlab("w0")
    A(f"s_cmp_lg_u32 s{S_W}, 0\ns_cbranch_scc1 {lb}")
    A(f"s_mov_b32 m0, {L_BIAS}\ns_mov_b64 exec, 0xffff")
    A(f"buffer_load_dwordx4 {v(vFR)}, s[{B1}:{B1+3}], s{S_HW} offen lds")
    A(f"s_mov_b32 m0, {L_GATE}\ns_mov_b32 exec_lo, -1\ns_mov_b32 exec_hi, 0xffffff")
    A(f"s_lshl_b32 s{S_T}, s{S_R1}, 7")
    A(f"v_add_u32 {v(t0)}, s{S_T}, {v(vFR)}")
    A(f"v_subrev_u32 {v(t1)}, 896, {v(t0)}")
    A(f"v_min_u32 {v(t0)}, {v(t0)}, {v(t1)}")
    A(f"buffer_load_dwordx4 {v(t0)}, s[{GW}:{GW+3}], 0 offen lds")
    A("s_mov_b64 exec, -1")
    A(f"s_cmp_lg_u32 s2, 0\ns_cbranch_scc1 {lb}")
    A(f"s_memrealtime s[{NON}:{NON+1}]\ns_waitcnt lgkmcnt(0)\ns_or_b32 s{NON}, s{NON}, 1")
    A(f"v_mov_b32 {v(vN)}, s{NON}\nv_mov_b32 {v(vN+1)}, s{NON+1}")
    A("s_mov_b64 exec, 1")
    A(f"global_store_dwordx2 {v(vZ)}, {v(vN,2)}, s[{DBG}:{DBG+1}] sc1")
    A("s_mov_b64 exec, -1")
    A.label(lb)
    S_CB = 93
    def rot_base(sdst, srot, idx, mod, mult, sadd):
        A(f"s_add_u32 s{sdst}, s{srot}, {idx}")
        A(f"s_sub_u32 s{S_T2}, s{sdst}, {mod}")
        A(f"s_cmp_ge_u32 s{sdst}, {mod}")
        A(f"s_cselect_b32 s{sdst}, s{S_T2}, s{sdst}")
        A(f"s_mul_i32 s{sdst}, s{sdst}, {mult}")
        A(f"s_add_u32 s{sdst}, s{sdst}, s{sadd}")
    def dma(m0reg, m0off, sreg, soff, va, sr, flags=""):
        A(f"s_add_u32 m0, s{m0reg}, {m0off}")
        A(f"s_add_u32 s{S_T}, s{sreg}, {soff}")
        return A.vmem(f"buffer_load_dwordx4 {v(va)}, s[{sr}:{sr+3}], s{S_T} offen {flags} lds")
    def load(lu):
        k, c = lu; pb = page[lu] * PAGE
        if k == "H":
            rot_base(S_CB, S_R1, c, 7, 64*3584, S_HO)
            for gi in range(4): t = dma(S_M4, pb + gi*1024, S_CB, 8*gi*3584, vHD1 if gi & 1 else vHD0, W1)
        elif k == "X":
            rot_base(S_CB, S_R1, c, 7, 128, S_XO)
            for q in range(4): t = dma(S_M4, pb + q*1024, S_CB, q*8*896, vXD, X)
        elif k == "Q":
            rot_base(S_CB, S_R1, c, 7, 4096 if REPACK else 172032, S_QO)
            for p in range(3):
                if REPACK: dma(S_M1, pb + p*4096, S_CB, WS_QR + p*448*64, vQD, WS, "sc1")
                else: dma(S_M1, pb + p*4096, S_CB, 896*p, vQD, QKV)
            rot_base(S_CB, S_R1, c, 7, 128, S_XH)
            A(f"s_mov_b64 exec, s[{M32}:{M32+1}]")
            t = dma(S_MXH, pb + 12288, S_CB, 0, vXHD, X)
            A("s_mov_b64 exec, -1")
        last[lu] = t
    def poll(tag, sreg, off, wide=False):
        lp, ok = newlab("pl"), newlab("pk")
        A(f"s_add_u32 s{S_T}, s{sreg}, {off}")
        if not wide: A(f"s_mov_b64 exec, s[{M32}:{M32+1}]")
        A.label(lp)
        if wide:
            A(f"buffer_load_dwordx4 {v(vD+12,4)}, {v(vFR)}, s[{WS}:{WS+3}], s{S_T} offen sc1")
            A(f"buffer_load_dwordx4 {v(vD+16,4)}, {v(vFR)}, s[{WS}:{WS+3}], s{S_T} offen offset:768 sc1")
            A("s_waitcnt vmcnt(0)")
            A(f"v_cmp_ne_u64 vcc, s[{NON}:{NON+1}], {v(vD+12,2)}")
            for i in range(1, 4):
                A(f"v_cmp_ne_u64 s[{SW}:{SW+1}], s[{NON}:{NON+1}], {v(vD+12+2*i,2)}")
                A(f"s_or_b64 vcc, vcc, s[{SW}:{SW+1}]")
            A(f"s_cmp_eq_u64 vcc, 0\ns_cbranch_scc1 {ok}")
        else:
            A(f"buffer_load_dwordx2 {v(vD+12,2)}, {v(vL8)}, s[{WS}:{WS+3}], s{S_T} offen sc1")
            A("s_waitcnt vmcnt(0)")
            A(f"v_cmp_ne_u64 vcc, s[{NON}:{NON+1}], {v(vD+12,2)}")
            A(f"s_cbranch_vccz {ok}")
        spin_guard(A, lp)
        A.label(ok)
        A("s_mov_b64 exec, -1")
        A.vm_done = A.vm
        ST(f"poll {tag} ok")
    ST("addr done")
    posted = [0]
    def post_upto(n, stamp=True):
        if n <= posted[0]: return
        A.wait_vm(last[seq[n-1]])
        lds_post(A, 0, n)
        posted[0] = n
        if stamp: ST(f"post {seq[n-1]}")
    load(seq[0]); ST("H0 iss"); load(seq[1]); ST("X0 iss")
    if OPT.get("dbg0", 0): A.wait_vm(last[seq[1]]); ST("A0 landed")
    A(f"s_and_b32 s{S_T}, s{S_W}, 1\ns_lshl_b32 s{S_T}, s{S_T}, 6")
    A(f"v_xor_b32 {v(vXHD)}, s{S_T}, {v(vXD)}")
    A(f"v_and_b32 {v(t0)}, 3, {v(r16)}")
    A(f"v_lshl_add_u32 {v(t0)}, {v(g)}, 3, {v(t0)}")
    A(f"v_mul_u32_u24 {v(vQD)}, {QROW}, {v(t0)}")
    A(f"v_and_b32 {v(t0)}, 1, {v(g)}")
    A(f"v_lshlrev_b32 {v(t1)}, 1, {v(t0)}")
    A(f"v_xor_b32 {v(t1)}, {v(t1)}, {v(l3)}")
    A(f"v_lshl_add_u32 {v(vQD)}, {v(t1)}, 4, {v(vQD)}")
    A(f"s_getpc_b64 s[{SW}:{SW+1}]")
    A.label(f"{kname}_pc")
    A(f"s_sub_u32 s{SW}, s{SW}, {kname}_pc-{kname}\ns_subb_u32 s{SW+1}, s{SW+1}, 0")
    A(f"s_lshr_b32 s{S_T}, s2, 3\ns_and_b32 s{S_T}, s{S_T}, 7\ns_lshl_b32 s{S_T}, s{S_T}, 2\ns_add_u32 s{S_T}, s{S_T}, s{S_W}\ns_lshl_b32 s{S_T}, s{S_T}, 10")
    A(f"v_add_u32 {v(t0)}, s{S_T}, {v(vFR)}")
    A(f"v_min_u32 {v(t0)}, {kname}_end-{kname}-16, {v(t0)}")
    A.vmem(f"global_load_dwordx4 {v(vD,4)}, {v(t0)}, s[{SW}:{SW+1}]")
    ST("pf iss")
    if REPACK:
        A(f"v_bfe_u32 {v(t0)}, {v(vL)}, 2, 1")
        A(f"v_mul_u32_u24 {v(vRS)}, 2688, {v(t0)}")
        A(f"v_mul_u32_u24 {v(t1)}, 56, {v(r8)}")
        A(f"v_add_u32 {v(vRS)}, {v(vRS)}, {v(t1)}")
        A(f"v_lshl_add_u32 {v(vRS)}, {v(l3)}, 4, {v(vRS)}")
        A(f"v_mul_u32_u24 {v(vRD)}, {3*448*64}, {v(r8)}")
        A(f"v_lshl_add_u32 {v(vRD)}, {v(l7)}, 4, {v(vRD)}")
        A(f"s_cmp_ge_u32 s2, 224\ns_cselect_b32 s{S_T}, 0x40000000, 0\ns_cmp_eq_u32 s{S_W}, 3\ns_cselect_b32 s{S_T}, 0x40000000, s{S_T}")
        A(f"v_or_b32 {v(vRS)}, s{S_T}, {v(vRS)}")
        A(f"v_or_b32 {v(vRD)}, s{S_T}, {v(vRD)}")
        A(f"s_mul_i32 s{S_T}, s2, {2*2688}\ns_mul_i32 s{S_T2}, s{S_W}, 896\ns_add_u32 s{S_T}, s{S_T}, s{S_T2}")
        A.vmem(f"buffer_load_dwordx4 {v(vD+4,4)}, {v(vRS)}, s[{QKV}:{QKV+3}], s{S_T} offen")
        last["RL"] = A.vmem(f"buffer_load_dwordx4 {v(vD+8,4)}, {v(vRS)}, s[{QKV}:{QKV+3}], s{S_T} offen offset:448")
    elif SWEEP:
        A(f"s_mul_i32 s{S_T}, s{S_GW}, 1280")
        A.vmem(f"buffer_load_dwordx4 {v(vD,4)}, {v(vFR)}, s[{QKV}:{QKV+3}], s{S_T} offen")
        A("s_mov_b64 exec, 0xffff")
        A.vmem(f"buffer_load_dwordx4 {v(vD,4)}, {v(vFR)}, s[{QKV}:{QKV+3}], s{S_T} offen offset:1024")
        A("s_mov_b64 exec, -1")
    def sweep2():
        A(f"s_mul_i32 s{S_T}, s{S_GW}, 1664")
        A.vmem(f"buffer_load_dwordx4 {v(vD,4)}, {v(vFR)}, s[{W2}:{W2+3}], s{S_T} offen")
        A("s_mov_b32 exec_hi, 0xff")
        A.vmem(f"buffer_load_dwordx4 {v(vD,4)}, {v(vFR)}, s[{W2}:{W2+3}], s{S_T} offen offset:1024")
        A(f"s_mov_b32 exec_hi, 0\ns_lshl_b32 s{S_T}, s{S_GW}, 9")
        A.vmem(f"buffer_load_dwordx4 {v(vD,4)}, {v(vFR)}, s[{WO}:{WO+3}], s{S_T} offen")
        A("s_mov_b32 exec_hi, -1")
    S_CO = 61
    A(f"""s_lshl_b32 s{S_T}, s{S_TT}, 8
s_add_u32 s{S_FLC}, s{S_T}, {WS_FL}
s_lshl_b32 s{S_RF}, s2, 3
s_add_u32 s{S_RF}, s{S_RF}, {WS_FL + 16384}
s_mul_i32 s{S_FO}, s{S_TT}, {4*73728}
s_lshl_b32 s{S_CO}, s{S_CT}, 7
s_mul_i32 s{S_WOB}, s{S_W}, {112*896}
s_add_u32 s{S_WOB}, s{S_WOB}, s{S_CO}
s_mul_i32 s{S_W2B}, s{S_W}, {448*896}
s_add_u32 s{S_W2B}, s{S_W2B}, s{S_CO}""")
    S_FH, S_FOo = 62, 63
    A(f"""s_mul_i32 s{S_T}, s{S_W}, {14*1024}
s_add_u32 s{S_FH}, s{S_FO}, s{S_T}
s_add_u32 s{S_FOo}, s{S_FO}, s{S_M4}
s_add_u32 s{S_FOo}, s{S_FOo}, {56*1024}""")
    ST("rl iss")
    LAG = OPT.get("lag", 2)
    released = [-1]
    def wait_release(r, n):
        if r > released[0]:
            req = max(SEQ[x] for u in UNITS[:r + 2] for x in NEED[u]) + 1
            assert req <= n, (r, req, n)
            post_upto(req)
            lds_wait_min(A, 16, r + 1)
            released[0] = r
    for n in range(2, len(seq)):
        lu = seq[n]
        wait_release(after[lu], n)
        if lu == ("Q", 0) and REPACK:
            post_upto(n)
            A(f"s_mov_b32 s{SW+2}, {WS_FL + 16384}")
            poll("R", SW + 2, 0, wide=True)
        load(lu)
        if n < 8: ST(f"iss {lu}")
        if n == 3:
            post_upto(2)
            if REPACK:
                A.wait_vm(last["RL"])
                A(f"s_mul_i32 s{S_T}, s{S_W}, {448*64}\ns_lshl_b32 s{S_T2}, s2, 7\ns_add_u32 s{S_T}, s{S_T}, s{S_T2}\ns_add_u32 s{S_T}, s{S_T}, {WS_QR}\ns_add_u32 s{S_T2}, s{S_T}, {8*3*448*64}")
                A.vmem(f"buffer_store_dwordx4 {v(vD+4,4)}, {v(vRD)}, s[{WS}:{WS+3}], s{S_T} offen sc1")
                A.vmem(f"buffer_store_dwordx4 {v(vD+8,4)}, {v(vRD)}, s[{WS}:{WS+3}], s{S_T2} offen sc1")
            nonce_load(A, last)
            ST("rs iss")
        if n == 5 and SWEEP: sweep2(); ST("sw2 iss")
        m = n + 1 - LAG
        if m >= 2 and seq[m-1][0] != "H": post_upto(m)
        if posted[0] >= 6 and "nc" not in last:
            last["nc"] = 1
            nonce_check(A, last)
            if REPACK:
                lb = newlab("rp")
                A(f"s_cmp_lg_u32 s{S_W}, 0\ns_cbranch_scc1 {lb}")
                A(f"s_cmp_ge_u32 s2, 224\ns_cbranch_scc1 {lb}")
                sv = (A.vm, A.vm_done, A.ds, A.ds_done)
                lds_wait_min(A, 0, 6)
                publish(A, S_RF, 0)
                A.vm, A.vm_done, A.ds, A.ds_done = sv
                A.label(lb)
                ST("R pub")
    NL = len(seq)
    if OPT.get("lonly", 0):
        post_upto(NL)
        A(f"s_branch {kname}_lfin")
    lb = newlab("act")
    A(f"s_cmp_lt_u32 s{S_CT}, 7\ns_cbranch_scc1 {lb}")
    sv = (A.vm, A.vm_done, A.ds, A.ds_done, posted[0])
    post_upto(NL, False)
    A.vm, A.vm_done, A.ds, A.ds_done, posted[0] = sv
    A(f"s_branch {kname}_lfin")
    A.label(lb)
    NP2 = OPT.get("np2", 6)
    def p2page(i): return p2free[i % NP2][1]
    vPA = 24
    vPA = 32; vG = 40; vB2 = 48
    WB = 64
    RG = 96
    ACB = 224 - 32
    ACB = 0
    NFS = 6
    ACB = RG + 16 * NFS
    FSLOT = {i: i % NFS for i in range(18)}
    def fa(i, j): return RG + 16 * FSLOT[i] + 4 * j
    def fprev(i):
        c = [k for k in range(i) if FSLOT[k] == FSLOT[i]]
        return max(c) if c else -1
    def jobs_W(i):
        ops = []
        def pre():
            if i < NP2: wait_release(p2free[i][0], NL)
            if i < 14: rot_base(S_CB, S_R2, i, 14, 32*896, S_W2B)
            else: rot_base(S_CB, S_R3, i - 14, 4, 28*896, S_WOB)
            for q in range(4):
                last[("W", i)] = dma(S_M4, p2page(i)*PAGE + q*1024, S_CB, 8*q*896, vW2D, W2 if i < 14 else WO)
        return [pre]
    def jobs_F(i):
        def f():
            if i < 14: rot_base(S_CB, S_R2, i, 14, 1024, S_FH)
            else: rot_base(S_CB, S_R3, i - 14, 4, 1024, S_FOo)
            for j in range(4):
                if j: A(f"s_add_u32 s{S_CB}, s{S_CB}, 73728")
                last[("F", i)] = A.vmem(f"buffer_load_dwordx4 {v(fa(i,j),4)}, {v(vFR)}, s[{WS}:{WS+3}], s{S_CB} offen sc1")
        return [f]
    NW0 = OPT.get("nw0", 3)
    for i in range(NW0):
        for f in jobs_W(i): f()
        if i == 0: post_upto(NL - 1)
    post_upto(NL)
    A(f"v_bfe_u32 {v(t0)}, {v(vL)}, 3, 1")
    A(f"v_lshl_add_u32 {v(t0)}, {v(l3)}, 1, {v(t0)}")
    A(f"v_lshlrev_b32 {v(t1)}, 7, {v(r16)}")
    A(f"v_lshl_add_u32 {v(t1)}, {v(t0)}, 4, {v(t1)}")
    poll("H", S_FLC, 0)
    A(f"v_add_u32 {v(vPA)}, s{S_M4}, {v(t1)}")
    A(f"v_xor_b32 {v(vPA+1)}, 16, {v(vPA)}")
    for z in (1, 2):
        for i in range(2): A(f"v_add_u32 {v(vPA+2*z+i)}, {z*65536}, {v(vPA+i)}")
    fi = 0; wi = NW0
    for i in range(min(NFS - 1, 4)):
        for f in jobs_F(i): f()
        fi += 1
    def aw2(buf, t): return WB + 16*buf + 4*t
    rdt = {}
    def reads2(i):
        pg = p2page(i); z = pg // 4; rel = (pg % 4) * PAGE
        A.wait_vm(last[("W", i)])
        for t in range(4):
            for hf in range(2):
                rdt[(i, t)] = A.dsop(f"ds_read_b64_tr_b16 {v(aw2(i&1,t)+2*hf,2)}, {v(vPA+2*z+(t>>1))} offset:{rel + hf*2048 + 8*(t&1)}")
    def small_loads():
        A(f"v_lshlrev_b32 {v(t0)}, 2, {v(c16)}")
        A(f"s_lshl_b32 s{S_T}, s{S_TT}, 8\ns_add_u32 s{S_T}, s{S_T}, {WS_G}")
        for j in range(4):
            A.vmem(f"buffer_load_dword {v(vG+j)}, {v(t0)}, s[{WS}:{WS+3}], s{S_T} offen offset:{64*j} sc1")
        A(f"v_lshlrev_b32 {v(t1)}, 5, {v(g)}")
        A.vmem(f"buffer_load_dwordx4 {v(vB2+8,4)}, {v(t1)}, s[{B2}:{B2+3}], s{S_CO} offen")
        last["SM"] = A.vmem(f"buffer_load_dwordx4 {v(vB2+12,4)}, {v(t1)}, s[{B2}:{B2+3}], s{S_CO} offen offset:16")
    reads2(0)
    for i in range(18):
        while wi < 18 and wi - NP2 < i and wi <= i + NP2 - 1:
            for f in jobs_W(wi): f()
            wi += 1
            break
        while fi < 18 and fprev(fi) < i:
            if fi == 14: poll("O", S_FLC, 8192)
            for f in jobs_F(fi): f()
            fi += 1
            break
        if i == 6: small_loads()
        if i + 1 < 18:
            while wi <= i + 1:
                for f in jobs_W(wi): f()
                wi += 1
            reads2(i + 1)
        A.wait_vm(last[("F", i)])
        if i % 3 == 0: ST(f"p2 step {i}")
        if i == 14:
            A.wait_vm(last["SM"])
            for j in range(4): A(f"v_sub_f32 {v(vG+4+j)}, 1.0, {v(vG+j)}")
            for k in range(7):
                A(f"v_lshlrev_b32 {v(vB2+2*k)}, 16, {v(vB2+8+k)}")
                A(f"v_and_b32 {v(vB2+2*k+1)}, 0xffff0000, {v(vB2+8+k)}")
            A(f"v_lshlrev_b32 {v(vB2+14)}, 16, {v(vB2+15)}")
            A(f"v_and_b32 {v(vB2+15)}, 0xffff0000, {v(vB2+15)}")
            for r in range(0, 16, 2):
                for j in range(4):
                    A(f"v_pk_mul_f32 {v(ACB+16*j+r,2)}, {v(ACB+16*j+r,2)}, {v(vG+4+j-(j&1),2)} op_sel:[0,{j&1}] op_sel_hi:[1,{j&1}]")
            A("s_nop 1")
        for t in range(4):
            A.wait_ds(rdt[(i, t)])
            for j in range(4):
                d = v(ACB + 16*j + 4*t, 4)
                A(f"v_mfma_f32_16x16x32_bf16 {d}, {v(aw2(i&1,t),4)}, {v(fa(i,j),4)}, {'0' if i == 0 else d}")
    assert fi == 18 and wi == 18
    ST("p2 loop done")
    ACA = ACB
    RP = [p2page(k) for k in range(3)]
    RV = RG
    for k in range(3): A(f"v_add_u32 {v(vPA+k)}, {RP[k]*PAGE}, {v(vFR)}")
    for k in range(3): A(f"v_add_u32 {v(vPA+3+k)}, s{S_M4}, {v(vPA+k)}")
    A.nop(4)
    for w in range(4):
        if w < 3: A(f"s_cmp_lg_u32 s{S_W}, {w}\ns_cbranch_scc1 {kname}_w{w+1}")
        for j in range(4):
            if j == w: continue
            k = (j - w - 1) & 3
            for t in range(4):
                A(f"ds_write_b128 {v(vPA+3+k)}, {v(ACA+16*j+4*t,4)} offset:{t*1024}")
        for r in range(16): A(f"v_fma_f32 {v(RV+r)}, {v(vG+4+w)}, {v(vB2+r)}, {v(ACA+16*w+r)}")
        A("s_waitcnt lgkmcnt(0)\ns_barrier")
        for k in range(3):
            srcw = (w - k - 1) & 3
            for t in range(4):
                A(f"ds_read_b128 {v(RV+16+16*k+4*t,4)}, {v(vPA+k)} offset:{srcw*4096 + t*1024}")
        if w < 3:
            A(f"s_branch {kname}_wd")
            A.label(f"{kname}_w{w+1}")
    A.label(f"{kname}_wd")
    A(f"v_mul_u32_u24 {v(t0)}, 896, {v(c16)}")
    A(f"v_add_u32 {v(t0)}, {v(t0)}, {v(t1)}")
    A(f"""s_lshl_b32 s{S_T}, s{S_TT}, 6
s_lshl_b32 s{S_T2}, s{S_W}, 4
s_add_u32 s{S_T}, s{S_T}, s{S_T2}
s_mul_i32 s{S_T}, s{S_T}, 896
s_add_u32 s{S_T}, s{S_T}, s{S_CO}""")
    for k in range(3):
        A(f"s_waitcnt lgkmcnt({8-4*k})")
        for r in range(0, 16, 2):
            A(f"v_pk_add_f32 {v(RV+r,2)}, {v(RV+r,2)}, {v(RV+16+16*k+r,2)}")
    for r in range(8):
        A(f"v_cvt_pk_bf16_f32 {v(WB+r)}, {v(RV+2*r)}, {v(RV+2*r+1)}")
    A(f"buffer_store_dwordx4 {v(WB,4)}, {v(t0)}, s[{OUT}:{OUT+3}], s{S_T} offen")
    A(f"buffer_store_dwordx4 {v(WB+4,4)}, {v(t0)}, s[{OUT}:{OUT+3}], s{S_T} offen offset:16")
    ST("end")
    A.label(f"{kname}_lfin")
    ST.dump(WS, S_W8, vL, vT)
    A.label(f"{kname}_end")
    A("s_endpgm")
    return P.text() + C.text() + L.text(), page, after

def desc(kname, nv, accoff, ns=102):
    return f""".amdhsa_kernel {kname}
  .amdhsa_next_free_vgpr {nv}
  .amdhsa_next_free_sgpr {ns}
  .amdhsa_accum_offset {accoff}
  .amdhsa_group_segment_fixed_size 0
  .amdhsa_kernarg_size 96
  .amdhsa_user_sgpr_count 2
  .amdhsa_user_sgpr_kernarg_segment_ptr 1
  .amdhsa_system_sgpr_workgroup_id_x 1
.end_amdhsa_kernel
"""

if __name__ == "__main__":
    out = sys.argv[1]
    STAMPS = "--stamps" in sys.argv
    for x in sys.argv[2:]:
        if "=" in x:
            k_, v_ = x.split("="); OPT[k_] = v_.split(";") if k_.startswith("sel") else int(v_)
    k = NAME + "_kernel"
    t = f"; @launch grid=(256,1,1) block=(512,1,1) lds=163840\n"
    t += '.amdgcn_target "amdgcn-amd-amdhsa--gfx950"\n.text\n'
    body, page, after = gen(k)
    if "--plan" in sys.argv:
        for lu in page: print(lu, "page", page[lu], "after", UNITS[after[lu]] if after.get(lu, -1) >= 0 else None)
    t += f".globl {k}\n.p2align 8\n.type {k},@function\n" + body
    t += '.section .rodata,"a"\n.p2align 6\n' + desc(k, 256, 256)
    open(out, "w").write(t)
```

```python
import sys
from asmlib import Asm, v, a, s

NAME = "gated_mix__sliding_local_dilated__dense_activation_squared_relu__prompt"
WS_G = 128 * 72 * 1024
WS_FL = WS_G + 8192
WS_QR = WS_FL + 20480
WS_ST = WS_QR + 16 * 3 * 448 * 64
WS_BYTES = WS_ST + 262144
PAGE = 16384
L_BIAS = 8 * PAGE + 14336
L_GATE = L_BIAS + 256
L_FLG = 8 * PAGE + 15872
STAMPS = False
OPT = {}

def srd(A, d, lo, nbytes):
    A(f"s_mov_b32 s{d}, s{lo}")
    A(f"s_and_b32 s{d+1}, s{lo+1}, 0xffff")
    A(f"s_mov_b32 s{d+2}, {nbytes}")
    A(f"s_mov_b32 s{d+3}, 0x20000")

class Stamper:
    def __init__(self, A, vreg, tag, pairs):
        self.A = A; self.n = 0; self.v = vreg; self.tag = tag; self.pairs = pairs
    def __call__(self, what=""):
        if not STAMPS: return
        sel = OPT.get("sel" + self.tag)
        if sel is not None and what != "start" and not any(what.startswith(x) for x in sel): return
        A = self.A
        if self.n == 0:
            A(f"v_mov_b32 v{self.v}, 0")
            A("s_memrealtime s[100:101]")
            A("s_waitcnt lgkmcnt(0)")
            A(f"v_writelane_b32 v{self.v}, s100, 62")
            for p in self.pairs[1:]:
                if not 48 <= p < 72: A(f"s_mov_b32 s{p}, 0")
        assert self.n < len(self.pairs), "too many stamps"
        p = self.pairs[self.n]
        A(f"s_memtime s[{p}:{p+1}]")
        print(f"stamp {self.tag} {self.n}: {what}")
        self.n += 1
    def dump(self, WS, S_W8, vL, vt):
        if not STAMPS: return
        A = self.A
        A("s_mov_b64 exec, -1")
        A("s_memrealtime s[100:101]")
        A("s_waitcnt lgkmcnt(0)")
        A(f"v_writelane_b32 v{self.v}, s100, 63")
        for i in range(self.n): A(f"v_writelane_b32 v{self.v}, s{self.pairs[i]}, {i}")
        A(f"s_and_b32 s100, s{S_W8}, 3\ns_cmp_lg_u32 s100, 0\ns_cbranch_scc1 Lnodump{self.tag}")
        A(f"s_lshl_b32 s100, s2, 1\ns_lshr_b32 s101, s{S_W8}, 2\ns_add_u32 s100, s100, s101\ns_lshl_b32 s100, s100, 8\ns_add_u32 s100, s100, {WS_ST}")
        A(f"v_lshlrev_b32 v{vt}, 2, v{vL}")
        A(f"buffer_store_dword v{self.v}, v{vt}, s[{WS}:{WS+3}], s100 offen")
        A.label(f"Lnodump{self.tag}")

UNITS = [("A", c) for c in range(7)] + [("Q", c) for c in range(7)]
UIDX = {u: i for i, u in enumerate(UNITS)}
NEED = {("A", c): [("H", c), ("X", c)] for c in range(7)}
NEED.update({("Q", c): [("Q", c)] for c in range(7)})
def make_plan():
    page = {}; after = {}
    seq = []
    for c in range(7):
        page[("H", c)] = c % 4; page[("X", c)] = 4 + c % 4
        after[("H", c)] = after[("X", c)] = -1 if c < 4 else UIDX[("A", c - 4)]
        seq += [("H", c), ("X", c)]
    free = [(-1, 8), (-1, 9)]
    for c in range(3, 7): free += [(UIDX[("A", c)], c % 4), (UIDX[("A", c)], 4 + c % 4)]
    for c in range(7):
        lu = ("Q", c)
        free.sort()
        rel, pg = free.pop(0)
        page[lu] = pg; after[lu] = rel
        if c: free.append((UIDX[lu], pg))
        else: assert pg == 8
        seq.append(lu)
    free.sort()
    return page, after, seq, free

def gen(kname):
    page, after, seq, p2free = make_plan()
    SEQ = {lu: i for i, lu in enumerate(seq)}
    REPACK = OPT.get("repack", 1)
    S_W8, S_RB, S_HC, S_TT, S_CT = 3, 4, 5, 6, 7
    X, QKV, W1, WS, WO, W2, OUT, B1, GW, B2 = 8, 12, 16, 20, 24, 28, 32, 36, 40, 44
    KA = 48; DBG = 68
    MP, MA, MB, MFIRST, M32, NON = 72, 74, 76, 78, 80, 82
    S_T, S_T2, S_W, S_HW = 84, 85, 86, 87
    S_SPIN = 92
    P = Asm(); C = Asm(); L = Asm()
    A = P
    vTID, vL, vFR, vST = 0, 1, 2, 3
    vZ, vL8, vN = 4, 5, 6
    vT = 8
    vFL, vFLW = 16, 17
    vFV = 20
    vPV = 18
    lab = [0]
    def newlab(t):
        lab[0] += 1; return f"{kname}_{t}{lab[0]}"
    A.label(kname)
    A(f"s_cmp_ge_u32 s2, 256\ns_cbranch_scc1 {kname}_end")
    A(f"s_load_dwordx16 s[{KA}:{KA+15}], s[0:1], 0")
    A(f"s_load_dwordx8 s[{KA+16}:{KA+23}], s[0:1], 64")
    A(f"v_lshrrev_b32 {v(vT)}, 6, {v(vTID)}")
    A(f"v_and_b32 {v(vL)}, 63, {v(vTID)}")
    A(f"v_readfirstlane_b32 s{S_W8}, {v(vT)}")
    A(f"v_lshlrev_b32 {v(vFR)}, 4, {v(vL)}")
    A(f"v_lshlrev_b32 {v(vL8)}, 3, {v(vL)}")
    A(f"v_mov_b32 {v(vZ)}, 0")
    A(f"v_mov_b32 {v(vFL)}, {L_FLG}")
    A(f"""s_and_b32 s{S_W}, s{S_W8}, 3
s_lshr_b32 s{S_T}, s2, 3
s_and_b32 s{S_RB}, s2, 1
s_lshl_b32 s{S_RB}, s{S_RB}, 3
s_and_b32 s{S_T2}, s{S_T}, 7
s_add_u32 s{S_RB}, s{S_RB}, s{S_T2}
s_bfe_u32 s{S_HC}, s2, 0x20001
s_lshl_b32 s{S_HC}, s{S_HC}, 2
s_lshr_b32 s{S_T2}, s{S_T}, 3
s_add_u32 s{S_HC}, s{S_HC}, s{S_T2}
s_and_b32 s{S_TT}, s2, 7
s_lshl_b32 s{S_TT}, s{S_TT}, 2
s_and_b32 s{S_T2}, s{S_T}, 3
s_add_u32 s{S_TT}, s{S_TT}, s{S_T2}
s_lshr_b32 s{S_CT}, s2, 5
s_mov_b32 s{M32}, -1
s_mov_b32 s{M32+1}, 0
s_mov_b32 s{S_SPIN}, 0""")
    c16, g, r8, l7, l3, r16, t0, t1 = [vT + i for i in range(8)]
    A(f"v_and_b32 {v(c16)}, 15, {v(vL)}")
    A(f"v_lshrrev_b32 {v(g)}, 4, {v(vL)}")
    A(f"v_lshrrev_b32 {v(r8)}, 3, {v(vL)}")
    A(f"v_and_b32 {v(l7)}, 7, {v(vL)}")
    A(f"v_and_b32 {v(l3)}, 3, {v(vL)}")
    A(f"v_lshrrev_b32 {v(r16)}, 2, {v(vL)}")
    A(f"""s_and_b32 s{S_T}, s{S_HC}, 3
s_lshl_b32 s{S_T2}, s{S_T}, 8
s_cmp_eq_u32 s{S_T}, 3
s_cselect_b32 s{S_T2}, 640, s{S_T2}
s_lshr_b32 s{S_T}, s{S_HC}, 2
s_mul_i32 s{S_T}, s{S_T}, 896
s_add_u32 s{S_HW}, s{S_T}, s{S_T2}
s_lshl_b32 s{S_T}, s{S_W}, 2
s_add_u32 s{S_T}, s{S_T}, {L_FLG}""")
    A(f"v_mov_b32 {v(vFLW)}, s{S_T}")
    A(f"s_cmp_ge_u32 s{S_W8}, 4\ns_cbranch_scc1 {kname}_L")

    def spin_guard(A, target):
        A(f"s_add_u32 s{S_SPIN}, s{S_SPIN}, 1\ns_cmp_lt_u32 s{S_SPIN}, 0x200000\ns_cbranch_scc1 {target}")
    def lds_post(A, off, val):
        A(f"v_mov_b32 {v(vPV)}, {val}")
        A("s_mov_b64 exec, 1")
        A.dsop(f"ds_write_b32 {v(vFLW)}, {v(vPV)} offset:{off}")
        A("s_mov_b64 exec, -1")
    def lds_flag_read(A, off):
        A("s_mov_b64 exec, 1")
        t = A.dsop(f"ds_read_b128 {v(vFV,4)}, {v(vFL)} offset:{off}")
        A("s_mov_b64 exec, -1")
        return t
    def lds_wait_min(A, off, val, ticket=None):
        lp, ok = newlab("lw"), newlab("lk")
        if ticket is None: ticket = lds_flag_read(A, off)
        A.wait_ds(ticket)
        A.label(lp)
        A(f"v_min3_u32 {v(vFV)}, {v(vFV)}, {v(vFV+1)}, {v(vFV+2)}")
        A(f"v_min_u32 {v(vFV)}, {v(vFV)}, {v(vFV+3)}")
        A("s_nop 0")
        A(f"v_readfirstlane_b32 s{S_T2}, {v(vFV)}")
        A(f"s_cmp_ge_u32 s{S_T2}, {val}\ns_cbranch_scc1 {ok}")
        A(f"s_sleep 1\ns_mov_b64 exec, 1\nds_read_b128 {v(vFV,4)}, {v(vFL)} offset:{off}\ns_mov_b64 exec, -1\ns_waitcnt lgkmcnt(0)")
        spin_guard(A, lp)
        A.label(ok)
    def nonce_load(A, last):
        last["N"] = A.vmem(f"global_load_dwordx2 {v(vN,2)}, {v(vZ)}, s[{DBG}:{DBG+1}] sc1")
    def nonce_check(A, last):
        lp, ok = newlab("nc"), newlab("nk")
        A.wait_vm(last["N"])
        A.label(lp)
        A(f"v_readfirstlane_b32 s{NON}, {v(vN)}\nv_readfirstlane_b32 s{NON+1}, {v(vN+1)}")
        A(f"s_cmp_lg_u32 s{NON}, 0\ns_cbranch_scc1 {ok}")
        A(f"global_load_dwordx2 {v(vN,2)}, {v(vZ)}, s[{DBG}:{DBG+1}] sc1\ns_waitcnt vmcnt(0)")
        spin_guard(A, lp)
        A.label(ok)
    def publish(A, sreg, off):
        A(f"v_mov_b32 {v(vN)}, s{NON}\nv_mov_b32 {v(vN+1)}, s{NON+1}")
        A(f"s_add_u32 s{S_T}, s{sreg}, {off}")
        A("s_mov_b64 exec, 1")
        A.vmem(f"buffer_store_dwordx2 {v(vN,2)}, {v(vZ)}, s[{WS}:{WS+3}], s{S_T} offen sc1")
        A("s_mov_b64 exec, -1")

    A = C; ST = Stamper(C, vST, "C", [98, 8, 10, 12, 14, 16, 18, 24, 26, 28, 30, 32, 34, 36, 38, 40, 42, 44, 46, 88, 90, 94, 96]); last = {}
    S_FR, S_FLP, S_GT, S_OS, S_CO = 48, 49, 50, 51, 52
    S_HS = 54
    vHA, vXA, vXO, vFRa, vFRb, vGA = 24, 28, 30, 32, 33, 34
    XT = 36
    vQA, vXH = 36, 45
    XR = 52
    ACC = 164
    WR = 228; NWR = 7
    ACG = 8
    def ax(ks, tb): return XR + 4 * (2 * ks + tb)
    def axa(ks, jj): return ax(ks, jj) if jj < 2 else XT + 8 * (ks & 1) + 4 * (jj - 2)
    def ach(jj, bb): return ACC + 4 * (4 * jj + bb)
    def acq(tb, t): return ACC + 4 * (6 * tb + t)
    ACC_HL = ACC + 48
    vBIAS = XR + 80
    vRAW = XR + 64
    ST("start")
    A(f"v_lshl_add_u32 {v(t0)}, {v(vL)}, 2, {v(vFL)}")
    A("s_mov_b64 exec, 0xfff")
    A(f"ds_write_b32 {v(t0)}, {v(vZ)}")
    A("s_mov_b64 exec, -1")
    A("s_waitcnt lgkmcnt(0)")
    if OPT.get("tlb", 0):
        for i, off in enumerate((0, 8, 2, 12, 4, 10, 16, 14, 18, 20)):
            A(f"s_load_dword s{S_SPIN+1}, s[{KA+off}:{KA+off+1}], 0")
        for k in range(6):
            A(f"s_add_u32 s{S_T}, s{KA+22}, {k << 21}\ns_addc_u32 s{S_T2}, s{KA+23}, 0")
            A(f"s_load_dword s{S_SPIN+1}, s[{S_T}:{S_T2}], 0")
    A("s_barrier")
    A(f"v_lshlrev_b32 {v(t1)}, 8, {v(r16)}")
    A(f"v_lshl_add_u32 {v(t1)}, {v(l3)}, 3, {v(t1)}")
    A(f"v_and_b32 {v(t0)}, 7, {v(r16)}")
    A(f"v_lshl_add_u32 {v(vHA)}, {v(t0)}, 5, {v(t1)}")
    A(f"s_and_b32 s{S_T}, s{S_W}, 1\ns_lshl_b32 s{S_T}, s{S_T}, 7")
    A(f"v_xor_b32 {v(vHA)}, s{S_T}, {v(vHA)}")
    for b in range(1, 4): A(f"v_xor_b32 {v(vHA+b)}, {32*b}, {v(vHA)}")
    A(f"v_xor_b32 {v(t0)}, {v(g)}, {v(l7)}")
    A(f"v_lshlrev_b32 {v(t1)}, 7, {v(c16)}")
    A(f"v_lshl_add_u32 {v(t1)}, {v(t0)}, 4, {v(t1)}")
    A(f"s_lshl_b32 s{S_T}, s{S_W}, 12\ns_add_u32 s{S_T2}, s{S_T}, {4*PAGE}")
    A(f"v_add_u32 {v(vXA)}, s{S_T2}, {v(t1)}")
    A(f"v_xor_b32 {v(vXA+1)}, 64, {v(vXA)}")
    A(f"v_xor_b32 {v(vXO)}, 0x1000, {v(vXA)}")
    A(f"v_xor_b32 {v(vXO+1)}, 64, {v(vXO)}")
    A(f"v_lshlrev_b32 {v(vGA)}, 4, {v(g)}")
    A(f"v_add_u32 {v(vGA)}, {L_GATE}, {v(vGA)}")
    A(f"s_and_b32 s{S_T}, s{S_W}, 1\ns_lshl_b32 s{S_T}, s{S_T}, 7\ns_add_u32 s{S_T}, s{S_T}, {L_BIAS}")
    A(f"v_lshlrev_b32 {v(WR)}, 3, {v(g)}")
    A(f"v_add_u32 {v(WR)}, s{S_T}, {v(WR)}")
    A(f"v_and_b32 {v(t0)}, 1, {v(c16)}")
    A(f"v_cmp_eq_u32 s[{MP}:{MP+1}], 1, {v(t0)}")
    A(f"v_lshl_add_u32 {v(t1)}, {v(g)}, 2, {v(t0)}")
    A(f"v_cmp_le_u32 s[{MA}:{MA+1}], {v(t1)}, {v(c16)}")
    A(f"v_add_u32 {v(t1)}, 2, {v(t1)}")
    A(f"v_cmp_le_u32 s[{MB}:{MB+1}], {v(t1)}, {v(c16)}")
    srd(A, WS, KA+22, WS_BYTES)
    A(f"""s_or_b32 s{S_T}, s{S_RB}, s{S_W}
s_cmp_eq_u32 s{S_T}, 0
s_cselect_b32 s{MFIRST}, -1, 0
s_cselect_b32 s{MFIRST+1}, -1, 0
s_lshl_b32 s{S_T}, s{S_RB}, 3
s_lshl_b32 s{S_T2}, s{S_W}, 1
s_add_u32 s{S_T}, s{S_T}, s{S_T2}
s_mul_i32 s{S_FR}, s{S_T}, {72*1024}
s_lshl_b32 s{S_GT}, s{S_T}, 6
s_add_u32 s{S_GT}, s{S_GT}, {WS_G}
s_xor_b32 s{S_T}, s{S_T}, 2
s_mul_i32 s{S_CO}, s{S_T}, {72*1024}
s_lshl_b32 s{S_T}, s{S_HW}, 4
s_and_b32 s{S_T2}, s{S_W}, 1
s_lshl_b32 s{S_T2}, s{S_T2}, 11
s_add_u32 s{S_T}, s{S_T}, s{S_T2}
s_add_u32 s{S_HS}, s{S_FR}, s{S_T}
s_add_u32 s{S_HS+1}, s{S_HS}, 73728
s_add_u32 s{S_HS+2}, s{S_CO}, s{S_T}
s_add_u32 s{S_HS+3}, s{S_HS+2}, 73728
s_and_b32 s{S_T}, s{S_HC}, 3
s_lshl_b32 s{S_T}, s{S_T}, 1
s_and_b32 s{S_T2}, s{S_W}, 1
s_add_u32 s{S_T}, s{S_T}, s{S_T2}
s_cmp_eq_u32 s{S_T}, 6
s_cselect_b32 s{S_T2}, 0x40000000, 0""")
    A(f"v_or_b32 {v(vFRa)}, s{S_T2}, {v(vFR)}")
    A(f"s_cmp_eq_u32 s{S_T}, 5\ns_cselect_b32 s{S_T2}, 0x40000000, 0")
    A(f"v_or_b32 {v(vFRb)}, s{S_T2}, {v(vFR)}")
    A(f"""s_lshl_b32 s{S_T}, s{S_HC}, 10
s_add_u32 s{S_OS}, s{S_FR}, s{S_T}
s_add_u32 s{S_OS}, s{S_OS}, {56*1024}
s_lshl_b32 s{S_T}, s{S_RB}, 1
s_lshr_b32 s{S_T2}, s{S_W}, 1
s_add_u32 s{S_T}, s{S_T}, s{S_T2}
s_lshl_b32 s{S_T}, s{S_T}, 4
s_add_u32 s{S_T}, s{S_T}, s{S_HC}
s_lshl_b32 s{S_T}, s{S_T}, 1
s_and_b32 s{S_T2}, s{S_W}, 1
s_add_u32 s{S_T}, s{S_T}, s{S_T2}
s_lshl_b32 s{S_T}, s{S_T}, 3
s_add_u32 s{S_FLP}, s{S_T}, {WS_FL}""")
    ST("pro done")
    if OPT.get("lonly", 0):
        lds_post(A, 16, 99)
        A(f"s_branch {kname}_cfin")

    known = [0]
    pre = {}
    def acquire(u):
        val = max(SEQ[lu] for lu in NEED[u]) + 1
        lds_wait_min(A, 0, val, pre.pop("t", None))
        ST(f"acq{u}")
    def release(u):
        lds_post(A, 16, UIDX[u] + 1)
    class Frag:
        def __init__(self, unit, reads, mf): self.unit = unit; self.reads = reads; self.mf = mf
    done = set()
    def run_frags(frags, LA, hooks={}):
        n = len(frags); issued = 0; tk = [None]*n
        state = run_frags.seq
        def issue(i):
            f = frags[i]
            if f.unit not in done:
                acquire(f.unit); done.add(f.unit)
            tk[i] = f.reads(WR + 4*((state + i) % NWR))
            if i + 3 < n and frags[i+3].unit != f.unit and frags[i+2].unit == f.unit: pre["t"] = lds_flag_read(A, 0)
        for i in range(n):
            while issued < min(n, i + LA + 1):
                issue(issued); issued += 1
            A.wait_ds(tk[i])
            frags[i].mf(WR + 4*((state + i) % NWR))
            if i == n - 1 or frags[i+1].unit != frags[i].unit: release(frags[i].unit)
            if i in hooks: hooks[i]()
        run_frags.seq = (state + n) % NWR
    run_frags.seq = 0
    def trr(dst, va, off): return A.dsop(f"ds_read_b64_tr_b16 {v(dst,2)}, {v(va)} offset:{off}")
    acquire(("A", 0)); done.add(("A", 0))
    for b in range(4): tkb = A.dsop(f"ds_read_b64 {v(vRAW+2*b,2)}, {v(WR)} offset:{32*b}")
    A.wait_ds(tkb)
    for i in range(8):
        A(f"v_lshlrev_b32 {v(vBIAS+2*i)}, 16, {v(vRAW+i)}")
        A(f"v_and_b32 {v(vBIAS+2*i+1)}, 0xffff0000, {v(vRAW+i)}")
    fr = []
    for ks in range(14):
        c, s2 = ks // 2, ks % 2
        for b in range(5):
            def reads(r, ks=ks, c=c, s2=s2, b=b):
                if b == 0:
                    for jj in range(4):
                        A.dsop(f"ds_read_b128 {v(axa(ks,jj),4)}, {v((vXA if jj < 2 else vXO)+s2)} offset:{(page[('X',c)]-4)*PAGE + (jj&1)*2048}")
                if b == 4: return A.dsop(f"ds_read_b128 {v(r,4)}, {v(vGA)} offset:{64*ks}")
                for hf in range(2): t = trr(r + 2*hf, vHA + b, page[("H", c)]*PAGE + (32*s2 + 16*hf)*256)
                return t
            def mf(r, ks=ks, b=b):
                if b == 4:
                    for tb in range(2):
                        d = v(ACG + 4*tb, 4)
                        A(f"v_mfma_f32_16x16x32_bf16 {d}, {v(r,4)}, {v(ax(ks,tb),4)}, {d if ks else '0'}")
                    return
                for jj in range(4):
                    d = v(ach(jj, b), 4)
                    A(f"v_mfma_f32_16x16x32_bf16 {d}, {v(r,4)}, {v(axa(ks,jj),4)}, {d if ks else v(vBIAS+4*b,4)}")
            fr.append(Frag(("A", c), reads, mf))
    run_frags(fr, 5, hooks={30: lambda: nonce_load(A, last)})
    ST("A done")
    for pp in range(2):
        for jj in range(4):
            for bb in (2*pp, 2*pp + 1):
                r = ach(jj, bb)
                for i in range(4): A(f"v_max_f32 {v(r+i)}, 0, {v(r+i)}")
                A(f"v_pk_mul_f32 {v(r,2)}, {v(r,2)}, {v(r,2)}")
                A(f"v_pk_mul_f32 {v(r+2,2)}, {v(r+2,2)}, {v(r+2,2)}")
                dst = ach(jj, 2*pp) + 2 * (bb & 1)
                A(f"v_cvt_pk_bf16_f32 {v(dst)}, {v(r)}, {v(r+1)}")
                A(f"v_cvt_pk_bf16_f32 {v(dst+1)}, {v(r+2)}, {v(r+3)}")
            last["HS"] = A.vmem(f"buffer_store_dwordx4 {v(ach(jj,2*pp),4)}, {v(vFRb if pp else vFRa)}, s[{WS}:{WS+3}], s{S_HS+jj} offen offset:{1024*pp} sc1")
    for tb in range(2): A(f"v_mul_f32 {v(ACG+4*tb)}, 0xbfb8aa3b, {v(ACG+4*tb)}")
    for tb in range(2): A(f"v_exp_f32 {v(ACG+4*tb)}, {v(ACG+4*tb)}")
    A(f"v_lshrrev_b32 {v(ACG+1)}, 1, {v(vL8)}")
    for tb in range(2): A(f"v_add_f32 {v(ACG+4*tb)}, 1.0, {v(ACG+4*tb)}")
    for tb in range(2): A(f"v_rcp_f32 {v(ACG+4*tb)}, {v(ACG+4*tb)}")
    lb = newlab("g")
    A(f"s_cmp_lg_u32 s{S_HC}, 2\ns_cbranch_scc1 {lb}")
    A("s_mov_b64 exec, 0xffff")
    for tb in range(2): A(f"buffer_store_dword {v(ACG+4*tb)}, {v(ACG+1)}, s[{WS}:{WS+3}], s{S_GT} offen offset:{64*tb} sc1")
    A("s_mov_b64 exec, -1")
    A.label(lb)
    ST("H epi done")
    q0, q1, q2, q3 = 9, 10, 11, 13
    A(f"v_lshrrev_b32 {v(q0)}, 2, {v(vL)}")
    A(f"v_bfe_u32 {v(q1)}, {v(vL)}, 4, 1")
    A(f"v_and_b32 {v(q2)}, 3, {v(vL)}")
    A(f"v_lshlrev_b32 {v(vQA)}, 6, {v(q0)}")
    A(f"v_lshl_add_u32 {v(vQA)}, {v(q1)}, 5, {v(vQA)}")
    A(f"v_lshl_add_u32 {v(vQA)}, {v(q2)}, 3, {v(vQA)}")
    A(f"v_xor_b32 {v(vQA+1)}, 32, {v(vQA)}")
    A(f"""s_and_b32 s{S_T}, s{S_W}, 1
s_lshl_b32 s{S_T}, s{S_T}, 5
s_lshr_b32 s{S_T2}, s{S_W}, 1
s_lshl_b32 s{S_T2}, s{S_T2}, 12""")
    A(f"v_xor_b32 {v(vQA+2)}, s{S_T}, {v(vQA)}")
    A(f"v_add_u32 {v(vQA+2)}, s{S_T2}, {v(vQA+2)}")
    A(f"v_and_b32 {v(vXH)}, 0x7ff, {v(vXA)}")
    A(f"v_xor_b32 {v(vXH+1)}, 64, {v(vXH)}")
    for z in (1, 2):
        for i in range(3): A(f"v_add_u32 {v(vQA+3*z+i)}, {z*65536}, {v(vQA+i)}")
        for i in range(2): A(f"v_add_u32 {v(vXH+2*z+i)}, {z*65536}, {v(vXH+i)}")
    nonce_check(A, last)
    fr = []
    for ks in range(14):
        c, s2 = ks // 2, ks % 2; pg = page[("Q", c)]; z = pg // 4; rel = (pg % 4) * PAGE
        hold = {}
        for f in range(8):
            def reads(r, ks=ks, s2=s2, f=f, z=z, rel=rel, hold=hold):
                if f == 6:
                    hold["x"] = r
                    return A.dsop(f"ds_read_b128 {v(r,4)}, {v(vXH+2*z+s2)} offset:{rel + 12288}")
                va = vQA + 3*z + (2 if f == 7 else (f & 1)); ro = 4096 if f == 7 else 4096*(f//2)
                for hf in range(2): t = trr(r + 2*hf, va, rel + ro + (32*s2 + 16*hf)*64)
                return t
            def mf(r, ks=ks, f=f, hold=hold):
                if f == 6: return
                if f == 7:
                    d = v(ACC_HL, 4)
                    A(f"v_mfma_f32_16x16x32_bf16 {d}, {v(r,4)}, {v(hold['x'],4)}, {d if ks else '0'}")
                    return
                for tb in range(2):
                    d = v(acq(tb, f), 4); cc = d if ks else "0"
                    wf, xf = v(r, 4), v(ax(ks, tb), 4)
                    A(f"v_mfma_f32_16x16x32_bf16 {d}, {xf}, {wf}, {cc}" if f >= 4 else f"v_mfma_f32_16x16x32_bf16 {d}, {wf}, {xf}, {cc}")
            fr.append(Frag(("Q", c), reads, mf))
    def pubH():
        A.wait_vm_all(); publish(A, S_FLP, 0); ST("H pub")
    run_frags(fr, NWR - 2, hooks={OPT.get("pubH", 8): pubH})
    ST("B done")
    XCH = 8 * PAGE
    E = XR
    KP, QP, VP, HLP, vXCA = E, E + 12, E + 20, E + 32, E + 34
    SS = E + 40
    TT_ = E + 56
    PPp = E + 64
    OO = E + 72
    OP = E + 88
    vG3, vSEL = E + 96, E + 97
    u0, u1, u2 = E + 104, E + 105, E + 106
    tkc = lds_flag_read(A, 16)
    def pk(dst, src):
        A(f"v_cvt_pk_bf16_f32 {v(dst)}, {v(src)}, {v(src+1)}")
        A(f"v_cvt_pk_bf16_f32 {v(dst+1)}, {v(src+2)}, {v(src+3)}")
    A(f"s_lshl_b32 s{S_T}, s{S_W}, 11\ns_add_u32 s{S_T}, s{S_T}, {XCH}")
    A(f"v_add_u32 {v(vXCA)}, s{S_T}, {v(vFR)}")
    A(f"v_add_u32 {v(vXCA+1)}, s{S_T}, {v(vL8)}")
    pk(KP + 8, acq(1, 2)); pk(KP + 10, acq(1, 3))
    pk(VP + 4, acq(1, 4)); pk(VP + 10, acq(1, 5))
    lds_wait_min(A, 16, UIDX[("Q", 0)] + 1, tkc)
    pk(HLP, ACC_HL)
    A.dsop(f"ds_write_b128 {v(vXCA)}, {v(KP+8,4)} offset:2048")
    A.dsop(f"ds_write_b64 {v(vXCA+1)}, {v(VP+4,2)} offset:{2048+1024}")
    A.dsop(f"ds_write_b64 {v(vXCA+1)}, {v(VP+10,2)} offset:{2048+1536}")
    A(f"s_cmp_ge_u32 s{S_W}, 2\ns_cbranch_scc1 {kname}_hv")
    A(f"s_lshl_b32 s{S_T}, s{S_W}, 3\ns_add_u32 s{S_T}, s{S_T}, {XCH}")
    A(f"v_add_u32 {v(vXCA+2)}, s{S_T}, {v(vFR)}")
    A(f"ds_write_b64 {v(vXCA+2)}, {v(HLP,2)}")
    A(f"s_branch {kname}_hd")
    A.label(f"{kname}_hv")
    A(f"s_and_b32 s{S_T}, s{S_W}, 1\ns_lshl_b32 s{S_T}, s{S_T}, 9\ns_add_u32 s{S_T}, s{S_T}, {XCH+1024}")
    A(f"v_bfe_u32 {v(vXCA+2)}, {v(vL)}, 2, 2")
    A(f"v_lshlrev_b32 {v(vXCA+2)}, 7, {v(vXCA+2)}")
    A(f"v_lshrrev_b32 {v(vXCA+3)}, 4, {v(vL)}")
    A(f"v_lshl_add_u32 {v(vXCA+2)}, {v(vXCA+3)}, 5, {v(vXCA+2)}")
    A(f"v_and_b32 {v(vXCA+3)}, 3, {v(vL)}")
    A(f"v_lshl_add_u32 {v(vXCA+2)}, {v(vXCA+3)}, 1, {v(vXCA+2)}")
    A(f"v_add_u32 {v(vXCA+2)}, s{S_T}, {v(vXCA+2)}")
    A(f"ds_write_b16 {v(vXCA+2)}, {v(HLP)}")
    A(f"ds_write_b16_d16_hi {v(vXCA+2)}, {v(HLP)} offset:8")
    A(f"ds_write_b16 {v(vXCA+2)}, {v(HLP+1)} offset:16")
    A(f"ds_write_b16_d16_hi {v(vXCA+2)}, {v(HLP+1)} offset:24")
    A.label(f"{kname}_hd")
    lds_post(A, 32, 1)
    A.ds_done = 0 if False else A.ds_done
    A(f"v_lshrrev_b32 {v(u0)}, 4, {v(vL)}")
    A(f"v_cmp_eq_u32 vcc, 3, {v(u0)}")
    A(f"v_mov_b32 {v(u0)}, 0x0c0c0100\nv_mov_b32 {v(u1)}, 0x01000c0c\nv_mov_b32 {v(u2)}, 0x0c0c0c0c")
    A(f"v_cndmask_b32 {v(vG3)}, -1, 0, vcc")
    A(f"v_cndmask_b32 {v(u0)}, {v(u0)}, {v(u1)}, s[{MP}:{MP+1}]")
    A(f"v_cndmask_b32 {v(vSEL+0)}, {v(u0)}, {v(u2)}, s[{MA}:{MA+1}]")
    A(f"v_cndmask_b32 {v(vSEL+2)}, {v(u2)}, {v(u0)}, s[{MA}:{MA+1}]")
    A(f"v_mov_b32 {v(u0)}, 0x0c0c0302\nv_mov_b32 {v(u1)}, 0x03020c0c")
    A(f"v_cndmask_b32 {v(u0)}, {v(u0)}, {v(u1)}, s[{MP}:{MP+1}]")
    A(f"v_cndmask_b32 {v(vSEL+1)}, {v(u0)}, {v(u2)}, s[{MB}:{MB+1}]")
    A(f"v_cndmask_b32 {v(vSEL+3)}, {v(u2)}, {v(u0)}, s[{MB}:{MB+1}]")
    pk(KP + 4, acq(0, 2)); pk(KP + 6, acq(0, 3))
    pk(VP + 2, acq(0, 4)); pk(VP + 8, acq(0, 5))
    for tb in (1, 0):
        pk(QP + 4*tb, acq(tb, 0)); pk(QP + 2 + 4*tb, acq(tb, 1))
        A(f"v_and_b32 {v(QP+2+4*tb)}, {v(vG3)}, {v(QP+2+4*tb)}")
        A(f"v_and_b32 {v(QP+3+4*tb)}, {v(vG3)}, {v(QP+3+4*tb)}")
    A.wait_ds_all()
    lds_wait_min(A, 32, 1)
    A.dsop(f"ds_read_b128 {v(KP,4)}, {v(vXCA)}")
    A.dsop(f"ds_read_b64 {v(VP,2)}, {v(vXCA+1)} offset:1024")
    tkx = A.dsop(f"ds_read_b64 {v(VP+6,2)}, {v(vXCA+1)} offset:1536")
    A(f"s_add_u32 s{S_GT}, s{S_OS}, 73728")
    CSC = "0x3e8b97f6"
    def S_(tb, cur): return SS + 8*tb + 4*cur
    A(f"v_mfma_f32_16x16x32_bf16 {v(S_(1,0),4)}, {v(KP+4,4)}, {v(QP+4,4)}, 0")
    A(f"v_mfma_f32_16x16x32_bf16 {v(S_(1,1),4)}, {v(KP+8,4)}, {v(QP+4,4)}, 0")
    A(f"v_mfma_f32_16x16x32_bf16 {v(S_(0,1),4)}, {v(KP+4,4)}, {v(QP,4)}, 0")
    A.wait_ds(tkx)
    A(f"v_mfma_f32_16x16x32_bf16 {v(S_(0,0),4)}, {v(KP,4)}, {v(QP,4)}, 0")
    A(f"v_mov_b32 {v(u0)}, 0xf149f2ca")
    A.nop(5)
    def both(fn):
        for tb in (1, 0): fn(tb, TT_ + 4*tb, TT_ + 4*tb + 1, TT_ + 4*tb + 2, TT_ + 4*tb + 3)
    both(lambda tb, tA, tB, tC, tD: A(f"v_cndmask_b32 {v(tC)}, {v(S_(tb,1))}, {v(S_(tb,1)+1)}, s[{MP}:{MP+1}]\nv_cndmask_b32 {v(tD)}, {v(S_(tb,1)+2)}, {v(S_(tb,1)+3)}, s[{MP}:{MP+1}]"))
    both(lambda tb, tA, tB, tC, tD: A(f"v_cndmask_b32 {v(tA)}, {v(S_(tb,0))}, {v(S_(tb,0)+1)}, s[{MP}:{MP+1}]\nv_cndmask_b32 {v(tB)}, {v(S_(tb,0)+2)}, {v(S_(tb,0)+3)}, s[{MP}:{MP+1}]"))
    A(f"v_cndmask_b32 {v(TT_)}, {v(TT_)}, {v(u0)}, s[{MFIRST}:{MFIRST+1}]")
    A(f"v_cndmask_b32 {v(TT_+1)}, {v(TT_+1)}, {v(u0)}, s[{MFIRST}:{MFIRST+1}]")
    both(lambda tb, tA, tB, tC, tD: A(f"v_cndmask_b32 {v(tA)}, {v(tA)}, {v(tC)}, s[{MA}:{MA+1}]\nv_cndmask_b32 {v(tB)}, {v(tB)}, {v(tD)}, s[{MB}:{MB+1}]"))
    both(lambda tb, tA, tB, tC, tD: A(f"v_max_f32 {v(tC)}, {v(tA)}, {v(tB)}"))
    def xreduce(op):
        for sw in ("v_permlane16_swap_b32", "v_permlane32_swap_b32"):
            both(lambda tb, tA, tB, tC, tD: A(f"v_mov_b32 {v(tD)}, {v(tC)}"))
            A("s_nop 0")
            both(lambda tb, tA, tB, tC, tD: A(f"{sw} {v(tC)}, {v(tD)}"))
            A("s_nop 0")
            both(lambda tb, tA, tB, tC, tD: A(f"{op} {v(tC)}, {v(tC)}, {v(tD)}"))
    xreduce("v_max_f32")
    both(lambda tb, tA, tB, tC, tD: A(f"v_sub_f32 {v(tA)}, {v(tA)}, {v(tC)}\nv_sub_f32 {v(tB)}, {v(tB)}, {v(tC)}"))
    both(lambda tb, tA, tB, tC, tD: A(f"v_mul_f32 {v(tA)}, {CSC}, {v(tA)}\nv_mul_f32 {v(tB)}, {CSC}, {v(tB)}"))
    both(lambda tb, tA, tB, tC, tD: A(f"v_exp_f32 {v(tA)}, {v(tA)}\nv_exp_f32 {v(tB)}, {v(tB)}"))
    A("s_nop 0")
    both(lambda tb, tA, tB, tC, tD: A(f"v_add_f32 {v(tC)}, {v(tA)}, {v(tB)}"))
    xreduce("v_add_f32")
    both(lambda tb, tA, tB, tC, tD: A(f"v_rcp_f32 {v(tC)}, {v(tC)}"))
    A("s_nop 0")
    both(lambda tb, tA, tB, tC, tD: A(f"v_mul_f32 {v(tC)}, {v(tC)}, {v(ACG+4*tb)}"))
    both(lambda tb, tA, tB, tC, tD: A(f"v_mul_f32 {v(tA)}, {v(tA)}, {v(tC)}\nv_mul_f32 {v(tB)}, {v(tB)}, {v(tC)}"))
    both(lambda tb, tA, tB, tC, tD: A(f"v_cvt_pk_bf16_f32 {v(tA)}, {v(tA)}, {v(tB)}"))
    both(lambda tb, tA, tB, tC, tD: A("\n".join(f"v_perm_b32 {v(PPp+4*tb+i)}, {v(tA)}, {v(tA)}, {v(vSEL+i)}" for i in range(4))))
    A("s_nop 0")
    for tb in (1, 0):
        A(f"v_mfma_f32_16x16x32_bf16 {v(OO+8*tb,4)}, {v(VP+2*tb,4)}, {v(PPp+4*tb,4)}, 0")
        A(f"v_mfma_f32_16x16x32_bf16 {v(OO+8*tb+4,4)}, {v(VP+6+2*tb,4)}, {v(PPp+4*tb,4)}, 0")
    A.nop(6)
    for tb in (1, 0):
        op = OP + 4*tb
        pk(op, OO + 8*tb); pk(op + 2, OO + 8*tb + 4)
        A(f"v_and_b32 {v(op+2)}, {v(vG3)}, {v(op+2)}")
        A(f"v_and_b32 {v(op+3)}, {v(vG3)}, {v(op+3)}")
        last["OS"] = A.vmem(f"buffer_store_dwordx4 {v(op,4)}, {v(vFR)}, s[{WS}:{WS+3}], s{S_OS if tb == 0 else S_GT} offen sc1")
    ST("attn done")
    A.wait_vm_all()
    publish(A, S_FLP, 8192)
    ST("O pub")
    A.label(f"{kname}_cfin")
    ST.dump(WS, S_W8, vL, vT)
    A("s_endpgm")

    A = L; ST = Stamper(L, vST, "L", [98, 72, 74, 76, 78, 64, 66, 70]); last = {}
    A.label(f"{kname}_L")
    S_XO, S_HO, S_QO, S_XH, S_M4, S_M1, S_MXH, S_FLC, S_FO, S_WOB, S_W2B, S_RF, S_GW = 48, 49, 50, 51, 52, 53, 54, 55, 56, 57, 58, 59, 60
    SW = 88
    vXD, vXHD, vHD0, vHD1, vQD, vW2D, vRS, vRD = 24, 25, 26, 27, 28, 29, 30, 31
    vD = 32
    ST("start")
    A(f"v_mul_u32_u24 {v(t1)}, 896, {v(r8)}")
    A(f"v_xor_b32 {v(t0)}, {v(l7)}, {v(r8)}")
    A(f"v_lshl_add_u32 {v(vXD)}, {v(t0)}, 4, {v(t1)}")
    A(f"v_and_b32 {v(t0)}, 1, {v(g)}")
    A(f"v_xor_b32 {v(t0)}, {v(t0)}, {v(l7)}")
    A(f"v_lshl_add_u32 {v(vW2D)}, {v(t0)}, 4, {v(t1)}")
    A(f"v_mul_u32_u24 {v(t1)}, 3584, {v(g)}")
    A(f"v_lshlrev_b32 {v(t0)}, 1, {v(g)}")
    A(f"v_xor_b32 {v(t0)}, {v(t0)}, {v(c16)}")
    A(f"v_lshl_add_u32 {v(vHD0)}, {v(t0)}, 4, {v(t1)}")
    A(f"v_xor_b32 {v(vHD1)}, 0x80, {v(vHD0)}")
    A("s_waitcnt lgkmcnt(0)")
    A("s_barrier")
    srd(A, X, KA, 2048 * 896)
    srd(A, W1, KA+8, 448 * 3584)
    srd(A, QKV, KA+2, 448 * 2688)
    srd(A, WO, KA+4, 448 * 896)
    srd(A, W2, KA+12, 1792 * 896)
    srd(A, B1, KA+10, 3584)
    srd(A, GW, KA+16, 896)
    srd(A, B2, KA+14, 896)
    srd(A, OUT, KA+18, 2048 * 896)
    srd(A, WS, KA+22, WS_BYTES)
    SWEEP = OPT.get("sweep", 1)
    A(f"s_lshl_b32 s{S_GW}, s2, 2\ns_add_u32 s{S_GW}, s{S_GW}, s{S_W}")
    if SWEEP == 2:
        A(f"s_mul_i32 s{S_T}, s{S_GW}, 1792")
        A.vmem(f"buffer_load_dwordx4 {v(vD,4)}, {v(vFR)}, s[{X}:{X+3}], s{S_T} offen")
        A("s_mov_b32 exec_hi, 0xffff")
        A.vmem(f"buffer_load_dwordx4 {v(vD,4)}, {v(vFR)}, s[{X}:{X+3}], s{S_T} offen offset:1024")
        A("s_mov_b32 exec_hi, -1")
        A(f"s_mul_i32 s{S_T}, s{S_GW}, 1664")
        A.vmem(f"buffer_load_dwordx4 {v(vD,4)}, {v(vFR)}, s[{W1}:{W1+3}], s{S_T} offen")
        A("s_mov_b32 exec_hi, 0xff")
        A.vmem(f"buffer_load_dwordx4 {v(vD,4)}, {v(vFR)}, s[{W1}:{W1+3}], s{S_T} offen offset:1024")
        A("s_mov_b32 exec_hi, -1")
    QROW = 64 if REPACK else 2688
    A(f"""s_lshr_b32 s{S_T}, s{S_W}, 1
s_lshl_b32 s{S_T}, s{S_T}, 5
s_and_b32 s{S_T2}, s{S_W}, 1
s_lshl_b32 s{S_T2}, s{S_T2}, 2
s_add_u32 s{S_T}, s{S_T}, s{S_T2}
s_mul_i32 s{S_HO}, s{S_T}, 3584
s_add_u32 s{S_HO}, s{S_HO}, s{S_HW}
s_mul_i32 s{S_QO}, s{S_T}, {QROW}
s_mul_i32 s{S_T2}, s{S_HC}, {3*448*64 if REPACK else 56}
s_add_u32 s{S_QO}, s{S_QO}, s{S_T2}
s_lshl_b32 s{S_T}, s{S_RB}, 7
s_lshl_b32 s{S_T2}, s{S_W}, 5
s_add_u32 s{S_T2}, s{S_T}, s{S_T2}
s_mul_i32 s{S_XO}, s{S_T2}, 896
s_sub_i32 s{S_T}, s{S_T}, 16
s_max_i32 s{S_T}, s{S_T}, 0
s_lshl_b32 s{S_T2}, s{S_W}, 2
s_add_u32 s{S_T}, s{S_T}, s{S_T2}
s_mul_i32 s{S_XH}, s{S_T}, 896
s_lshl_b32 s{S_M4}, s{S_W}, 12
s_lshl_b32 s{S_M1}, s{S_W}, 10
s_lshl_b32 s{S_MXH}, s{S_W}, 9""")
    S_R1, S_R2, S_R3 = 94, 95, 96
    if OPT.get("rot", 1):
        A(f"""s_lshl_b32 s{S_T}, s{S_HC}, 1
s_add_u32 s{S_T}, s{S_T}, s{S_RB}
s_mul_i32 s{S_T2}, s{S_T}, 37
s_lshr_b32 s{S_T2}, s{S_T2}, 8
s_mul_i32 s{S_T2}, s{S_T2}, 7
s_sub_u32 s{S_R1}, s{S_T}, s{S_T2}
s_and_b32 s{S_T}, s{S_TT}, 3
s_mul_i32 s{S_T}, s{S_T}, 7
s_add_u32 s{S_T}, s{S_T}, 1
s_lshr_b32 s{S_T}, s{S_T}, 1
s_lshl_b32 s{S_T2}, s{S_CT}, 1
s_add_u32 s{S_T}, s{S_T}, s{S_T2}
s_sub_u32 s{S_T2}, s{S_T}, 14
s_cmp_ge_u32 s{S_T}, 14
s_cselect_b32 s{S_R2}, s{S_T2}, s{S_T}
s_add_u32 s{S_T}, s{S_TT}, s{S_CT}
s_and_b32 s{S_R3}, s{S_T}, 3""")
    else:
        A(f"s_mov_b32 s{S_R1}, 0\ns_mov_b32 s{S_R2}, 0\ns_mov_b32 s{S_R3}, 0")
    lb = newlab("w0")
    A(f"s_cmp_lg_u32 s{S_W}, 0\ns_cbranch_scc1 {lb}")
    A(f"s_mov_b32 m0, {L_BIAS}\ns_mov_b64 exec, 0xffff")
    A(f"buffer_load_dwordx4 {v(vFR)}, s[{B1}:{B1+3}], s{S_HW} offen lds")
    A(f"s_mov_b32 m0, {L_GATE}\ns_mov_b32 exec_lo, -1\ns_mov_b32 exec_hi, 0xffffff")
    A(f"s_lshl_b32 s{S_T}, s{S_R1}, 7")
    A(f"v_add_u32 {v(t0)}, s{S_T}, {v(vFR)}")
    A(f"v_subrev_u32 {v(t1)}, 896, {v(t0)}")
    A(f"v_min_u32 {v(t0)}, {v(t0)}, {v(t1)}")
    A(f"buffer_load_dwordx4 {v(t0)}, s[{GW}:{GW+3}], 0 offen lds")
    A("s_mov_b64 exec, -1")
    A(f"s_cmp_lg_u32 s2, 0\ns_cbranch_scc1 {lb}")
    A(f"s_memrealtime s[{NON}:{NON+1}]\ns_waitcnt lgkmcnt(0)\ns_or_b32 s{NON}, s{NON}, 1")
    A(f"v_mov_b32 {v(vN)}, s{NON}\nv_mov_b32 {v(vN+1)}, s{NON+1}")
    A("s_mov_b64 exec, 1")
    A(f"global_store_dwordx2 {v(vZ)}, {v(vN,2)}, s[{DBG}:{DBG+1}] sc1")
    A("s_mov_b64 exec, -1")
    A.label(lb)
    S_CB = 93
    def rot_base(sdst, srot, idx, mod, mult, sadd):
        A(f"s_add_u32 s{sdst}, s{srot}, {idx}")
        A(f"s_sub_u32 s{S_T2}, s{sdst}, {mod}")
        A(f"s_cmp_ge_u32 s{sdst}, {mod}")
        A(f"s_cselect_b32 s{sdst}, s{S_T2}, s{sdst}")
        A(f"s_mul_i32 s{sdst}, s{sdst}, {mult}")
        A(f"s_add_u32 s{sdst}, s{sdst}, s{sadd}")
    def dma(m0reg, m0off, sreg, soff, va, sr, flags=""):
        A(f"s_add_u32 m0, s{m0reg}, {m0off}")
        A(f"s_add_u32 s{S_T}, s{sreg}, {soff}")
        return A.vmem(f"buffer_load_dwordx4 {v(va)}, s[{sr}:{sr+3}], s{S_T} offen {flags} lds")
    def load(lu):
        k, c = lu; pb = page[lu] * PAGE
        if k == "H":
            rot_base(S_CB, S_R1, c, 7, 64*3584, S_HO)
            for gi in range(4): t = dma(S_M4, pb + gi*1024, S_CB, 8*gi*3584, vHD1 if gi & 1 else vHD0, W1)
        elif k == "X":
            rot_base(S_CB, S_R1, c, 7, 128, S_XO)
            for q in range(4): t = dma(S_M4, pb + q*1024, S_CB, q*8*896, vXD, X)
        elif k == "Q":
            rot_base(S_CB, S_R1, c, 7, 4096 if REPACK else 172032, S_QO)
            for p in range(3):
                if REPACK: dma(S_M1, pb + p*4096, S_CB, WS_QR + p*448*64, vQD, WS, "sc1")
                else: dma(S_M1, pb + p*4096, S_CB, 896*p, vQD, QKV)
            rot_base(S_CB, S_R1, c, 7, 128, S_XH)
            A(f"s_mov_b64 exec, s[{M32}:{M32+1}]")
            t = dma(S_MXH, pb + 12288, S_CB, 0, vXHD, X)
            A("s_mov_b64 exec, -1")
        last[lu] = t
    def poll(tag, sreg, off, wide=False):
        lp, ok = newlab("pl"), newlab("pk")
        A(f"s_add_u32 s{S_T}, s{sreg}, {off}")
        if not wide: A(f"s_mov_b64 exec, s[{M32}:{M32+1}]")
        A.label(lp)
        if wide:
            A(f"buffer_load_dwordx4 {v(vD+12,4)}, {v(vFR)}, s[{WS}:{WS+3}], s{S_T} offen sc1")
            A(f"buffer_load_dwordx4 {v(vD+16,4)}, {v(vFR)}, s[{WS}:{WS+3}], s{S_T} offen offset:768 sc1")
            A("s_waitcnt vmcnt(0)")
            A(f"v_cmp_ne_u64 vcc, s[{NON}:{NON+1}], {v(vD+12,2)}")
            for i in range(1, 4):
                A(f"v_cmp_ne_u64 s[{SW}:{SW+1}], s[{NON}:{NON+1}], {v(vD+12+2*i,2)}")
                A(f"s_or_b64 vcc, vcc, s[{SW}:{SW+1}]")
            A(f"s_cmp_eq_u64 vcc, 0\ns_cbranch_scc1 {ok}")
        else:
            A(f"buffer_load_dwordx2 {v(vD+12,2)}, {v(vL8)}, s[{WS}:{WS+3}], s{S_T} offen sc1")
            A("s_waitcnt vmcnt(0)")
            A(f"v_cmp_ne_u64 vcc, s[{NON}:{NON+1}], {v(vD+12,2)}")
            A(f"s_cbranch_vccz {ok}")
        spin_guard(A, lp)
        A.label(ok)
        A("s_mov_b64 exec, -1")
        A.vm_done = A.vm
        ST(f"poll {tag} ok")
    ST("addr done")
    posted = [0]
    def post_upto(n, stamp=True):
        if n <= posted[0]: return
        A.wait_vm(last[seq[n-1]])
        lds_post(A, 0, n)
        posted[0] = n
        if stamp: ST(f"post {seq[n-1]}")
    load(seq[0]); ST("H0 iss"); load(seq[1]); ST("X0 iss")
    if OPT.get("dbg0", 0): A.wait_vm(last[seq[1]]); ST("A0 landed")
    A(f"s_and_b32 s{S_T}, s{S_W}, 1\ns_lshl_b32 s{S_T}, s{S_T}, 6")
    A(f"v_xor_b32 {v(vXHD)}, s{S_T}, {v(vXD)}")
    A(f"v_and_b32 {v(t0)}, 3, {v(r16)}")
    A(f"v_lshl_add_u32 {v(t0)}, {v(g)}, 3, {v(t0)}")
    A(f"v_mul_u32_u24 {v(vQD)}, {QROW}, {v(t0)}")
    A(f"v_and_b32 {v(t0)}, 1, {v(g)}")
    A(f"v_lshlrev_b32 {v(t1)}, 1, {v(t0)}")
    A(f"v_xor_b32 {v(t1)}, {v(t1)}, {v(l3)}")
    A(f"v_lshl_add_u32 {v(vQD)}, {v(t1)}, 4, {v(vQD)}")
    A(f"s_getpc_b64 s[{SW}:{SW+1}]")
    A.label(f"{kname}_pc")
    A(f"s_sub_u32 s{SW}, s{SW}, {kname}_pc-{kname}\ns_subb_u32 s{SW+1}, s{SW+1}, 0")
    A(f"s_lshr_b32 s{S_T}, s2, 3\ns_and_b32 s{S_T}, s{S_T}, 7\ns_lshl_b32 s{S_T}, s{S_T}, 2\ns_add_u32 s{S_T}, s{S_T}, s{S_W}\ns_lshl_b32 s{S_T}, s{S_T}, 10")
    A(f"v_add_u32 {v(t0)}, s{S_T}, {v(vFR)}")
    A(f"v_min_u32 {v(t0)}, {kname}_end-{kname}-16, {v(t0)}")
    A.vmem(f"global_load_dwordx4 {v(vD,4)}, {v(t0)}, s[{SW}:{SW+1}]")
    ST("pf iss")
    if REPACK:
        A(f"v_bfe_u32 {v(t0)}, {v(vL)}, 2, 1")
        A(f"v_mul_u32_u24 {v(vRS)}, 2688, {v(t0)}")
        A(f"v_mul_u32_u24 {v(t1)}, 56, {v(r8)}")
        A(f"v_add_u32 {v(vRS)}, {v(vRS)}, {v(t1)}")
        A(f"v_lshl_add_u32 {v(vRS)}, {v(l3)}, 4, {v(vRS)}")
        A(f"v_mul_u32_u24 {v(vRD)}, {3*448*64}, {v(r8)}")
        A(f"v_lshl_add_u32 {v(vRD)}, {v(l7)}, 4, {v(vRD)}")
        A(f"s_cmp_ge_u32 s2, 224\ns_cselect_b32 s{S_T}, 0x40000000, 0\ns_cmp_eq_u32 s{S_W}, 3\ns_cselect_b32 s{S_T}, 0x40000000, s{S_T}")
        A(f"v_or_b32 {v(vRS)}, s{S_T}, {v(vRS)}")
        A(f"v_or_b32 {v(vRD)}, s{S_T}, {v(vRD)}")
        A(f"s_mul_i32 s{S_T}, s2, {2*2688}\ns_mul_i32 s{S_T2}, s{S_W}, 896\ns_add_u32 s{S_T}, s{S_T}, s{S_T2}")
        A.vmem(f"buffer_load_dwordx4 {v(vD+4,4)}, {v(vRS)}, s[{QKV}:{QKV+3}], s{S_T} offen")
        last["RL"] = A.vmem(f"buffer_load_dwordx4 {v(vD+8,4)}, {v(vRS)}, s[{QKV}:{QKV+3}], s{S_T} offen offset:448")
    elif SWEEP:
        A(f"s_mul_i32 s{S_T}, s{S_GW}, 1280")
        A.vmem(f"buffer_load_dwordx4 {v(vD,4)}, {v(vFR)}, s[{QKV}:{QKV+3}], s{S_T} offen")
        A("s_mov_b64 exec, 0xffff")
        A.vmem(f"buffer_load_dwordx4 {v(vD,4)}, {v(vFR)}, s[{QKV}:{QKV+3}], s{S_T} offen offset:1024")
        A("s_mov_b64 exec, -1")
    def sweep2():
        A(f"s_mul_i32 s{S_T}, s{S_GW}, 1664")
        A.vmem(f"buffer_load_dwordx4 {v(vD,4)}, {v(vFR)}, s[{W2}:{W2+3}], s{S_T} offen")
        A("s_mov_b32 exec_hi, 0xff")
        A.vmem(f"buffer_load_dwordx4 {v(vD,4)}, {v(vFR)}, s[{W2}:{W2+3}], s{S_T} offen offset:1024")
        A(f"s_mov_b32 exec_hi, 0\ns_lshl_b32 s{S_T}, s{S_GW}, 9")
        A.vmem(f"buffer_load_dwordx4 {v(vD,4)}, {v(vFR)}, s[{WO}:{WO+3}], s{S_T} offen")
        A("s_mov_b32 exec_hi, -1")
    S_CO = 61
    A(f"""s_lshl_b32 s{S_T}, s{S_TT}, 8
s_add_u32 s{S_FLC}, s{S_T}, {WS_FL}
s_lshl_b32 s{S_RF}, s2, 3
s_add_u32 s{S_RF}, s{S_RF}, {WS_FL + 16384}
s_mul_i32 s{S_FO}, s{S_TT}, {4*73728}
s_lshl_b32 s{S_CO}, s{S_CT}, 7
s_mul_i32 s{S_WOB}, s{S_W}, {112*896}
s_add_u32 s{S_WOB}, s{S_WOB}, s{S_CO}
s_mul_i32 s{S_W2B}, s{S_W}, {448*896}
s_add_u32 s{S_W2B}, s{S_W2B}, s{S_CO}""")
    S_FH, S_FOo = 62, 63
    A(f"""s_mul_i32 s{S_T}, s{S_W}, {14*1024}
s_add_u32 s{S_FH}, s{S_FO}, s{S_T}
s_add_u32 s{S_FOo}, s{S_FO}, s{S_M4}
s_add_u32 s{S_FOo}, s{S_FOo}, {56*1024}""")
    ST("rl iss")
    LAG = OPT.get("lag", 2)
    released = [-1]
    def wait_release(r, n):
        if r > released[0]:
            req = max(SEQ[x] for u in UNITS[:r + 2] for x in NEED[u]) + 1
            assert req <= n, (r, req, n)
            post_upto(req)
            lds_wait_min(A, 16, r + 1)
            released[0] = r
    for n in range(2, len(seq)):
        lu = seq[n]
        wait_release(after[lu], n)
        if lu == ("Q", 0) and REPACK:
            post_upto(n)
            A(f"s_mov_b32 s{SW+2}, {WS_FL + 16384}")
            poll("R", SW + 2, 0, wide=True)
        load(lu)
        if n < 8: ST(f"iss {lu}")
        if n == 3:
            post_upto(2)
            if REPACK:
                A.wait_vm(last["RL"])
                A(f"s_mul_i32 s{S_T}, s{S_W}, {448*64}\ns_lshl_b32 s{S_T2}, s2, 7\ns_add_u32 s{S_T}, s{S_T}, s{S_T2}\ns_add_u32 s{S_T}, s{S_T}, {WS_QR}\ns_add_u32 s{S_T2}, s{S_T}, {8*3*448*64}")
                A.vmem(f"buffer_store_dwordx4 {v(vD+4,4)}, {v(vRD)}, s[{WS}:{WS+3}], s{S_T} offen sc1")
                A.vmem(f"buffer_store_dwordx4 {v(vD+8,4)}, {v(vRD)}, s[{WS}:{WS+3}], s{S_T2} offen sc1")
            nonce_load(A, last)
            ST("rs iss")
        if n == 5 and SWEEP: sweep2(); ST("sw2 iss")
        m = n + 1 - LAG
        if m >= 2 and seq[m-1][0] != "H": post_upto(m)
        if posted[0] >= 6 and "nc" not in last:
            last["nc"] = 1
            nonce_check(A, last)
            if REPACK:
                lb = newlab("rp")
                A(f"s_cmp_lg_u32 s{S_W}, 0\ns_cbranch_scc1 {lb}")
                A(f"s_cmp_ge_u32 s2, 224\ns_cbranch_scc1 {lb}")
                sv = (A.vm, A.vm_done, A.ds, A.ds_done)
                lds_wait_min(A, 0, 6)
                publish(A, S_RF, 0)
                A.vm, A.vm_done, A.ds, A.ds_done = sv
                A.label(lb)
                ST("R pub")
    NL = len(seq)
    if OPT.get("lonly", 0):
        post_upto(NL)
        A(f"s_branch {kname}_lfin")
    lb = newlab("act")
    A(f"s_cmp_lt_u32 s{S_CT}, 7\ns_cbranch_scc1 {lb}")
    sv = (A.vm, A.vm_done, A.ds, A.ds_done, posted[0])
    post_upto(NL, False)
    A.vm, A.vm_done, A.ds, A.ds_done, posted[0] = sv
    A(f"s_branch {kname}_lfin")
    A.label(lb)
    NP2 = OPT.get("np2", 6)
    def p2page(i): return p2free[i % NP2][1]
    vPA = 24
    vPA = 32; vG = 40; vB2 = 48
    WB = 64
    RG = 96
    ACB = 224 - 32
    ACB = 0
    NFS = 6
    ACB = RG + 16 * NFS
    FSLOT = {i: i % NFS for i in range(18)}
    def fa(i, j): return RG + 16 * FSLOT[i] + 4 * j
    def fprev(i):
        c = [k for k in range(i) if FSLOT[k] == FSLOT[i]]
        return max(c) if c else -1
    def jobs_W(i):
        ops = []
        def pre():
            if i < NP2: wait_release(p2free[i][0], NL)
            if i < 14: rot_base(S_CB, S_R2, i, 14, 32*896, S_W2B)
            else: rot_base(S_CB, S_R3, i - 14, 4, 28*896, S_WOB)
            for q in range(4):
                last[("W", i)] = dma(S_M4, p2page(i)*PAGE + q*1024, S_CB, 8*q*896, vW2D, W2 if i < 14 else WO)
        return [pre]
    def jobs_F(i):
        def f():
            if i < 14: rot_base(S_CB, S_R2, i, 14, 1024, S_FH)
            else: rot_base(S_CB, S_R3, i - 14, 4, 1024, S_FOo)
            for j in range(4):
                if j: A(f"s_add_u32 s{S_CB}, s{S_CB}, 73728")
                last[("F", i)] = A.vmem(f"buffer_load_dwordx4 {v(fa(i,j),4)}, {v(vFR)}, s[{WS}:{WS+3}], s{S_CB} offen sc1")
        return [f]
    NW0 = OPT.get("nw0", 3)
    for i in range(NW0):
        for f in jobs_W(i): f()
        if i == 0: post_upto(NL - 1)
    post_upto(NL)
    A(f"v_bfe_u32 {v(t0)}, {v(vL)}, 3, 1")
    A(f"v_lshl_add_u32 {v(t0)}, {v(l3)}, 1, {v(t0)}")
    A(f"v_lshlrev_b32 {v(t1)}, 7, {v(r16)}")
    A(f"v_lshl_add_u32 {v(t1)}, {v(t0)}, 4, {v(t1)}")
    poll("H", S_FLC, 0)
    A(f"v_add_u32 {v(vPA)}, s{S_M4}, {v(t1)}")
    A(f"v_xor_b32 {v(vPA+1)}, 16, {v(vPA)}")
    for z in (1, 2):
        for i in range(2): A(f"v_add_u32 {v(vPA+2*z+i)}, {z*65536}, {v(vPA+i)}")
    fi = 0; wi = NW0
    for i in range(min(NFS - 1, 4)):
        for f in jobs_F(i): f()
        fi += 1
    def aw2(buf, t): return WB + 16*buf + 4*t
    rdt = {}
    def reads2(i):
        pg = p2page(i); z = pg // 4; rel = (pg % 4) * PAGE
        A.wait_vm(last[("W", i)])
        for t in range(4):
            for hf in range(2):
                rdt[(i, t)] = A.dsop(f"ds_read_b64_tr_b16 {v(aw2(i&1,t)+2*hf,2)}, {v(vPA+2*z+(t>>1))} offset:{rel + hf*2048 + 8*(t&1)}")
    def small_loads():
        A(f"v_lshlrev_b32 {v(t0)}, 2, {v(c16)}")
        A(f"s_lshl_b32 s{S_T}, s{S_TT}, 8\ns_add_u32 s{S_T}, s{S_T}, {WS_G}")
        for j in range(4):
            A.vmem(f"buffer_load_dword {v(vG+j)}, {v(t0)}, s[{WS}:{WS+3}], s{S_T} offen offset:{64*j} sc1")
        A(f"v_lshlrev_b32 {v(t1)}, 5, {v(g)}")
        A.vmem(f"buffer_load_dwordx4 {v(vB2+8,4)}, {v(t1)}, s[{B2}:{B2+3}], s{S_CO} offen")
        last["SM"] = A.vmem(f"buffer_load_dwordx4 {v(vB2+12,4)}, {v(t1)}, s[{B2}:{B2+3}], s{S_CO} offen offset:16")
    reads2(0)
    for i in range(18):
        while wi < 18 and wi - NP2 < i and wi <= i + NP2 - 1:
            for f in jobs_W(wi): f()
            wi += 1
            break
        while fi < 18 and fprev(fi) < i:
            if fi == 14: poll("O", S_FLC, 8192)
            for f in jobs_F(fi): f()
            fi += 1
            break
        if i == 6: small_loads()
        if i + 1 < 18:
            while wi <= i + 1:
                for f in jobs_W(wi): f()
                wi += 1
            reads2(i + 1)
        A.wait_vm(last[("F", i)])
        if i % 3 == 0: ST(f"p2 step {i}")
        if i == 14:
            A.wait_vm(last["SM"])
            for j in range(4): A(f"v_sub_f32 {v(vG+4+j)}, 1.0, {v(vG+j)}")
            for k in range(7):
                A(f"v_lshlrev_b32 {v(vB2+2*k)}, 16, {v(vB2+8+k)}")
                A(f"v_and_b32 {v(vB2+2*k+1)}, 0xffff0000, {v(vB2+8+k)}")
            A(f"v_lshlrev_b32 {v(vB2+14)}, 16, {v(vB2+15)}")
            A(f"v_and_b32 {v(vB2+15)}, 0xffff0000, {v(vB2+15)}")
            for r in range(0, 16, 2):
                for j in range(4):
                    A(f"v_pk_mul_f32 {v(ACB+16*j+r,2)}, {v(ACB+16*j+r,2)}, {v(vG+4+j-(j&1),2)} op_sel:[0,{j&1}] op_sel_hi:[1,{j&1}]")
            A("s_nop 1")
        for t in range(4):
            A.wait_ds(rdt[(i, t)])
            for j in range(4):
                d = v(ACB + 16*j + 4*t, 4)
                A(f"v_mfma_f32_16x16x32_bf16 {d}, {v(aw2(i&1,t),4)}, {v(fa(i,j),4)}, {'0' if i == 0 else d}")
    assert fi == 18 and wi == 18
    ST("p2 loop done")
    ACA = ACB
    RP = [p2page(k) for k in range(3)]
    RV = RG
    for k in range(3): A(f"v_add_u32 {v(vPA+k)}, {RP[k]*PAGE}, {v(vFR)}")
    for k in range(3): A(f"v_add_u32 {v(vPA+3+k)}, s{S_M4}, {v(vPA+k)}")
    A.nop(4)
    for w in range(4):
        if w < 3: A(f"s_cmp_lg_u32 s{S_W}, {w}\ns_cbranch_scc1 {kname}_w{w+1}")
        for j in range(4):
            if j == w: continue
            k = (j - w - 1) & 3
            for t in range(4):
                A(f"ds_write_b128 {v(vPA+3+k)}, {v(ACA+16*j+4*t,4)} offset:{t*1024}")
        for r in range(16): A(f"v_fma_f32 {v(RV+r)}, {v(vG+4+w)}, {v(vB2+r)}, {v(ACA+16*w+r)}")
        A("s_waitcnt lgkmcnt(0)\ns_barrier")
        for k in range(3):
            srcw = (w - k - 1) & 3
            for t in range(4):
                A(f"ds_read_b128 {v(RV+16+16*k+4*t,4)}, {v(vPA+k)} offset:{srcw*4096 + t*1024}")
        if w < 3:
            A(f"s_branch {kname}_wd")
            A.label(f"{kname}_w{w+1}")
    A.label(f"{kname}_wd")
    A(f"v_mul_u32_u24 {v(t0)}, 896, {v(c16)}")
    A(f"v_add_u32 {v(t0)}, {v(t0)}, {v(t1)}")
    A(f"""s_lshl_b32 s{S_T}, s{S_TT}, 6
s_lshl_b32 s{S_T2}, s{S_W}, 4
s_add_u32 s{S_T}, s{S_T}, s{S_T2}
s_mul_i32 s{S_T}, s{S_T}, 896
s_add_u32 s{S_T}, s{S_T}, s{S_CO}""")
    for k in range(3):
        A(f"s_waitcnt lgkmcnt({8-4*k})")
        for r in range(0, 16, 2):
            A(f"v_pk_add_f32 {v(RV+r,2)}, {v(RV+r,2)}, {v(RV+16+16*k+r,2)}")
    for r in range(8):
        A(f"v_cvt_pk_bf16_f32 {v(WB+r)}, {v(RV+2*r)}, {v(RV+2*r+1)}")
    A(f"buffer_store_dwordx4 {v(WB,4)}, {v(t0)}, s[{OUT}:{OUT+3}], s{S_T} offen")
    A(f"buffer_store_dwordx4 {v(WB+4,4)}, {v(t0)}, s[{OUT}:{OUT+3}], s{S_T} offen offset:16")
    ST("end")
    A.label(f"{kname}_lfin")
    ST.dump(WS, S_W8, vL, vT)
    A.label(f"{kname}_end")
    A("s_endpgm")
    return P.text() + C.text() + L.text(), page, after

def desc(kname, nv, accoff, ns=102):
    return f""".amdhsa_kernel {kname}
  .amdhsa_next_free_vgpr {nv}
  .amdhsa_next_free_sgpr {ns}
  .amdhsa_accum_offset {accoff}
  .amdhsa_group_segment_fixed_size 0
  .amdhsa_kernarg_size 96
  .amdhsa_user_sgpr_count 2
  .amdhsa_user_sgpr_kernarg_segment_ptr 1
  .amdhsa_system_sgpr_workgroup_id_x 1
.end_amdhsa_kernel
"""

if __name__ == "__main__":
    out = sys.argv[1]
    STAMPS = "--stamps" in sys.argv
    for x in sys.argv[2:]:
        if "=" in x:
            k_, v_ = x.split("="); OPT[k_] = v_.split(";") if k_.startswith("sel") else int(v_)
    k = NAME + "_kernel"
    t = f"; @launch grid=(256,1,1) block=(512,1,1) lds=163840\n"
    t += '.amdgcn_target "amdgcn-amd-amdhsa--gfx950"\n.text\n'
    body, page, after = gen(k)
    if "--plan" in sys.argv:
        for lu in page: print(lu, "page", page[lu], "after", UNITS[after[lu]] if after.get(lu, -1) >= 0 else None)
    t += f".globl {k}\n.p2align 8\n.type {k},@function\n" + body
    t += '.section .rodata,"a"\n.p2align 6\n' + desc(k, 256, 256)
    open(out, "w").write(t)
```

```python
import sys
from asmlib import Asm, v, a, s

NAME = "gated_mix__sliding_local_dilated__dense_activation_squared_relu__prompt"
WS_G = 128 * 72 * 1024
WS_FL = WS_G + 8192
WS_QR = WS_FL + 20480
WS_ST = WS_QR + 16 * 3 * 448 * 64
WS_BYTES = WS_ST + 262144
PAGE = 16384
L_BIAS = 8 * PAGE + 14336
L_GATE = L_BIAS + 256
L_FLG = 8 * PAGE + 15872
STAMPS = False
OPT = {}

def srd(A, d, lo, nbytes):
    A(f"s_mov_b32 s{d}, s{lo}")
    A(f"s_and_b32 s{d+1}, s{lo+1}, 0xffff")
    A(f"s_mov_b32 s{d+2}, {nbytes}")
    A(f"s_mov_b32 s{d+3}, 0x20000")

class Stamper:
    def __init__(self, A, vreg, tag, pairs):
        self.A = A; self.n = 0; self.v = vreg; self.tag = tag; self.pairs = pairs
    def __call__(self, what=""):
        if not STAMPS: return
        sel = OPT.get("sel" + self.tag)
        if sel is not None and what != "start" and not any(what.startswith(x) for x in sel): return
        A = self.A
        if self.n == 0:
            A(f"v_mov_b32 v{self.v}, 0")
            A("s_memrealtime s[100:101]")
            A("s_waitcnt lgkmcnt(0)")
            A(f"v_writelane_b32 v{self.v}, s100, 62")
            for p in self.pairs[1:]:
                if not 48 <= p < 72: A(f"s_mov_b32 s{p}, 0")
        assert self.n < len(self.pairs), "too many stamps"
        p = self.pairs[self.n]
        A(f"s_memtime s[{p}:{p+1}]")
        print(f"stamp {self.tag} {self.n}: {what}")
        self.n += 1
    def dump(self, WS, S_W8, vL, vt):
        if not STAMPS: return
        A = self.A
        A("s_mov_b64 exec, -1")
        A("s_memrealtime s[100:101]")
        A("s_waitcnt lgkmcnt(0)")
        A(f"v_writelane_b32 v{self.v}, s100, 63")
        if OPT.get("dbgout", 0):
            for i in range(1, self.n):
                A(f"s_sub_u32 s101, s{self.pairs[i]}, s{self.pairs[0]}")
                A(f"s_cmp_eq_u32 s{self.pairs[i]}, 0\ns_cselect_b32 s101, 0, s101")
                A(f"v_writelane_b32 v{self.v}, s101, {i}")
            A(f"v_readlane_b32 s101, v{self.v}, 62\ns_not_b32 s101, s101")
            base = 2 if self.tag == "C" else 2 + OPT.get("nC", 7)
            A(f"v_writelane_b32 v{self.v}, s101, 0") if self.tag == "C" else A(f"v_writelane_b32 v{self.v}, s100, 0")
            A(f"s_and_b32 s100, s{S_W8}, 3\ns_cmp_lg_u32 s100, 0\ns_cbranch_scc1 Lnodump{self.tag}")
            A(f"v_lshlrev_b32 v{vt}, 2, v{vL}")
            A(f"s_mov_b64 exec, {(1 << self.n) - 1}")
            A(f"global_atomic_umax v{vt}, v{self.v}, s[68:69] offset:{4*base} sc1")
            A.label(f"Lnodump{self.tag}")
            return
        for i in range(self.n): A(f"v_writelane_b32 v{self.v}, s{self.pairs[i]}, {i}")
        A(f"s_and_b32 s100, s{S_W8}, 3\ns_cmp_lg_u32 s100, 0\ns_cbranch_scc1 Lnodump{self.tag}")
        A(f"s_lshl_b32 s100, s2, 1\ns_lshr_b32 s101, s{S_W8}, 2\ns_add_u32 s100, s100, s101\ns_lshl_b32 s100, s100, 8\ns_add_u32 s100, s100, {WS_ST}")
        A(f"v_lshlrev_b32 v{vt}, 2, v{vL}")
        A(f"buffer_store_dword v{self.v}, v{vt}, s[{WS}:{WS+3}], s100 offen")
        A.label(f"Lnodump{self.tag}")

UNITS = [("A", c) for c in range(7)] + [("Q", c) for c in range(7)]
UIDX = {u: i for i, u in enumerate(UNITS)}
NEED = {("A", c): [("H", c), ("X", c)] for c in range(7)}
NEED.update({("Q", c): [("Q", c)] for c in range(7)})
def make_plan():
    page = {}; after = {}
    seq = []
    for c in range(7):
        page[("H", c)] = c % 4; page[("X", c)] = 4 + c % 4
        after[("H", c)] = after[("X", c)] = -1 if c < 4 else UIDX[("A", c - 4)]
        seq += [("H", c), ("X", c)]
    NWE = OPT.get("nwe", 3)
    free = [(-1, 9)]
    for c in range(3, 7): free += [(UIDX[("A", c)], c % 4), (UIDX[("A", c)], 4 + c % 4)]
    p2 = free[:NWE]; free = free[NWE:]
    for c in range(7):
        lu = ("Q", c)
        free.sort()
        rel, pg = (-1, 8) if c == 0 else free.pop(0)
        page[lu] = pg; after[lu] = rel
        if c: free.append((UIDX[lu], pg))
        seq.append(lu)
    free.sort()
    return page, after, seq, p2 + free

def gen(kname):
    page, after, seq, p2free = make_plan()
    SEQ = {lu: i for i, lu in enumerate(seq)}
    REPACK = OPT.get("repack", 1)
    S_W8, S_RB, S_HC, S_TT, S_CT = 3, 4, 5, 6, 7
    X, QKV, W1, WS, WO, W2, OUT, B1, GW, B2 = 8, 12, 16, 20, 24, 28, 32, 36, 40, 44
    KA = 48; DBG = 68
    MP, MA, MB, MFIRST, M32, NON = 72, 74, 76, 78, 80, 82
    S_T, S_T2, S_W, S_HW = 84, 85, 86, 87
    S_SPIN = 92
    P = Asm(); C = Asm(); L = Asm()
    A = P
    vTID, vL, vFR, vST = 0, 1, 2, 3
    vZ, vL8, vN = 4, 5, 6
    vT = 8
    vFL, vFLW = 16, 17
    vFV = 20
    vPV = 18
    lab = [0]
    def newlab(t):
        lab[0] += 1; return f"{kname}_{t}{lab[0]}"
    A.label(kname)
    A(f"s_cmp_ge_u32 s2, 256\ns_cbranch_scc1 {kname}_end")
    if OPT.get("scramble", 0):
        A("s_lshr_b32 s3, s2, 3\ns_and_b32 s2, s2, 7\ns_lshl_b32 s2, s2, 5\ns_or_b32 s2, s2, s3")
    A(f"s_load_dwordx16 s[{KA}:{KA+15}], s[0:1], 0")
    A(f"s_load_dwordx8 s[{KA+16}:{KA+23}], s[0:1], 64")
    A(f"v_lshrrev_b32 {v(vT)}, 6, {v(vTID)}")
    A(f"v_and_b32 {v(vL)}, 63, {v(vTID)}")
    A(f"v_readfirstlane_b32 s{S_W8}, {v(vT)}")
    A(f"v_lshlrev_b32 {v(vFR)}, 4, {v(vL)}")
    A(f"v_lshlrev_b32 {v(vL8)}, 3, {v(vL)}")
    A(f"v_mov_b32 {v(vZ)}, 0")
    A(f"v_mov_b32 {v(vFL)}, {L_FLG}")
    A(f"""s_and_b32 s{S_W}, s{S_W8}, 3
s_lshr_b32 s{S_T}, s2, 3
s_and_b32 s{S_RB}, s2, 1
s_lshl_b32 s{S_RB}, s{S_RB}, 3
s_and_b32 s{S_T2}, s{S_T}, 7
s_add_u32 s{S_RB}, s{S_RB}, s{S_T2}
s_bfe_u32 s{S_HC}, s2, 0x20001
s_lshl_b32 s{S_HC}, s{S_HC}, 2
s_lshr_b32 s{S_T2}, s{S_T}, 3
s_add_u32 s{S_HC}, s{S_HC}, s{S_T2}
s_and_b32 s{S_TT}, s2, 7
s_lshl_b32 s{S_TT}, s{S_TT}, 2
s_and_b32 s{S_T2}, s{S_T}, 3
s_add_u32 s{S_TT}, s{S_TT}, s{S_T2}
s_lshr_b32 s{S_CT}, s2, 5
s_mov_b32 s{M32}, -1
s_mov_b32 s{M32+1}, 0
s_mov_b32 s{S_SPIN}, 0""")
    c16, g, r8, l7, l3, r16, t0, t1 = [vT + i for i in range(8)]
    A(f"v_and_b32 {v(c16)}, 15, {v(vL)}")
    A(f"v_lshrrev_b32 {v(g)}, 4, {v(vL)}")
    A(f"v_lshrrev_b32 {v(r8)}, 3, {v(vL)}")
    A(f"v_and_b32 {v(l7)}, 7, {v(vL)}")
    A(f"v_and_b32 {v(l3)}, 3, {v(vL)}")
    A(f"v_lshrrev_b32 {v(r16)}, 2, {v(vL)}")
    A(f"""s_and_b32 s{S_T}, s{S_HC}, 3
s_lshl_b32 s{S_T2}, s{S_T}, 8
s_cmp_eq_u32 s{S_T}, 3
s_cselect_b32 s{S_T2}, 640, s{S_T2}
s_lshr_b32 s{S_T}, s{S_HC}, 2
s_mul_i32 s{S_T}, s{S_T}, 896
s_add_u32 s{S_HW}, s{S_T}, s{S_T2}
s_lshl_b32 s{S_T}, s{S_W}, 2
s_add_u32 s{S_T}, s{S_T}, {L_FLG}""")
    A(f"v_lshlrev_b32 {v(vFLW)}, 2, {v(vL)}")
    A(f"v_add_u32 {v(vFLW)}, {L_GATE + 896}, {v(vFLW)}")
    A(f"v_writelane_b32 {v(vFLW)}, s{S_T}, 0")
    A(f"s_cmp_ge_u32 s{S_W8}, 4\ns_cbranch_scc1 {kname}_L")

    def spin_guard(A, target):
        A(f"s_add_u32 s{S_SPIN}, s{S_SPIN}, 1\ns_cmp_lt_u32 s{S_SPIN}, 0x200000\ns_cbranch_scc1 {target}")
    def lds_post(A, off, val):
        A(f"v_mov_b32 {v(vPV)}, {val}")
        A.dsop(f"ds_max_u32 {v(vFLW)}, {v(vPV)} offset:{off}")
    def lds_flag_read(A, off):
        return A.dsop(f"ds_read_b128 {v(vFV,4)}, {v(vFL)} offset:{off}")
    def lds_wait_min(A, off, val, ticket=None, slow=None):
        lp, ok = newlab("lw"), newlab("lk")
        if ticket is None: ticket = lds_flag_read(A, off)
        A.wait_ds(ticket)
        def check():
            A(f"v_min3_u32 {v(vFV)}, {v(vFV)}, {v(vFV+1)}, {v(vFV+2)}")
            A(f"v_min_u32 {v(vFV)}, {v(vFV)}, {v(vFV+3)}")
            A("s_nop 0")
            A(f"v_readfirstlane_b32 s{S_T2}, {v(vFV)}")
            A(f"s_cmp_ge_u32 s{S_T2}, {val}\ns_cbranch_scc1 {ok}")
        if slow is not None:
            check()
            sv = (A.vm, A.vm_done, A.ds, A.ds_done)
            slow()
            A.vm, A.vm_done, A.ds, A.ds_done = sv
            A(f"ds_read_b128 {v(vFV,4)}, {v(vFL)} offset:{off}\ns_waitcnt lgkmcnt(0)")
        A.label(lp)
        check()
        A(f"s_sleep 1\nds_read_b128 {v(vFV,4)}, {v(vFL)} offset:{off}\ns_waitcnt lgkmcnt(0)")
        spin_guard(A, lp)
        A.label(ok)
    def nonce_load(A, last):
        last["N"] = A.vmem(f"global_load_dwordx2 {v(vN,2)}, {v(vZ)}, s[{DBG}:{DBG+1}] sc1")
    def nonce_check(A, last):
        lp, ok = newlab("nc"), newlab("nk")
        A.wait_vm(last["N"])
        A.label(lp)
        A(f"v_readfirstlane_b32 s{NON}, {v(vN)}\nv_readfirstlane_b32 s{NON+1}, {v(vN+1)}")
        A(f"s_cmp_lg_u32 s{NON}, 0\ns_cbranch_scc1 {ok}")
        A(f"global_load_dwordx2 {v(vN,2)}, {v(vZ)}, s[{DBG}:{DBG+1}] sc1\ns_waitcnt vmcnt(0)")
        spin_guard(A, lp)
        A.label(ok)
    def publish(A, sreg, off):
        A(f"v_mov_b32 {v(vN)}, s{NON}\nv_mov_b32 {v(vN+1)}, s{NON+1}")
        A(f"s_add_u32 s{S_T}, s{sreg}, {off}")
        A("s_mov_b64 exec, 1")
        A.vmem(f"buffer_store_dwordx2 {v(vN,2)}, {v(vZ)}, s[{WS}:{WS+3}], s{S_T} offen sc1")
        A("s_mov_b64 exec, -1")

    A = C; ST = Stamper(C, vST, "C", [98, 8, 10, 16, 18, 32, 34, 36, 38, 40, 42, 44, 46, 60, 62, 64, 66, 70, 90, 94, 96]); last = {}
    S_FR, S_FLP, S_GT, S_OS, S_CO = 48, 49, 50, 51, 52
    S_HS = 54
    vHA, vXA, vXO, vFRa, vFRb, vGA = 24, 28, 30, 32, 33, 34
    XT = 36
    vQA, vXH = 36, 45
    XR = 52
    ACC = 164
    WR = 228; NWR = 7
    ACG = 8
    def ax(ks, tb): return XR + 4 * (2 * ks + tb)
    def axa(ks, jj): return ax(ks, jj) if jj < 2 else XT + 8 * (ks & 1) + 4 * (jj - 2)
    def ach(jj, bb): return ACC + 4 * (4 * jj + bb)
    def acq(tb, t): return ACC + 4 * (6 * tb + t)
    ACC_HL = ACC + 48
    vBIAS = XR + 80
    vRAW = XR + 64
    ST("start")
    A(f"v_lshl_add_u32 {v(t0)}, {v(vL)}, 2, {v(vFL)}")
    A("s_mov_b64 exec, 0xffff")
    A(f"ds_write_b32 {v(t0)}, {v(vZ)}")
    A("s_mov_b64 exec, -1")
    A("s_waitcnt lgkmcnt(0)")
    if OPT.get("tlb", 0):
        for i, off in enumerate((0, 8, 2, 12, 4, 10, 16, 14, 18, 20)):
            A(f"s_load_dword s{S_SPIN+1}, s[{KA+off}:{KA+off+1}], 0")
        for k in range(6):
            A(f"s_add_u32 s{S_T}, s{KA+22}, {k << 21}\ns_addc_u32 s{S_T2}, s{KA+23}, 0")
            A(f"s_load_dword s{S_SPIN+1}, s[{S_T}:{S_T2}], 0")
    A(f"v_lshlrev_b32 {v(t1)}, 8, {v(r16)}")
    A(f"v_lshl_add_u32 {v(t1)}, {v(l3)}, 3, {v(t1)}")
    A(f"v_and_b32 {v(t0)}, 7, {v(r16)}")
    A(f"v_lshl_add_u32 {v(vHA)}, {v(t0)}, 5, {v(t1)}")
    A(f"s_and_b32 s{S_T}, s{S_W}, 1\ns_lshl_b32 s{S_T}, s{S_T}, 7")
    A(f"v_xor_b32 {v(vHA)}, s{S_T}, {v(vHA)}")
    for b in range(1, 4): A(f"v_xor_b32 {v(vHA+b)}, {32*b}, {v(vHA)}")
    A(f"v_xor_b32 {v(t0)}, {v(g)}, {v(l7)}")
    A(f"v_lshlrev_b32 {v(t1)}, 7, {v(c16)}")
    A(f"v_lshl_add_u32 {v(t1)}, {v(t0)}, 4, {v(t1)}")
    A(f"s_lshl_b32 s{S_T}, s{S_W}, 12\ns_add_u32 s{S_T2}, s{S_T}, {4*PAGE}")
    A(f"v_add_u32 {v(vXA)}, s{S_T2}, {v(t1)}")
    A(f"v_xor_b32 {v(vXA+1)}, 64, {v(vXA)}")
    A(f"v_xor_b32 {v(vXO)}, 0x1000, {v(vXA)}")
    A(f"v_xor_b32 {v(vXO+1)}, 64, {v(vXO)}")
    A(f"v_lshlrev_b32 {v(vGA)}, 4, {v(g)}")
    A(f"v_add_u32 {v(vGA)}, {L_GATE}, {v(vGA)}")
    A(f"s_and_b32 s{S_T}, s{S_W}, 1\ns_lshl_b32 s{S_T}, s{S_T}, 7\ns_add_u32 s{S_T}, s{S_T}, {L_BIAS}")
    A(f"v_lshlrev_b32 {v(WR)}, 3, {v(g)}")
    A(f"v_add_u32 {v(WR)}, s{S_T}, {v(WR)}")
    A(f"v_and_b32 {v(t0)}, 1, {v(c16)}")
    A(f"v_cmp_eq_u32 s[{MP}:{MP+1}], 1, {v(t0)}")
    A(f"v_lshl_add_u32 {v(t1)}, {v(g)}, 2, {v(t0)}")
    A(f"v_cmp_le_u32 s[{MA}:{MA+1}], {v(t1)}, {v(c16)}")
    A(f"v_add_u32 {v(t1)}, 2, {v(t1)}")
    A(f"v_cmp_le_u32 s[{MB}:{MB+1}], {v(t1)}, {v(c16)}")
    if OPT.get("wsoff", 0): A(f"s_add_u32 s{KA+22}, s{KA+22}, {OPT['wsoff'] << 20}\ns_addc_u32 s{KA+23}, s{KA+23}, 0")
    srd(A, WS, KA+22, WS_BYTES)
    srd(A, QKV, KA+2, 448 * 2688)
    srd(A, WO, KA+4, 448 * 896)
    srd(A, W2, KA+12, 1792 * 896)
    A(f"""s_or_b32 s{S_T}, s{S_RB}, s{S_W}
s_cmp_eq_u32 s{S_T}, 0
s_cselect_b32 s{MFIRST}, -1, 0
s_cselect_b32 s{MFIRST+1}, -1, 0
s_lshl_b32 s{S_T}, s{S_RB}, 3
s_lshl_b32 s{S_T2}, s{S_W}, 1
s_add_u32 s{S_T}, s{S_T}, s{S_T2}
s_mul_i32 s{S_FR}, s{S_T}, {72*1024}
s_lshl_b32 s{S_GT}, s{S_T}, 6
s_add_u32 s{S_GT}, s{S_GT}, {WS_G}
s_xor_b32 s{S_T}, s{S_T}, 2
s_mul_i32 s{S_CO}, s{S_T}, {72*1024}
s_lshl_b32 s{S_T}, s{S_HW}, 4
s_and_b32 s{S_T2}, s{S_W}, 1
s_lshl_b32 s{S_T2}, s{S_T2}, 11
s_add_u32 s{S_T}, s{S_T}, s{S_T2}
s_add_u32 s{S_HS}, s{S_FR}, s{S_T}
s_add_u32 s{S_HS+1}, s{S_HS}, 73728
s_add_u32 s{S_HS+2}, s{S_CO}, s{S_T}
s_add_u32 s{S_HS+3}, s{S_HS+2}, 73728
s_and_b32 s{S_T}, s{S_HC}, 3
s_lshl_b32 s{S_T}, s{S_T}, 1
s_and_b32 s{S_T2}, s{S_W}, 1
s_add_u32 s{S_T}, s{S_T}, s{S_T2}
s_cmp_eq_u32 s{S_T}, 6
s_cselect_b32 s{S_T2}, 0x40000000, 0""")
    A(f"v_or_b32 {v(vFRa)}, s{S_T2}, {v(vFR)}")
    A(f"s_cmp_eq_u32 s{S_T}, 5\ns_cselect_b32 s{S_T2}, 0x40000000, 0")
    A(f"v_or_b32 {v(vFRb)}, s{S_T2}, {v(vFR)}")
    A(f"""s_lshl_b32 s{S_T}, s{S_HC}, 10
s_add_u32 s{S_OS}, s{S_FR}, s{S_T}
s_add_u32 s{S_OS}, s{S_OS}, {56*1024}
s_lshl_b32 s{S_T}, s{S_RB}, 1
s_lshr_b32 s{S_T2}, s{S_W}, 1
s_add_u32 s{S_T}, s{S_T}, s{S_T2}
s_lshl_b32 s{S_T}, s{S_T}, 4
s_add_u32 s{S_T}, s{S_T}, s{S_HC}
s_lshl_b32 s{S_T}, s{S_T}, 1
s_and_b32 s{S_T2}, s{S_W}, 1
s_add_u32 s{S_T}, s{S_T}, s{S_T2}
s_lshl_b32 s{S_T}, s{S_T}, 3
s_add_u32 s{S_FLP}, s{S_T}, {WS_FL}""")
    if OPT.get("prio", 1): A("s_setprio 2")
    A("s_barrier")
    SWc = 88; S_GWc, S_RF = 58, 59
    vD = XR + 96
    vRS, vRD = XR + 108, XR + 109
    SWEEP = OPT.get("sweep", 1)
    lb = newlab("n0")
    A(f"s_or_b32 s{S_T}, s2, s{S_W}\ns_cmp_lg_u32 s{S_T}, 0\ns_cbranch_scc1 {lb}")
    A(f"s_memrealtime s[{NON}:{NON+1}]\ns_waitcnt lgkmcnt(0)\ns_or_b32 s{NON}, s{NON}, 1")
    A(f"v_mov_b32 {v(vN)}, s{NON}\nv_mov_b32 {v(vN+1)}, s{NON+1}")
    A("s_mov_b64 exec, 1")
    A(f"global_store_dwordx2 {v(vZ)}, {v(vN,2)}, s[{DBG}:{DBG+1}] sc1")
    A("s_mov_b64 exec, -1")
    A.label(lb)
    A(f"s_getpc_b64 s[{SWc}:{SWc+1}]")
    A.label(f"{kname}_pc")
    A(f"s_sub_u32 s{SWc}, s{SWc}, {kname}_pc-{kname}\ns_subb_u32 s{SWc+1}, s{SWc+1}, 0")
    A(f"s_lshr_b32 s{S_T}, s2, 3\ns_and_b32 s{S_T}, s{S_T}, 7\ns_lshl_b32 s{S_T}, s{S_T}, 2\ns_add_u32 s{S_T}, s{S_T}, s{S_W}\ns_lshl_b32 s{S_T}, s{S_T}, 10")
    A(f"v_add_u32 {v(t0)}, s{S_T}, {v(vFR)}")
    A(f"v_min_u32 {v(t0)}, {kname}_end-{kname}-16, {v(t0)}")
    A.vmem(f"global_load_dwordx4 {v(vD,4)}, {v(t0)}, s[{SWc}:{SWc+1}]")
    A(f"s_lshl_b32 s{S_GWc}, s2, 2\ns_add_u32 s{S_GWc}, s{S_GWc}, s{S_W}")
    A(f"s_lshl_b32 s{S_RF}, s2, 3\ns_add_u32 s{S_RF}, s{S_RF}, {WS_FL + 16384}")
    if REPACK:
        A(f"v_bfe_u32 {v(t0)}, {v(vL)}, 2, 1")
        A(f"v_mul_u32_u24 {v(vRS)}, 2688, {v(t0)}")
        A(f"v_mul_u32_u24 {v(t1)}, 56, {v(r8)}")
        A(f"v_add_u32 {v(vRS)}, {v(vRS)}, {v(t1)}")
        A(f"v_lshl_add_u32 {v(vRS)}, {v(l3)}, 4, {v(vRS)}")
        A(f"v_mul_u32_u24 {v(vRD)}, {3*448*64}, {v(r8)}")
        A(f"v_lshl_add_u32 {v(vRD)}, {v(l7)}, 4, {v(vRD)}")
        A(f"s_cmp_ge_u32 s2, 224\ns_cselect_b32 s{S_T}, 0x40000000, 0\ns_cmp_eq_u32 s{S_W}, 3\ns_cselect_b32 s{S_T}, 0x40000000, s{S_T}")
        A(f"v_or_b32 {v(vRS)}, s{S_T}, {v(vRS)}")
        A(f"v_or_b32 {v(vRD)}, s{S_T}, {v(vRD)}")
        A(f"s_mul_i32 s{S_T}, s2, {2*2688}\ns_mul_i32 s{S_T2}, s{S_W}, 896\ns_add_u32 s{S_T}, s{S_T}, s{S_T2}")
        A.vmem(f"buffer_load_dwordx4 {v(vD+4,4)}, {v(vRS)}, s[{QKV}:{QKV+3}], s{S_T} offen")
        last["RL"] = A.vmem(f"buffer_load_dwordx4 {v(vD+8,4)}, {v(vRS)}, s[{QKV}:{QKV+3}], s{S_T} offen offset:448")
    elif SWEEP:
        A(f"s_mul_i32 s{S_T}, s{S_GWc}, 1280")
        A.vmem(f"buffer_load_dwordx4 {v(vD,4)}, {v(vFR)}, s[{QKV}:{QKV+3}], s{S_T} offen")
        A("s_mov_b64 exec, 0xffff")
        A.vmem(f"buffer_load_dwordx4 {v(vD,4)}, {v(vFR)}, s[{QKV}:{QKV+3}], s{S_T} offen offset:1024")
        A("s_mov_b64 exec, -1")
    vSW = vD
    def sweep2():
        if not SWEEP: return
        A(f"s_mul_i32 s{S_T}, s{S_GWc}, 1664")
        A.vmem(f"buffer_load_dwordx4 {v(vSW,4)}, {v(vFR)}, s[{W2}:{W2+3}], s{S_T} offen")
        A("s_mov_b32 exec_hi, 0xff")
        A.vmem(f"buffer_load_dwordx4 {v(vSW,4)}, {v(vFR)}, s[{W2}:{W2+3}], s{S_T} offen offset:1024")
        A(f"s_mov_b32 exec_hi, 0\ns_lshl_b32 s{S_T}, s{S_GWc}, 9")
        A.vmem(f"buffer_load_dwordx4 {v(vSW,4)}, {v(vFR)}, s[{WO}:{WO+3}], s{S_T} offen")
        A("s_mov_b32 exec_hi, -1")
    SWAT = OPT.get("swat", -1)
    if SWAT < 0: sweep2()
    def r_store():
        if REPACK:
            A.wait_vm(last["RL"])
            A(f"s_mul_i32 s{S_T}, s{S_W}, {448*64}\ns_lshl_b32 s{S_T2}, s2, 7\ns_add_u32 s{S_T}, s{S_T}, s{S_T2}\ns_add_u32 s{S_T}, s{S_T}, {WS_QR}\ns_add_u32 s{S_T2}, s{S_T}, {8*3*448*64}")
            A.vmem(f"buffer_store_dwordx4 {v(vD+4,4)}, {v(vRD)}, s[{WS}:{WS+3}], s{S_T} offen sc1")
            A.vmem(f"buffer_store_dwordx4 {v(vD+8,4)}, {v(vRD)}, s[{WS}:{WS+3}], s{S_T2} offen sc1")
        nonce_load(A, last)
    def r_done():
        nonce_check(A, last)
        if REPACK: lds_post(A, 48, 1)
    def r_pub():
        if not REPACK: return
        lb = newlab("rp")
        A(f"s_cmp_lg_u32 s{S_W}, 0\ns_cbranch_scc1 {lb}")
        A(f"s_cmp_ge_u32 s2, 224\ns_cbranch_scc1 {lb}")
        sv = (A.vm, A.vm_done, A.ds, A.ds_done)
        lds_wait_min(A, 48, 1)
        publish(A, S_RF, 0)
        A.vm, A.vm_done, A.ds, A.ds_done = sv
        A.label(lb)
        ST("R pub")
    ST("pro done")
    if OPT.get("lonly", 0):
        r_store(); r_done(); r_pub()
        lds_post(A, 16, 99)
        A(f"s_branch {kname}_cfin")

    pre = {}
    busy = [False]
    cold = []
    def acquire(u):
        val = max(SEQ[lu] for lu in NEED[u]) + 1
        lds_wait_min(A, 0, val, pre.pop("t", None))
        ST(f"acq{u}")
    def acquire_atoms(u):
        val = max(SEQ[lu] for lu in NEED[u]) + 1
        sl, ok = newlab("as"), newlab("ak")
        tk = {}
        def a0(): tk["t"] = lds_flag_read(A, 0); busy[0] = True
        def a1(): A.wait_ds(tk["t"]); A(f"v_min3_u32 {v(vFV)}, {v(vFV)}, {v(vFV+1)}, {v(vFV+2)}")
        def a2(): A(f"v_min_u32 {v(vFV)}, {v(vFV)}, {v(vFV+3)}\ns_nop 0")
        def a3(): A(f"v_readfirstlane_b32 s{S_T2}, {v(vFV)}\ns_cmp_ge_u32 s{S_T2}, {val}\ns_cbranch_scc0 {sl}"); A.label(ok); ST(f"acq{u}"); busy[0] = False
        cold.append(f"""{sl}:
    s_sleep 1
    ds_read_b128 {v(vFV,4)}, {v(vFL)}
    s_waitcnt lgkmcnt(0)
    v_min3_u32 {v(vFV)}, {v(vFV)}, {v(vFV+1)}, {v(vFV+2)}
    v_min_u32 {v(vFV)}, {v(vFV)}, {v(vFV+3)}
    s_add_u32 s{S_SPIN}, s{S_SPIN}, 1
    v_readfirstlane_b32 s{S_T2}, {v(vFV)}
    s_cmp_ge_u32 s{S_T2}, {val}
    s_cbranch_scc1 {ok}
    s_cmp_lt_u32 s{S_SPIN}, 0x200000
    s_cbranch_scc1 {sl}
    s_branch {ok}""")
        return a0, [a1, a2, a3]
    def release(u):
        lds_post(A, 16, UIDX[u] + 1)
    class Frag:
        def __init__(self, unit, reads, mf): self.unit = unit; self.reads = reads; self.mf = mf
    done = set()
    from collections import deque
    def run_frags(frags, LA, hooks={}, per_gap=2):
        n = len(frags); tk = [None]*n
        state = run_frags.seq
        q = deque()
        early = {}
        for i in range(n):
            if frags[i].unit not in done and (i == 0 or frags[i-1].unit != frags[i].unit) and i >= 3:
                early[i] = acquire_atoms(frags[i].unit)
        def enqueue(i):
            f = frags[i]
            if i + 3 in early: q.append((None, early[i+3][0]))
            if f.unit not in done:
                done.add(f.unit)
                if i in early:
                    for at in early[i][1]: q.append((None, at))
                else: q.append((None, lambda u=f.unit: acquire(u)))
            rl = f.reads(WR + 4*((state + i) % NWR))
            for k, ins in enumerate(rl):
                def at(ins=ins, i=i): tk[i] = A.dsop(ins)
                q.append((i if k == len(rl) - 1 else None, at))
        enq = 0; emitted = -1
        for i in range(n):
            while enq < min(n, i + LA + 1):
                enqueue(enq); enq += 1
            while emitted < i:
                fi, at = q.popleft(); at()
                if fi is not None: emitted = fi
            ms = frags[i].mf(WR + 4*((state + i) % NWR))
            if ms: A.wait_ds(tk[i])
            for ins in ms:
                A(ins)
                for _ in range(per_gap):
                    if q:
                        fi, at = q.popleft(); at()
                        if fi is not None: emitted = fi
            if i == n - 1 or frags[i+1].unit != frags[i].unit:
                if not ms: A.wait_ds(tk[i])
                if frags[i].unit != ("A", 6) or not OPT.get("lateA6", 1): q.appendleft((None, lambda u=frags[i].unit: release(u)))
            if i in hooks:
                assert not busy[0], f"hook {i} inside an acquire sequence"
                hooks[i]()
        while q: q.popleft()[1]()
        run_frags.seq = (state + n) % NWR
    run_frags.seq = 0
    def trr(dst, va, off): return f"ds_read_b64_tr_b16 {v(dst,2)}, {v(va)} offset:{off}"
    acquire(("A", 0)); done.add(("A", 0))
    for b in range(4): tkb = A.dsop(f"ds_read_b64 {v(vRAW+2*b,2)}, {v(WR)} offset:{32*b}")
    A.wait_ds(tkb)
    for i in range(8):
        A(f"v_lshlrev_b32 {v(vBIAS+2*i)}, 16, {v(vRAW+i)}")
        A(f"v_and_b32 {v(vBIAS+2*i+1)}, 0xffff0000, {v(vRAW+i)}")
    fr = []
    for ks in range(14):
        c, s2 = ks // 2, ks % 2
        for b in range(5):
            def reads(r, ks=ks, c=c, s2=s2, b=b):
                out = []
                if b == 0:
                    for jj in range(4):
                        out.append(f"ds_read_b128 {v(axa(ks,jj),4)}, {v((vXA if jj < 2 else vXO)+s2)} offset:{(page[('X',c)]-4)*PAGE + (jj&1)*2048}")
                if b == 4: return [f"ds_read_b128 {v(r,4)}, {v(vGA)} offset:{64*ks}"]
                return out + [trr(r + 2*hf, vHA + b, page[("H", c)]*PAGE + (32*s2 + 16*hf)*256) for hf in range(2)]
            def mf(r, ks=ks, b=b):
                if b == 4:
                    return [f"v_mfma_f32_16x16x32_bf16 {v(ACG+4*tb,4)}, {v(r,4)}, {v(ax(ks,tb),4)}, {v(ACG+4*tb,4) if ks else '0'}" for tb in range(2)]
                return [f"v_mfma_f32_16x16x32_bf16 {v(ach(jj,b),4)}, {v(r,4)}, {v(axa(ks,jj),4)}, {v(ach(jj,b),4) if ks else v(vBIAS+4*b,4)}" for jj in range(4)]
            fr.append(Frag(("A", c), reads, mf))
    hk = {OPT.get("rst", 1): r_store, OPT.get("rdone", 20): r_done, OPT.get("rdone", 20) + 1: r_pub}
    if SWAT >= 0:
        hk[SWAT] = sweep2
        hk[50] = lambda: A.wait_vm_all()
    run_frags(fr, OPT.get("laA", 5), hooks=hk)
    ST("A done")
    for pp in range(2):
        for jj in range(4):
            for bb in (2*pp, 2*pp + 1):
                r = ach(jj, bb)
                for i in range(4): A(f"v_max_f32 {v(r+i)}, 0, {v(r+i)}")
                A(f"v_pk_mul_f32 {v(r,2)}, {v(r,2)}, {v(r,2)}")
                A(f"v_pk_mul_f32 {v(r+2,2)}, {v(r+2,2)}, {v(r+2,2)}")
                dst = ach(jj, 2*pp) + 2 * (bb & 1)
                A(f"v_cvt_pk_bf16_f32 {v(dst)}, {v(r)}, {v(r+1)}")
                A(f"v_cvt_pk_bf16_f32 {v(dst+1)}, {v(r+2)}, {v(r+3)}")
            last["HS"] = A.vmem(f"buffer_store_dwordx4 {v(ach(jj,2*pp),4)}, {v(vFRb if pp else vFRa)}, s[{WS}:{WS+3}], s{S_HS+jj} offen offset:{1024*pp} sc1")
    for tb in range(2): A(f"v_mul_f32 {v(ACG+4*tb)}, 0xbfb8aa3b, {v(ACG+4*tb)}")
    for tb in range(2): A(f"v_exp_f32 {v(ACG+4*tb)}, {v(ACG+4*tb)}")
    A(f"v_lshrrev_b32 {v(ACG+1)}, 1, {v(vL8)}")
    for tb in range(2): A(f"v_add_f32 {v(ACG+4*tb)}, 1.0, {v(ACG+4*tb)}")
    for tb in range(2): A(f"v_rcp_f32 {v(ACG+4*tb)}, {v(ACG+4*tb)}")
    lb = newlab("g")
    A(f"s_cmp_lg_u32 s{S_HC}, 2\ns_cbranch_scc1 {lb}")
    A("s_mov_b64 exec, 0xffff")
    for tb in range(2): A(f"buffer_store_dword {v(ACG+4*tb)}, {v(ACG+1)}, s[{WS}:{WS+3}], s{S_GT} offen offset:{64*tb} sc1")
    A("s_mov_b64 exec, -1")
    A.label(lb)
    if OPT.get("lateA6", 1): release(("A", 6))
    ST("H epi done")
    q0, q1, q2, q3 = 9, 10, 11, 13
    A(f"v_lshrrev_b32 {v(q0)}, 2, {v(vL)}")
    A(f"v_bfe_u32 {v(q1)}, {v(vL)}, 4, 1")
    A(f"v_and_b32 {v(q2)}, 3, {v(vL)}")
    A(f"v_lshlrev_b32 {v(vQA)}, 6, {v(q0)}")
    A(f"v_lshl_add_u32 {v(vQA)}, {v(q1)}, 5, {v(vQA)}")
    A(f"v_lshl_add_u32 {v(vQA)}, {v(q2)}, 3, {v(vQA)}")
    A(f"v_xor_b32 {v(vQA+1)}, 32, {v(vQA)}")
    A(f"""s_and_b32 s{S_T}, s{S_W}, 1
s_lshl_b32 s{S_T}, s{S_T}, 5
s_lshr_b32 s{S_T2}, s{S_W}, 1
s_lshl_b32 s{S_T2}, s{S_T2}, 12""")
    A(f"v_xor_b32 {v(vQA+2)}, s{S_T}, {v(vQA)}")
    A(f"v_add_u32 {v(vQA+2)}, s{S_T2}, {v(vQA+2)}")
    A(f"v_and_b32 {v(vXH)}, 0x7ff, {v(vXA)}")
    A(f"v_xor_b32 {v(vXH+1)}, 64, {v(vXH)}")
    for z in (1, 2):
        for i in range(3): A(f"v_add_u32 {v(vQA+3*z+i)}, {z*65536}, {v(vQA+i)}")
        for i in range(2): A(f"v_add_u32 {v(vXH+2*z+i)}, {z*65536}, {v(vXH+i)}")
    fr = []
    for ks in range(14):
        c, s2 = ks // 2, ks % 2; pg = page[("Q", c)]; z = pg // 4; rel = (pg % 4) * PAGE
        hold = {}
        for f in range(8):
            def reads(r, ks=ks, s2=s2, f=f, z=z, rel=rel, hold=hold):
                if f == 6:
                    hold["x"] = r
                    return [f"ds_read_b128 {v(r,4)}, {v(vXH+2*z+s2)} offset:{rel + 12288}"]
                va = vQA + 3*z + (2 if f == 7 else (f & 1)); ro = 4096 if f == 7 else 4096*(f//2)
                return [trr(r + 2*hf, va, rel + ro + (32*s2 + 16*hf)*64) for hf in range(2)]
            def mf(r, ks=ks, f=f, hold=hold):
                if f == 6: return []
                if f == 7:
                    d = v(ACC_HL, 4)
                    return [f"v_mfma_f32_16x16x32_bf16 {d}, {v(r,4)}, {v(hold['x'],4)}, {d if ks else '0'}"]
                out = []
                for tb in range(2):
                    d = v(acq(tb, f), 4); cc = d if ks else "0"
                    wf, xf = v(r, 4), v(ax(ks, tb), 4)
                    out.append(f"v_mfma_f32_16x16x32_bf16 {d}, {xf}, {wf}, {cc}" if f >= 4 else f"v_mfma_f32_16x16x32_bf16 {d}, {wf}, {xf}, {cc}")
                return out
            fr.append(Frag(("Q", c), reads, mf))
    def pubH():
        A.wait_vm_all(); publish(A, S_FLP, 0); ST("H pub")
    pubH()
    run_frags(fr, NWR - 2)
    ST("B done")
    XCH = 8 * PAGE
    E = XR
    KP, QP, VP, HLP, vXCA = E, E + 12, E + 20, E + 32, E + 34
    SS = E + 40
    TT_ = E + 56
    PPp = E + 64
    OO = E + 72
    OP = E + 88
    vG3, vSEL = E + 96, E + 97
    u0, u1, u2 = E + 104, E + 105, E + 106
    tkc = lds_flag_read(A, 16)
    def pk(dst, src):
        A(f"v_cvt_pk_bf16_f32 {v(dst)}, {v(src)}, {v(src+1)}")
        A(f"v_cvt_pk_bf16_f32 {v(dst+1)}, {v(src+2)}, {v(src+3)}")
    A(f"s_lshl_b32 s{S_T}, s{S_W}, 11\ns_add_u32 s{S_T}, s{S_T}, {XCH}")
    A(f"v_add_u32 {v(vXCA)}, s{S_T}, {v(vFR)}")
    A(f"v_add_u32 {v(vXCA+1)}, s{S_T}, {v(vL8)}")
    pk(KP + 8, acq(1, 2)); pk(KP + 10, acq(1, 3))
    pk(VP + 4, acq(1, 4)); pk(VP + 10, acq(1, 5))
    lds_wait_min(A, 16, UIDX[("Q", 0)] + 1, tkc)
    pk(HLP, ACC_HL)
    A.dsop(f"ds_write_b128 {v(vXCA)}, {v(KP+8,4)} offset:2048")
    A.dsop(f"ds_write_b64 {v(vXCA+1)}, {v(VP+4,2)} offset:{2048+1024}")
    A.dsop(f"ds_write_b64 {v(vXCA+1)}, {v(VP+10,2)} offset:{2048+1536}")
    A(f"s_cmp_ge_u32 s{S_W}, 2\ns_cbranch_scc1 {kname}_hv")
    A(f"s_lshl_b32 s{S_T}, s{S_W}, 3\ns_add_u32 s{S_T}, s{S_T}, {XCH}")
    A(f"v_add_u32 {v(vXCA+2)}, s{S_T}, {v(vFR)}")
    A(f"ds_write_b64 {v(vXCA+2)}, {v(HLP,2)}")
    A(f"s_branch {kname}_hd")
    A.label(f"{kname}_hv")
    A(f"s_and_b32 s{S_T}, s{S_W}, 1\ns_lshl_b32 s{S_T}, s{S_T}, 9\ns_add_u32 s{S_T}, s{S_T}, {XCH+1024}")
    A(f"v_bfe_u32 {v(vXCA+2)}, {v(vL)}, 2, 2")
    A(f"v_lshlrev_b32 {v(vXCA+2)}, 7, {v(vXCA+2)}")
    A(f"v_lshrrev_b32 {v(vXCA+3)}, 4, {v(vL)}")
    A(f"v_lshl_add_u32 {v(vXCA+2)}, {v(vXCA+3)}, 5, {v(vXCA+2)}")
    A(f"v_and_b32 {v(vXCA+3)}, 3, {v(vL)}")
    A(f"v_lshl_add_u32 {v(vXCA+2)}, {v(vXCA+3)}, 1, {v(vXCA+2)}")
    A(f"v_add_u32 {v(vXCA+2)}, s{S_T}, {v(vXCA+2)}")
    A(f"ds_write_b16 {v(vXCA+2)}, {v(HLP)}")
    A(f"ds_write_b16_d16_hi {v(vXCA+2)}, {v(HLP)} offset:8")
    A(f"ds_write_b16 {v(vXCA+2)}, {v(HLP+1)} offset:16")
    A(f"ds_write_b16_d16_hi {v(vXCA+2)}, {v(HLP+1)} offset:24")
    A.label(f"{kname}_hd")
    lds_post(A, 32, 1)
    A.ds_done = 0 if False else A.ds_done
    A(f"v_lshrrev_b32 {v(u0)}, 4, {v(vL)}")
    A(f"v_cmp_eq_u32 vcc, 3, {v(u0)}")
    A(f"v_mov_b32 {v(u0)}, 0x0c0c0100\nv_mov_b32 {v(u1)}, 0x01000c0c\nv_mov_b32 {v(u2)}, 0x0c0c0c0c")
    A(f"v_cndmask_b32 {v(vG3)}, -1, 0, vcc")
    A(f"v_cndmask_b32 {v(u0)}, {v(u0)}, {v(u1)}, s[{MP}:{MP+1}]")
    A(f"v_cndmask_b32 {v(vSEL+0)}, {v(u0)}, {v(u2)}, s[{MA}:{MA+1}]")
    A(f"v_cndmask_b32 {v(vSEL+2)}, {v(u2)}, {v(u0)}, s[{MA}:{MA+1}]")
    A(f"v_mov_b32 {v(u0)}, 0x0c0c0302\nv_mov_b32 {v(u1)}, 0x03020c0c")
    A(f"v_cndmask_b32 {v(u0)}, {v(u0)}, {v(u1)}, s[{MP}:{MP+1}]")
    A(f"v_cndmask_b32 {v(vSEL+1)}, {v(u0)}, {v(u2)}, s[{MB}:{MB+1}]")
    A(f"v_cndmask_b32 {v(vSEL+3)}, {v(u2)}, {v(u0)}, s[{MB}:{MB+1}]")
    pk(KP + 4, acq(0, 2)); pk(KP + 6, acq(0, 3))
    pk(VP + 2, acq(0, 4)); pk(VP + 8, acq(0, 5))
    for tb in (1, 0):
        pk(QP + 4*tb, acq(tb, 0)); pk(QP + 2 + 4*tb, acq(tb, 1))
        A(f"v_and_b32 {v(QP+2+4*tb)}, {v(vG3)}, {v(QP+2+4*tb)}")
        A(f"v_and_b32 {v(QP+3+4*tb)}, {v(vG3)}, {v(QP+3+4*tb)}")
    A.wait_ds_all()
    lds_wait_min(A, 32, 1)
    A.dsop(f"ds_read_b128 {v(KP,4)}, {v(vXCA)}")
    A.dsop(f"ds_read_b64 {v(VP,2)}, {v(vXCA+1)} offset:1024")
    tkx = A.dsop(f"ds_read_b64 {v(VP+6,2)}, {v(vXCA+1)} offset:1536")
    A(f"s_add_u32 s{S_GT}, s{S_OS}, 73728")
    CSC = "0x3e8b97f6"
    def S_(tb, cur): return SS + 8*tb + 4*cur
    A(f"v_mfma_f32_16x16x32_bf16 {v(S_(1,0),4)}, {v(KP+4,4)}, {v(QP+4,4)}, 0")
    A(f"v_mfma_f32_16x16x32_bf16 {v(S_(1,1),4)}, {v(KP+8,4)}, {v(QP+4,4)}, 0")
    A(f"v_mfma_f32_16x16x32_bf16 {v(S_(0,1),4)}, {v(KP+4,4)}, {v(QP,4)}, 0")
    A.wait_ds(tkx)
    A(f"v_mfma_f32_16x16x32_bf16 {v(S_(0,0),4)}, {v(KP,4)}, {v(QP,4)}, 0")
    A(f"v_mov_b32 {v(u0)}, 0xf149f2ca")
    A.nop(5)
    def both(fn):
        for tb in (1, 0): fn(tb, TT_ + 4*tb, TT_ + 4*tb + 1, TT_ + 4*tb + 2, TT_ + 4*tb + 3)
    both(lambda tb, tA, tB, tC, tD: A(f"v_cndmask_b32 {v(tC)}, {v(S_(tb,1))}, {v(S_(tb,1)+1)}, s[{MP}:{MP+1}]\nv_cndmask_b32 {v(tD)}, {v(S_(tb,1)+2)}, {v(S_(tb,1)+3)}, s[{MP}:{MP+1}]"))
    both(lambda tb, tA, tB, tC, tD: A(f"v_cndmask_b32 {v(tA)}, {v(S_(tb,0))}, {v(S_(tb,0)+1)}, s[{MP}:{MP+1}]\nv_cndmask_b32 {v(tB)}, {v(S_(tb,0)+2)}, {v(S_(tb,0)+3)}, s[{MP}:{MP+1}]"))
    A(f"v_cndmask_b32 {v(TT_)}, {v(TT_)}, {v(u0)}, s[{MFIRST}:{MFIRST+1}]")
    A(f"v_cndmask_b32 {v(TT_+1)}, {v(TT_+1)}, {v(u0)}, s[{MFIRST}:{MFIRST+1}]")
    both(lambda tb, tA, tB, tC, tD: A(f"v_cndmask_b32 {v(tA)}, {v(tA)}, {v(tC)}, s[{MA}:{MA+1}]\nv_cndmask_b32 {v(tB)}, {v(tB)}, {v(tD)}, s[{MB}:{MB+1}]"))
    both(lambda tb, tA, tB, tC, tD: A(f"v_max_f32 {v(tC)}, {v(tA)}, {v(tB)}"))
    def xreduce(op):
        for sw in ("v_permlane16_swap_b32", "v_permlane32_swap_b32"):
            both(lambda tb, tA, tB, tC, tD: A(f"v_mov_b32 {v(tD)}, {v(tC)}"))
            A("s_nop 0")
            both(lambda tb, tA, tB, tC, tD: A(f"{sw} {v(tC)}, {v(tD)}"))
            A("s_nop 0")
            both(lambda tb, tA, tB, tC, tD: A(f"{op} {v(tC)}, {v(tC)}, {v(tD)}"))
    xreduce("v_max_f32")
    both(lambda tb, tA, tB, tC, tD: A(f"v_sub_f32 {v(tA)}, {v(tA)}, {v(tC)}\nv_sub_f32 {v(tB)}, {v(tB)}, {v(tC)}"))
    both(lambda tb, tA, tB, tC, tD: A(f"v_mul_f32 {v(tA)}, {CSC}, {v(tA)}\nv_mul_f32 {v(tB)}, {CSC}, {v(tB)}"))
    both(lambda tb, tA, tB, tC, tD: A(f"v_exp_f32 {v(tA)}, {v(tA)}\nv_exp_f32 {v(tB)}, {v(tB)}"))
    A("s_nop 0")
    both(lambda tb, tA, tB, tC, tD: A(f"v_add_f32 {v(tC)}, {v(tA)}, {v(tB)}"))
    xreduce("v_add_f32")
    both(lambda tb, tA, tB, tC, tD: A(f"v_rcp_f32 {v(tC)}, {v(tC)}"))
    A("s_nop 0")
    both(lambda tb, tA, tB, tC, tD: A(f"v_mul_f32 {v(tC)}, {v(tC)}, {v(ACG+4*tb)}"))
    both(lambda tb, tA, tB, tC, tD: A(f"v_mul_f32 {v(tA)}, {v(tA)}, {v(tC)}\nv_mul_f32 {v(tB)}, {v(tB)}, {v(tC)}"))
    both(lambda tb, tA, tB, tC, tD: A(f"v_cvt_pk_bf16_f32 {v(tA)}, {v(tA)}, {v(tB)}"))
    both(lambda tb, tA, tB, tC, tD: A("\n".join(f"v_perm_b32 {v(PPp+4*tb+i)}, {v(tA)}, {v(tA)}, {v(vSEL+i)}" for i in range(4))))
    A("s_nop 0")
    for tb in (1, 0):
        A(f"v_mfma_f32_16x16x32_bf16 {v(OO+8*tb,4)}, {v(VP+2*tb,4)}, {v(PPp+4*tb,4)}, 0")
        A(f"v_mfma_f32_16x16x32_bf16 {v(OO+8*tb+4,4)}, {v(VP+6+2*tb,4)}, {v(PPp+4*tb,4)}, 0")
    A.nop(6)
    for tb in (1, 0):
        op = OP + 4*tb
        pk(op, OO + 8*tb); pk(op + 2, OO + 8*tb + 4)
        A(f"v_and_b32 {v(op+2)}, {v(vG3)}, {v(op+2)}")
        A(f"v_and_b32 {v(op+3)}, {v(vG3)}, {v(op+3)}")
        last["OS"] = A.vmem(f"buffer_store_dwordx4 {v(op,4)}, {v(vFR)}, s[{WS}:{WS+3}], s{S_OS if tb == 0 else S_GT} offen sc1")
    ST("attn done")
    A.wait_vm_all()
    publish(A, S_FLP, 8192)
    ST("O pub")
    A.label(f"{kname}_cfin")
    ST.dump(WS, S_W8, vL, vT)
    A("s_endpgm")
    for cblk in cold: A.raw(cblk)

    A = L; ST = Stamper(L, vST, "L", [98, 72, 74, 76, 78, 64, 66, 70]); last = {}
    A.label(f"{kname}_L")
    S_XO, S_HO, S_QO, S_XH, S_M4, S_M1, S_MXH, S_FLC, S_FO, S_WOB, S_W2B, S_RF, S_GW = 48, 49, 50, 51, 52, 53, 54, 55, 56, 57, 58, 59, 60
    SW = 88
    vXD, vXHD, vHD0, vHD1, vQD, vW2D, vRS, vRD = 24, 25, 26, 27, 28, 29, 30, 31
    vD = 32
    ST("start")
    A(f"v_mul_u32_u24 {v(t1)}, 896, {v(r8)}")
    A(f"v_xor_b32 {v(t0)}, {v(l7)}, {v(r8)}")
    A(f"v_lshl_add_u32 {v(vXD)}, {v(t0)}, 4, {v(t1)}")
    A(f"v_and_b32 {v(t0)}, 1, {v(g)}")
    A(f"v_xor_b32 {v(t0)}, {v(t0)}, {v(l7)}")
    A(f"v_lshl_add_u32 {v(vW2D)}, {v(t0)}, 4, {v(t1)}")
    A(f"v_mul_u32_u24 {v(t1)}, 3584, {v(g)}")
    A(f"v_lshlrev_b32 {v(t0)}, 1, {v(g)}")
    A(f"v_xor_b32 {v(t0)}, {v(t0)}, {v(c16)}")
    A(f"v_lshl_add_u32 {v(vHD0)}, {v(t0)}, 4, {v(t1)}")
    A(f"v_xor_b32 {v(vHD1)}, 0x80, {v(vHD0)}")
    A("s_waitcnt lgkmcnt(0)")
    srd(A, X, KA, 2048 * 896)
    srd(A, W1, KA+8, 448 * 3584)
    srd(A, QKV, KA+2, 448 * 2688)
    srd(A, WO, KA+4, 448 * 896)
    srd(A, W2, KA+12, 1792 * 896)
    srd(A, B1, KA+10, 3584)
    srd(A, GW, KA+16, 896)
    srd(A, B2, KA+14, 896)
    srd(A, OUT, KA+18, 2048 * 896)
    if OPT.get("wsoff", 0): A(f"s_add_u32 s{KA+22}, s{KA+22}, {OPT['wsoff'] << 20}\ns_addc_u32 s{KA+23}, s{KA+23}, 0")
    srd(A, WS, KA+22, WS_BYTES)
    A(f"s_lshl_b32 s{S_GW}, s2, 2\ns_add_u32 s{S_GW}, s{S_GW}, s{S_W}")
    if SWEEP == 2:
        A(f"s_mul_i32 s{S_T}, s{S_GW}, 1792")
        A.vmem(f"buffer_load_dwordx4 {v(vD,4)}, {v(vFR)}, s[{X}:{X+3}], s{S_T} offen")
        A("s_mov_b32 exec_hi, 0xffff")
        A.vmem(f"buffer_load_dwordx4 {v(vD,4)}, {v(vFR)}, s[{X}:{X+3}], s{S_T} offen offset:1024")
        A("s_mov_b32 exec_hi, -1")
        A(f"s_mul_i32 s{S_T}, s{S_GW}, 1664")
        A.vmem(f"buffer_load_dwordx4 {v(vD,4)}, {v(vFR)}, s[{W1}:{W1+3}], s{S_T} offen")
        A("s_mov_b32 exec_hi, 0xff")
        A.vmem(f"buffer_load_dwordx4 {v(vD,4)}, {v(vFR)}, s[{W1}:{W1+3}], s{S_T} offen offset:1024")
        A("s_mov_b32 exec_hi, -1")
    QROW = 64 if REPACK else 2688
    A(f"""s_lshr_b32 s{S_T}, s{S_W}, 1
s_lshl_b32 s{S_T}, s{S_T}, 5
s_and_b32 s{S_T2}, s{S_W}, 1
s_lshl_b32 s{S_T2}, s{S_T2}, 2
s_add_u32 s{S_T}, s{S_T}, s{S_T2}
s_mul_i32 s{S_HO}, s{S_T}, 3584
s_add_u32 s{S_HO}, s{S_HO}, s{S_HW}
s_mul_i32 s{S_QO}, s{S_T}, {QROW}
s_mul_i32 s{S_T2}, s{S_HC}, {3*448*64 if REPACK else 56}
s_add_u32 s{S_QO}, s{S_QO}, s{S_T2}
s_lshl_b32 s{S_T}, s{S_RB}, 7
s_lshl_b32 s{S_T2}, s{S_W}, 5
s_add_u32 s{S_T2}, s{S_T}, s{S_T2}
s_mul_i32 s{S_XO}, s{S_T2}, 896
s_sub_i32 s{S_T}, s{S_T}, 16
s_max_i32 s{S_T}, s{S_T}, 0
s_lshl_b32 s{S_T2}, s{S_W}, 2
s_add_u32 s{S_T}, s{S_T}, s{S_T2}
s_mul_i32 s{S_XH}, s{S_T}, 896
s_lshl_b32 s{S_M4}, s{S_W}, 12
s_lshl_b32 s{S_M1}, s{S_W}, 10
s_lshl_b32 s{S_MXH}, s{S_W}, 9""")
    S_R1, S_R2, S_R3 = 94, 95, 96
    if OPT.get("rot", 1):
        A(f"""s_lshl_b32 s{S_T}, s{S_HC}, 1
s_add_u32 s{S_T}, s{S_T}, s{S_RB}
s_mul_i32 s{S_T2}, s{S_T}, 37
s_lshr_b32 s{S_T2}, s{S_T2}, 8
s_mul_i32 s{S_T2}, s{S_T2}, 7
s_sub_u32 s{S_R1}, s{S_T}, s{S_T2}
s_and_b32 s{S_T}, s{S_TT}, 3
s_mul_i32 s{S_T}, s{S_T}, 7
s_add_u32 s{S_T}, s{S_T}, 1
s_lshr_b32 s{S_T}, s{S_T}, 1
s_lshl_b32 s{S_T2}, s{S_CT}, 1
s_add_u32 s{S_T}, s{S_T}, s{S_T2}
s_sub_u32 s{S_T2}, s{S_T}, 14
s_cmp_ge_u32 s{S_T}, 14
s_cselect_b32 s{S_R2}, s{S_T2}, s{S_T}
s_add_u32 s{S_T}, s{S_TT}, s{S_CT}
s_and_b32 s{S_R3}, s{S_T}, 3""")
    else:
        A(f"s_mov_b32 s{S_R1}, 0\ns_mov_b32 s{S_R2}, 0\ns_mov_b32 s{S_R3}, 0")
    lb = newlab("w0")
    A(f"s_cmp_lg_u32 s{S_W}, 0\ns_cbranch_scc1 {lb}")
    A(f"s_mov_b32 m0, {L_BIAS}\ns_mov_b64 exec, 0xffff")
    A(f"buffer_load_dwordx4 {v(vFR)}, s[{B1}:{B1+3}], s{S_HW} offen lds")
    A(f"s_mov_b32 m0, {L_GATE}\ns_mov_b32 exec_lo, -1\ns_mov_b32 exec_hi, 0xffffff")
    A(f"s_lshl_b32 s{S_T}, s{S_R1}, 7")
    A(f"v_add_u32 {v(t0)}, s{S_T}, {v(vFR)}")
    A(f"v_subrev_u32 {v(t1)}, 896, {v(t0)}")
    A(f"v_min_u32 {v(t0)}, {v(t0)}, {v(t1)}")
    A(f"buffer_load_dwordx4 {v(t0)}, s[{GW}:{GW+3}], 0 offen lds")
    A("s_mov_b64 exec, -1")
    A.label(lb)
    S_CB = 93
    def rot_base(sdst, srot, idx, mod, mult, sadd):
        A(f"s_add_u32 s{sdst}, s{srot}, {idx}")
        A(f"s_sub_u32 s{S_T2}, s{sdst}, {mod}")
        A(f"s_cmp_ge_u32 s{sdst}, {mod}")
        A(f"s_cselect_b32 s{sdst}, s{S_T2}, s{sdst}")
        A(f"s_mul_i32 s{sdst}, s{sdst}, {mult}")
        A(f"s_add_u32 s{sdst}, s{sdst}, s{sadd}")
    def dma(m0reg, m0off, sreg, soff, va, sr, flags=""):
        A(f"s_add_u32 m0, s{m0reg}, {m0off}")
        A(f"s_add_u32 s{S_T}, s{sreg}, {soff}")
        return A.vmem(f"buffer_load_dwordx4 {v(va)}, s[{sr}:{sr+3}], s{S_T} offen {flags} lds")
    def load(lu):
        k, c = lu; pb = page[lu] * PAGE
        if k == "H":
            rot_base(S_CB, S_R1, c, 7, 64*3584, S_HO)
            for gi in range(4): t = dma(S_M4, pb + gi*1024, S_CB, 8*gi*3584, vHD1 if gi & 1 else vHD0, W1)
        elif k == "X":
            rot_base(S_CB, S_R1, c, 7, 128, S_XO)
            for q in range(4): t = dma(S_M4, pb + q*1024, S_CB, q*8*896, vXD, X)
        elif k == "Q":
            rot_base(S_CB, S_R1, c, 7, 4096 if REPACK else 172032, S_QO)
            for p in range(3):
                if REPACK: dma(S_M1, pb + p*4096, S_CB, WS_QR + p*448*64, vQD, WS, "sc1")
                else: dma(S_M1, pb + p*4096, S_CB, 896*p, vQD, QKV)
            rot_base(S_CB, S_R1, c, 7, 128, S_XH)
            A(f"s_mov_b64 exec, s[{M32}:{M32+1}]")
            t = dma(S_MXH, pb + 12288, S_CB, 0, vXHD, X)
            A("s_mov_b64 exec, -1")
        last[lu] = t
    def poll(tag, sreg, off, wide=False):
        lp, ok = newlab("pl"), newlab("pk")
        A(f"s_add_u32 s{S_T}, s{sreg}, {off}")
        if not wide: A(f"s_mov_b64 exec, s[{M32}:{M32+1}]")
        A.label(lp)
        if wide:
            A(f"buffer_load_dwordx4 {v(vD+12,4)}, {v(vFR)}, s[{WS}:{WS+3}], s{S_T} offen sc1")
            A(f"buffer_load_dwordx4 {v(vD+16,4)}, {v(vFR)}, s[{WS}:{WS+3}], s{S_T} offen offset:768 sc1")
            A("s_waitcnt vmcnt(0)")
            A(f"v_cmp_ne_u64 vcc, s[{NON}:{NON+1}], {v(vD+12,2)}")
            for i in range(1, 4):
                A(f"v_cmp_ne_u64 s[{SW}:{SW+1}], s[{NON}:{NON+1}], {v(vD+12+2*i,2)}")
                A(f"s_or_b64 vcc, vcc, s[{SW}:{SW+1}]")
            A(f"s_cmp_eq_u64 vcc, 0\ns_cbranch_scc1 {ok}")
        else:
            A(f"buffer_load_dwordx2 {v(vD+12,2)}, {v(vL8)}, s[{WS}:{WS+3}], s{S_T} offen sc1")
            A("s_waitcnt vmcnt(0)")
            A(f"v_cmp_ne_u64 vcc, s[{NON}:{NON+1}], {v(vD+12,2)}")
            A(f"s_cbranch_vccz {ok}")
        A(f"s_sleep {OPT.get('psleep', 3)}")
        spin_guard(A, lp)
        A.label(ok)
        A("s_mov_b64 exec, -1")
        A.vm_done = A.vm
        ST(f"poll {tag} ok")
    def poll_issue(key, sreg, off):
        A(f"s_add_u32 s{S_T}, s{sreg}, {off}")
        A(f"s_mov_b64 exec, s[{M32}:{M32+1}]")
        last[key] = A.vmem(f"buffer_load_dwordx2 {v(vD+12,2)}, {v(vL8)}, s[{WS}:{WS+3}], s{S_T} offen sc1")
        A("s_mov_b64 exec, -1")
    def poll_finish(key, tag, sreg, off):
        ok = newlab("pf")
        A.wait_vm(last[key])
        A(f"s_mov_b64 exec, s[{M32}:{M32+1}]")
        A(f"v_cmp_ne_u64 vcc, s[{NON}:{NON+1}], {v(vD+12,2)}")
        A("s_mov_b64 exec, -1")
        A(f"s_cbranch_vccz {ok}")
        sv = (A.vm, A.vm_done)
        poll(tag, sreg, off)
        A.vm, A.vm_done = sv
        A.label(ok)
    ST("addr done")
    posted = [0]
    def post_upto(n, stamp=True):
        if n <= posted[0]: return
        A.wait_vm(last[seq[n-1]])
        lds_post(A, 0, n)
        posted[0] = n
        if stamp: ST(f"post {seq[n-1]}")
    if OPT.get("conly", 0):
        A("s_barrier")
        lds_post(A, 0, 99)
        A(f"s_branch {kname}_lfin")
    load(seq[0]); ST("H0 iss"); load(seq[1]); ST("X0 iss")
    NB = OPT.get("nbar", 2)
    if NB == 2: A("s_barrier")
    A(f"s_and_b32 s{S_T}, s{S_W}, 1\ns_lshl_b32 s{S_T}, s{S_T}, 6")
    A(f"v_xor_b32 {v(vXHD)}, s{S_T}, {v(vXD)}")
    A(f"v_and_b32 {v(t0)}, 3, {v(r16)}")
    A(f"v_lshl_add_u32 {v(t0)}, {v(g)}, 3, {v(t0)}")
    A(f"v_mul_u32_u24 {v(vQD)}, {QROW}, {v(t0)}")
    A(f"v_and_b32 {v(t0)}, 1, {v(g)}")
    A(f"v_lshlrev_b32 {v(t1)}, 1, {v(t0)}")
    A(f"v_xor_b32 {v(t1)}, {v(t1)}, {v(l3)}")
    A(f"v_lshl_add_u32 {v(vQD)}, {v(t1)}, 4, {v(vQD)}")
    S_CO = 61
    A(f"""s_lshl_b32 s{S_T}, s{S_TT}, 8
s_add_u32 s{S_FLC}, s{S_T}, {WS_FL}
s_lshl_b32 s{S_RF}, s2, 3
s_add_u32 s{S_RF}, s{S_RF}, {WS_FL + 16384}
s_mul_i32 s{S_FO}, s{S_TT}, {4*73728}
s_lshl_b32 s{S_CO}, s{S_CT}, 7
s_mul_i32 s{S_WOB}, s{S_W}, {112*896}
s_add_u32 s{S_WOB}, s{S_WOB}, s{S_CO}
s_mul_i32 s{S_W2B}, s{S_W}, {448*896}
s_add_u32 s{S_W2B}, s{S_W2B}, s{S_CO}""")
    S_FH, S_FOo = 62, 63
    A(f"""s_mul_i32 s{S_T}, s{S_W}, {14*1024}
s_add_u32 s{S_FH}, s{S_FO}, s{S_T}
s_add_u32 s{S_FOo}, s{S_FO}, s{S_M4}
s_add_u32 s{S_FOo}, s{S_FOo}, {56*1024}""")
    ST("rl iss")
    LAG = OPT.get("lag", 3)
    NL = len(seq)
    released = [-1]
    issued_n = [2]
    relpre = {}
    def wait_release(r):
        if r > released[0]:
            def slow():
                A.wait_vm_all()
                lds_post(A, 0, issued_n[0])
            lds_wait_min(A, 16, r + 1, relpre.pop("t", None), slow=slow)
            released[0] = r
    NP2 = OPT.get("np2", 6)
    def p2page(i): return p2free[i % NP2][1]
    vPA = 32; vG = 40; vB2 = 48
    WB = 64; RG = 96; NFS = 6
    ACB = RG + 16 * NFS
    FSLOT = {i: i % NFS for i in range(18)}
    def fa(i, j): return RG + 16 * FSLOT[i] + 4 * j
    def fprev(i):
        c = [k for k in range(i) if FSLOT[k] == FSLOT[i]]
        return max(c) if c else -1
    def jobs_W(i):
        def pre():
            if i < NP2: wait_release(p2free[i][0])
            if i < 14: rot_base(S_CB, S_R2, i, 14, 32*896, S_W2B)
            else: rot_base(S_CB, S_R3, i - 14, 4, 28*896, S_WOB)
            for q in range(4):
                last[("W", i)] = dma(S_M4, p2page(i)*PAGE + q*1024, S_CB, 8*q*896, vW2D, W2 if i < 14 else WO)
        return [pre]
    def jobs_F(i):
        def f():
            if i < 14: rot_base(S_CB, S_R2, i, 14, 1024, S_FH)
            else: rot_base(S_CB, S_R3, i - 14, 4, 1024, S_FOo)
            for j in range(4):
                if j: A(f"s_add_u32 s{S_CB}, s{S_CB}, 73728")
                last[("F", i)] = A.vmem(f"buffer_load_dwordx4 {v(fa(i,j),4)}, {v(vFR)}, s[{WS}:{WS+3}], s{S_CB} offen sc1")
        return [f]
    NWE = OPT.get("nwe", 3)
    A(f"s_cmp_lt_u32 s{S_CT}, 7\ns_cselect_b32 s{WO+2}, s{WO+2}, 0\ns_cselect_b32 s{W2+2}, s{W2+2}, 0")
    for n in range(2, NL):
        lu = seq[n]
        if lu == ("Q", 0):
            for i in range(NWE):
                for f in jobs_W(i): f()
                if i == 0: post_upto(n - 2)
                if i == 1: post_upto(n)
            post_upto(n)
            nonce_check(A, last)
            if REPACK:
                A(f"s_mov_b32 s{SW+2}, {WS_FL + 16384}")
                poll("R", SW + 2, 0, wide=True)
        wait_release(after[lu])
        if n + 1 < NL and after[seq[n+1]] > released[0] and seq[n+1] != ("Q", 0): relpre["t"] = lds_flag_read(A, 16)
        load(lu); issued_n[0] = n + 1
        if n + 1 == NB: A("s_barrier")
        if n == 3: post_upto(2)
        if n == 9: nonce_load(A, last)
        m = n + 1 - LAG
        if m >= 2 and seq[m-1][0] != "H": post_upto(m)
    post_upto(NL)
    if OPT.get("lonly", 0): A(f"s_branch {kname}_lfin")
    if OPT.get("l2w", 1):
        A(f"s_mov_b32 s{W2+2}, {1792*896}\ns_mov_b32 s{WO+2}, {448*896}")
        A(f"s_lshr_b32 s{S_T}, s2, 3\ns_lshl_b32 s{S_T}, s{S_T}, 2\ns_add_u32 s{S_T}, s{S_T}, s{S_W}")
        A(f"s_mul_i32 s{S_CB}, s{S_T}, 12544\ns_mul_i32 s{S_T2}, s{S_T}, 3136")
        for k in range(13):
            if k % 4 == 0 and k: A(f"s_add_u32 s{S_CB}, s{S_CB}, 4096")
            if k == 12: A("s_mov_b64 exec, 0xffff")
            A.vmem(f"buffer_load_dwordx4 {v(RG,4)}, {v(vFR)}, s[{W2}:{W2+3}], s{S_CB} offen offset:{1024*(k%4)}")
        A("s_mov_b64 exec, -1")
        for k in range(4):
            if k == 3: A("s_mov_b64 exec, 0xff")
            A.vmem(f"buffer_load_dwordx4 {v(RG,4)}, {v(vFR)}, s[{WO}:{WO+3}], s{S_T2} offen offset:{1024*k}")
        A("s_mov_b64 exec, -1")
    A(f"s_cmp_ge_u32 s{S_CT}, 7\ns_cbranch_scc1 {kname}_lfin")
    NW0 = max(NWE, OPT.get("nw0", 3))
    for i in range(NWE, NW0):
        for f in jobs_W(i): f()
    A(f"v_bfe_u32 {v(t0)}, {v(vL)}, 3, 1")
    A(f"v_lshl_add_u32 {v(t0)}, {v(l3)}, 1, {v(t0)}")
    A(f"v_lshlrev_b32 {v(t1)}, 7, {v(r16)}")
    A(f"v_lshl_add_u32 {v(t1)}, {v(t0)}, 4, {v(t1)}")
    poll("H", S_FLC, 0)
    A(f"v_add_u32 {v(vPA)}, s{S_M4}, {v(t1)}")
    A(f"v_xor_b32 {v(vPA+1)}, 16, {v(vPA)}")
    for z in (1, 2):
        for i in range(2): A(f"v_add_u32 {v(vPA+2*z+i)}, {z*65536}, {v(vPA+i)}")
    fi = 0; wi = NW0
    for i in range(min(NFS - 1, 4)):
        for f in jobs_F(i): f()
        fi += 1
    def aw2(buf, t): return WB + 16*buf + 4*t
    rdt = {}
    def reads2(i):
        pg = p2page(i); z = pg // 4; rel = (pg % 4) * PAGE
        A.wait_vm(last[("W", i)])
        for t in range(4):
            for hf in range(2):
                rdt[(i, t)] = A.dsop(f"ds_read_b64_tr_b16 {v(aw2(i&1,t)+2*hf,2)}, {v(vPA+2*z+(t>>1))} offset:{rel + hf*2048 + 8*(t&1)}")
    def small_loads():
        A(f"v_lshlrev_b32 {v(t0)}, 2, {v(c16)}")
        A(f"s_lshl_b32 s{S_T}, s{S_TT}, 8\ns_add_u32 s{S_T}, s{S_T}, {WS_G}")
        for j in range(4):
            A.vmem(f"buffer_load_dword {v(vG+j)}, {v(t0)}, s[{WS}:{WS+3}], s{S_T} offen offset:{64*j} sc1")
        A(f"v_lshlrev_b32 {v(t1)}, 5, {v(g)}")
        A.vmem(f"buffer_load_dwordx4 {v(vB2+8,4)}, {v(t1)}, s[{B2}:{B2+3}], s{S_CO} offen")
        last["SM"] = A.vmem(f"buffer_load_dwordx4 {v(vB2+12,4)}, {v(t1)}, s[{B2}:{B2+3}], s{S_CO} offen offset:16")
    reads2(0)
    for i in range(18):
        while wi < 18 and wi - NP2 < i and wi <= i + NP2 - 1:
            for f in jobs_W(wi): f()
            wi += 1
            break
        while fi < 18 and fprev(fi) < i:
            if fi == 14: poll_finish("PO", "O", S_FLC, 8192)
            for f in jobs_F(fi): f()
            fi += 1
            break
        if i == 6: small_loads()
        if i == OPT.get("pollO", 6): poll_issue("PO", S_FLC, 8192)
        if i + 1 < 18:
            while wi <= i + 1:
                for f in jobs_W(wi): f()
                wi += 1
            reads2(i + 1)
        A.wait_vm(last[("F", i)])
        if i % 3 == 0: ST(f"p2 step {i}")
        if i == 14:
            A.wait_vm(last["SM"])
            for j in range(4): A(f"v_sub_f32 {v(vG+4+j)}, 1.0, {v(vG+j)}")
            for k in range(7):
                A(f"v_lshlrev_b32 {v(vB2+2*k)}, 16, {v(vB2+8+k)}")
                A(f"v_and_b32 {v(vB2+2*k+1)}, 0xffff0000, {v(vB2+8+k)}")
            A(f"v_lshlrev_b32 {v(vB2+14)}, 16, {v(vB2+15)}")
            A(f"v_and_b32 {v(vB2+15)}, 0xffff0000, {v(vB2+15)}")
            for r in range(0, 16, 2):
                for j in range(4):
                    A(f"v_pk_mul_f32 {v(ACB+16*j+r,2)}, {v(ACB+16*j+r,2)}, {v(vG+4+j-(j&1),2)} op_sel:[0,{j&1}] op_sel_hi:[1,{j&1}]")
            A("s_nop 1")
        for t in range(4):
            A.wait_ds(rdt[(i, t)])
            for j in range(4):
                d = v(ACB + 16*j + 4*t, 4)
                A(f"v_mfma_f32_16x16x32_bf16 {d}, {v(aw2(i&1,t),4)}, {v(fa(i,j),4)}, {'0' if i == 0 else d}")
    assert fi == 18 and wi == 18
    ST("p2 loop done")
    ACA = ACB
    RP = [p2page(k) for k in range(3)]
    RV = RG
    for k in range(3): A(f"v_add_u32 {v(vPA+k)}, {RP[k]*PAGE}, {v(vFR)}")
    for k in range(3): A(f"v_add_u32 {v(vPA+3+k)}, s{S_M4}, {v(vPA+k)}")
    A.nop(4)
    for w in range(4):
        if w < 3: A(f"s_cmp_lg_u32 s{S_W}, {w}\ns_cbranch_scc1 {kname}_w{w+1}")
        for j in range(4):
            if j == w: continue
            k = (j - w - 1) & 3
            for t in range(4):
                A(f"ds_write_b128 {v(vPA+3+k)}, {v(ACA+16*j+4*t,4)} offset:{t*1024}")
        for r in range(16): A(f"v_fma_f32 {v(RV+r)}, {v(vG+4+w)}, {v(vB2+r)}, {v(ACA+16*w+r)}")
        A("s_waitcnt lgkmcnt(0)\ns_barrier")
        for k in range(3):
            srcw = (w - k - 1) & 3
            for t in range(4):
                A(f"ds_read_b128 {v(RV+16+16*k+4*t,4)}, {v(vPA+k)} offset:{srcw*4096 + t*1024}")
        if w < 3:
            A(f"s_branch {kname}_wd")
            A.label(f"{kname}_w{w+1}")
    A.label(f"{kname}_wd")
    A(f"v_mul_u32_u24 {v(t0)}, 896, {v(c16)}")
    A(f"v_add_u32 {v(t0)}, {v(t0)}, {v(t1)}")
    A(f"""s_lshl_b32 s{S_T}, s{S_TT}, 6
s_lshl_b32 s{S_T2}, s{S_W}, 4
s_add_u32 s{S_T}, s{S_T}, s{S_T2}
s_mul_i32 s{S_T}, s{S_T}, 896
s_add_u32 s{S_T}, s{S_T}, s{S_CO}""")
    for k in range(3):
        A(f"s_waitcnt lgkmcnt({8-4*k})")
        for r in range(0, 16, 2):
            A(f"v_pk_add_f32 {v(RV+r,2)}, {v(RV+r,2)}, {v(RV+16+16*k+r,2)}")
    for r in range(8):
        A(f"v_cvt_pk_bf16_f32 {v(WB+r)}, {v(RV+2*r)}, {v(RV+2*r+1)}")
    A(f"buffer_store_dwordx4 {v(WB,4)}, {v(t0)}, s[{OUT}:{OUT+3}], s{S_T} offen")
    A(f"buffer_store_dwordx4 {v(WB+4,4)}, {v(t0)}, s[{OUT}:{OUT+3}], s{S_T} offen offset:16")
    ST("end")
    A.label(f"{kname}_lfin")
    ST.dump(WS, S_W8, vL, vT)
    A.label(f"{kname}_end")
    A("s_endpgm")
    return P.text() + C.text() + L.text(), page, after

def desc(kname, nv, accoff, ns=102):
    return f""".amdhsa_kernel {kname}
  .amdhsa_next_free_vgpr {nv}
  .amdhsa_next_free_sgpr {ns}
  .amdhsa_accum_offset {accoff}
  .amdhsa_group_segment_fixed_size 0
  .amdhsa_kernarg_size 96
  .amdhsa_user_sgpr_count 2
  .amdhsa_user_sgpr_kernarg_segment_ptr 1
  .amdhsa_system_sgpr_workgroup_id_x 1
.end_amdhsa_kernel
"""

if __name__ == "__main__":
    out = sys.argv[1]
    STAMPS = "--stamps" in sys.argv
    for x in sys.argv[2:]:
        if "=" in x:
            k_, v_ = x.split("="); OPT[k_] = v_.split(";") if k_.startswith("sel") else int(v_)
    k = NAME + "_kernel"
    t = f"; @launch grid=(256,1,1) block=(512,1,1) lds=163840\n"
    t += '.amdgcn_target "amdgcn-amd-amdhsa--gfx950"\n.text\n'
    body, page, after = gen(k)
    if "--plan" in sys.argv:
        for lu in page: print(lu, "page", page[lu], "after", UNITS[after[lu]] if after.get(lu, -1) >= 0 else None)
    t += f".globl {k}\n.p2align 8\n.type {k},@function\n" + body
    t += '.section .rodata,"a"\n.p2align 6\n' + desc(k, 256, 256)
    open(out, "w").write(t)
```

```python
import sys
from asmlib import Asm, v, a, s

NAME = "gated_mix__sliding_local_dilated__dense_activation_squared_relu__prompt"
WS_G = 128 * 72 * 1024
WS_FL = WS_G + 8192
WS_QR = WS_FL + 20480
WS_ST = WS_QR + 16 * 3 * 448 * 64
WS_BYTES = WS_ST + 262144
PAGE = 16384
L_BIAS = 8 * PAGE + 14336
L_GATE = L_BIAS + 256
L_FLG = 8 * PAGE + 15872
STAMPS = False
OPT = {}

def srd(A, d, lo, nbytes):
    A(f"s_mov_b32 s{d}, s{lo}")
    A(f"s_and_b32 s{d+1}, s{lo+1}, 0xffff")
    A(f"s_mov_b32 s{d+2}, {nbytes}")
    A(f"s_mov_b32 s{d+3}, 0x20000")

class Stamper:
    def __init__(self, A, vreg, tag, pairs):
        self.A = A; self.n = 0; self.v = vreg; self.tag = tag; self.pairs = pairs
    def __call__(self, what=""):
        if not STAMPS: return
        sel = OPT.get("sel" + self.tag)
        if sel is not None and what != "start" and not any(what.startswith(x) for x in sel): return
        A = self.A
        if self.n == 0:
            A(f"v_mov_b32 v{self.v}, 0")
            A("s_memrealtime s[100:101]")
            A("s_waitcnt lgkmcnt(0)")
            A(f"v_writelane_b32 v{self.v}, s100, 62")
            for p in self.pairs[1:]:
                if not 48 <= p < 72: A(f"s_mov_b32 s{p}, 0")
        assert self.n < len(self.pairs), "too many stamps"
        p = self.pairs[self.n]
        A(f"s_memtime s[{p}:{p+1}]")
        print(f"stamp {self.tag} {self.n}: {what}")
        self.n += 1
    def dump(self, WS, S_W8, vL, vt):
        if not STAMPS: return
        A = self.A
        A("s_mov_b64 exec, -1")
        A("s_memrealtime s[100:101]")
        A("s_waitcnt lgkmcnt(0)")
        A(f"v_writelane_b32 v{self.v}, s100, 63")
        if OPT.get("dbgout", 0):
            for i in range(1, self.n):
                A(f"s_sub_u32 s101, s{self.pairs[i]}, s{self.pairs[0]}")
                A(f"s_cmp_eq_u32 s{self.pairs[i]}, 0\ns_cselect_b32 s101, 0, s101")
                A(f"v_writelane_b32 v{self.v}, s101, {i}")
            A(f"v_readlane_b32 s101, v{self.v}, 62\ns_not_b32 s101, s101")
            base = 2 if self.tag == "C" else 2 + OPT.get("nC", 7)
            A(f"v_writelane_b32 v{self.v}, s101, 0") if self.tag == "C" else A(f"v_writelane_b32 v{self.v}, s100, 0")
            A(f"s_and_b32 s100, s{S_W8}, 3\ns_cmp_lg_u32 s100, 0\ns_cbranch_scc1 Lnodump{self.tag}")
            A(f"v_lshlrev_b32 v{vt}, 2, v{vL}")
            A(f"s_mov_b64 exec, {(1 << self.n) - 1}")
            A(f"global_atomic_umax v{vt}, v{self.v}, s[68:69] offset:{4*base} sc1")
            A.label(f"Lnodump{self.tag}")
            return
        for i in range(self.n): A(f"v_writelane_b32 v{self.v}, s{self.pairs[i]}, {i}")
        A(f"s_and_b32 s100, s{S_W8}, 3\ns_cmp_lg_u32 s100, 0\ns_cbranch_scc1 Lnodump{self.tag}")
        A(f"s_lshl_b32 s100, s2, 1\ns_lshr_b32 s101, s{S_W8}, 2\ns_add_u32 s100, s100, s101\ns_lshl_b32 s100, s100, 8\ns_add_u32 s100, s100, {WS_ST}")
        A(f"v_lshlrev_b32 v{vt}, 2, v{vL}")
        A(f"buffer_store_dword v{self.v}, v{vt}, s[{WS}:{WS+3}], s100 offen")
        A.label(f"Lnodump{self.tag}")

UNITS = [("A", c) for c in range(7)] + [("Q", c) for c in range(7)]
UIDX = {u: i for i, u in enumerate(UNITS)}
NEED = {("A", c): [("H", c), ("X", c)] for c in range(7)}
NEED.update({("Q", c): [("Q", c)] for c in range(7)})
def make_plan():
    page = {}; after = {}
    seq = []
    for c in range(7):
        page[("H", c)] = c % 4; page[("X", c)] = 4 + c % 4
        after[("H", c)] = after[("X", c)] = -1 if c < 4 else UIDX[("A", c - 4)]
        seq += [("H", c), ("X", c)]
    NWE = OPT.get("nwe", 3)
    free = [(-1, 9)]
    for c in range(3, 7): free += [(UIDX[("A", c)], c % 4), (UIDX[("A", c)], 4 + c % 4)]
    p2 = free[:NWE]; free = free[NWE:]
    for c in range(7):
        lu = ("Q", c)
        free.sort()
        rel, pg = (-1, 8) if c == 0 else free.pop(0)
        page[lu] = pg; after[lu] = rel
        if c: free.append((UIDX[lu], pg))
        seq.append(lu)
    free.sort()
    return page, after, seq, p2 + free

def gen(kname):
    page, after, seq, p2free = make_plan()
    SEQ = {lu: i for i, lu in enumerate(seq)}
    REPACK = OPT.get("repack", 1)
    S_W8, S_RB, S_HC, S_TT, S_CT = 3, 4, 5, 6, 7
    X, QKV, W1, WS, WO, W2, OUT, B1, GW, B2 = 8, 12, 16, 20, 24, 28, 32, 36, 40, 44
    KA = 48; DBG = 68
    MP, MA, MB, MFIRST, M32, NON = 72, 74, 76, 78, 80, 82
    S_T, S_T2, S_W, S_HW = 84, 85, 86, 87
    S_SPIN = 92
    P = Asm(); C = Asm(); L = Asm()
    A = P
    vTID, vL, vFR, vST = 0, 1, 2, 3
    vZ, vL8, vN = 4, 5, 6
    vT = 8
    vFL, vFLW = 16, 17
    vFV = 20
    vPV = 18
    lab = [0]
    def newlab(t):
        lab[0] += 1; return f"{kname}_{t}{lab[0]}"
    A.label(kname)
    A(f"s_cmp_ge_u32 s2, 256\ns_cbranch_scc1 {kname}_end")
    if OPT.get("scramble", 0):
        A("s_lshr_b32 s3, s2, 3\ns_and_b32 s2, s2, 7\ns_lshl_b32 s2, s2, 5\ns_or_b32 s2, s2, s3")
    A(f"s_load_dwordx16 s[{KA}:{KA+15}], s[0:1], 0")
    A(f"s_load_dwordx8 s[{KA+16}:{KA+23}], s[0:1], 64")
    A(f"v_lshrrev_b32 {v(vT)}, 6, {v(vTID)}")
    A(f"v_and_b32 {v(vL)}, 63, {v(vTID)}")
    A(f"v_readfirstlane_b32 s{S_W8}, {v(vT)}")
    A(f"v_lshlrev_b32 {v(vFR)}, 4, {v(vL)}")
    A(f"v_lshlrev_b32 {v(vL8)}, 3, {v(vL)}")
    A(f"v_mov_b32 {v(vZ)}, 0")
    A(f"v_mov_b32 {v(vFL)}, {L_FLG}")
    A(f"""s_and_b32 s{S_W}, s{S_W8}, 3
s_lshr_b32 s{S_T}, s2, 3
s_and_b32 s{S_RB}, s2, 1
s_lshl_b32 s{S_RB}, s{S_RB}, 3
s_and_b32 s{S_T2}, s{S_T}, 7
s_add_u32 s{S_RB}, s{S_RB}, s{S_T2}
s_bfe_u32 s{S_HC}, s2, 0x20001
s_lshl_b32 s{S_HC}, s{S_HC}, 2
s_lshr_b32 s{S_T2}, s{S_T}, 3
s_add_u32 s{S_HC}, s{S_HC}, s{S_T2}
s_and_b32 s{S_TT}, s2, 7
s_lshl_b32 s{S_TT}, s{S_TT}, 2
s_and_b32 s{S_T2}, s{S_T}, 3
s_add_u32 s{S_TT}, s{S_TT}, s{S_T2}
s_lshr_b32 s{S_CT}, s2, 5
s_mov_b32 s{M32}, -1
s_mov_b32 s{M32+1}, 0
s_mov_b32 s{S_SPIN}, 0""")
    c16, g, r8, l7, l3, r16, t0, t1 = [vT + i for i in range(8)]
    A(f"v_and_b32 {v(c16)}, 15, {v(vL)}")
    A(f"v_lshrrev_b32 {v(g)}, 4, {v(vL)}")
    A(f"v_lshrrev_b32 {v(r8)}, 3, {v(vL)}")
    A(f"v_and_b32 {v(l7)}, 7, {v(vL)}")
    A(f"v_and_b32 {v(l3)}, 3, {v(vL)}")
    A(f"v_lshrrev_b32 {v(r16)}, 2, {v(vL)}")
    A(f"""s_and_b32 s{S_T}, s{S_HC}, 3
s_lshl_b32 s{S_T2}, s{S_T}, 8
s_cmp_eq_u32 s{S_T}, 3
s_cselect_b32 s{S_T2}, 640, s{S_T2}
s_lshr_b32 s{S_T}, s{S_HC}, 2
s_mul_i32 s{S_T}, s{S_T}, 896
s_add_u32 s{S_HW}, s{S_T}, s{S_T2}
s_lshl_b32 s{S_T}, s{S_W}, 2
s_add_u32 s{S_T}, s{S_T}, {L_FLG}""")
    A(f"v_lshlrev_b32 {v(vFLW)}, 2, {v(vL)}")
    A(f"v_add_u32 {v(vFLW)}, {L_GATE + 896}, {v(vFLW)}")
    A(f"v_writelane_b32 {v(vFLW)}, s{S_T}, 0")
    A(f"s_cmp_ge_u32 s{S_W8}, 4\ns_cbranch_scc1 {kname}_L")

    def spin_guard(A, target):
        A(f"s_add_u32 s{S_SPIN}, s{S_SPIN}, 1\ns_cmp_lt_u32 s{S_SPIN}, 0x200000\ns_cbranch_scc1 {target}")
    def lds_post(A, off, val):
        A(f"v_mov_b32 {v(vPV)}, {val}")
        A.dsop(f"ds_max_u32 {v(vFLW)}, {v(vPV)} offset:{off}")
    def lds_flag_read(A, off):
        return A.dsop(f"ds_read_b128 {v(vFV,4)}, {v(vFL)} offset:{off}")
    def lds_wait_min(A, off, val, ticket=None, slow=None):
        lp, ok = newlab("lw"), newlab("lk")
        if ticket is None: ticket = lds_flag_read(A, off)
        A.wait_ds(ticket)
        def check():
            A(f"v_min3_u32 {v(vFV)}, {v(vFV)}, {v(vFV+1)}, {v(vFV+2)}")
            A(f"v_min_u32 {v(vFV)}, {v(vFV)}, {v(vFV+3)}")
            A("s_nop 0")
            A(f"v_readfirstlane_b32 s{S_T2}, {v(vFV)}")
            A(f"s_cmp_ge_u32 s{S_T2}, {val}\ns_cbranch_scc1 {ok}")
        if slow is not None:
            check()
            sv = (A.vm, A.vm_done, A.ds, A.ds_done)
            slow()
            A.vm, A.vm_done, A.ds, A.ds_done = sv
            A(f"ds_read_b128 {v(vFV,4)}, {v(vFL)} offset:{off}\ns_waitcnt lgkmcnt(0)")
        A.label(lp)
        check()
        A(f"s_sleep 1\nds_read_b128 {v(vFV,4)}, {v(vFL)} offset:{off}\ns_waitcnt lgkmcnt(0)")
        spin_guard(A, lp)
        A.label(ok)
    def nonce_load(A, last):
        last["N"] = A.vmem(f"global_load_dwordx2 {v(vN,2)}, {v(vZ)}, s[{DBG}:{DBG+1}] sc1")
    def nonce_check(A, last):
        lp, ok = newlab("nc"), newlab("nk")
        A.wait_vm(last["N"])
        A.label(lp)
        A(f"v_readfirstlane_b32 s{NON}, {v(vN)}\nv_readfirstlane_b32 s{NON+1}, {v(vN+1)}")
        A(f"s_cmp_lg_u32 s{NON}, 0\ns_cbranch_scc1 {ok}")
        A(f"global_load_dwordx2 {v(vN,2)}, {v(vZ)}, s[{DBG}:{DBG+1}] sc1\ns_waitcnt vmcnt(0)")
        spin_guard(A, lp)
        A.label(ok)
    def publish(A, sreg, off):
        A(f"v_mov_b32 {v(vN)}, s{NON}\nv_mov_b32 {v(vN+1)}, s{NON+1}")
        A(f"s_add_u32 s{S_T}, s{sreg}, {off}")
        A("s_mov_b64 exec, 1")
        A.vmem(f"buffer_store_dwordx2 {v(vN,2)}, {v(vZ)}, s[{WS}:{WS+3}], s{S_T} offen sc1")
        A("s_mov_b64 exec, -1")

    A = C; ST = Stamper(C, vST, "C", [98, 8, 10, 16, 18, 32, 34, 36, 38, 40, 42, 44, 46, 60, 62, 64, 66, 70, 90, 94, 96]); last = {}
    S_FR, S_FLP, S_GT, S_OS, S_CO = 48, 49, 50, 51, 52
    S_HS = 54
    vHA, vXA, vXO, vFRa, vFRb, vGA = 24, 28, 30, 32, 33, 34
    XT = 36
    vQA, vXH = 36, 45
    XR = 52
    ACC = 164
    WR = 228; NWR = 7
    ACG = 8
    def ax(ks, tb): return XR + 4 * (2 * ks + tb)
    def axa(ks, jj): return ax(ks, jj) if jj < 2 else XT + 8 * (ks & 1) + 4 * (jj - 2)
    def ach(jj, bb): return ACC + 4 * (4 * jj + bb)
    def acq(tb, t): return ACC + 4 * (6 * tb + t)
    ACC_HL = ACC + 48
    vBIAS = XR + 80
    vRAW = XR + 64
    ST("start")
    A(f"v_lshl_add_u32 {v(t0)}, {v(vL)}, 2, {v(vFL)}")
    A("s_mov_b64 exec, 0xffff")
    A(f"ds_write_b32 {v(t0)}, {v(vZ)}")
    A("s_mov_b64 exec, -1")
    A("s_waitcnt lgkmcnt(0)")
    if OPT.get("tlb", 0):
        for i, off in enumerate((0, 8, 2, 12, 4, 10, 16, 14, 18, 20)):
            A(f"s_load_dword s{S_SPIN+1}, s[{KA+off}:{KA+off+1}], 0")
        for k in range(6):
            A(f"s_add_u32 s{S_T}, s{KA+22}, {k << 21}\ns_addc_u32 s{S_T2}, s{KA+23}, 0")
            A(f"s_load_dword s{S_SPIN+1}, s[{S_T}:{S_T2}], 0")
    A(f"v_lshlrev_b32 {v(t1)}, 8, {v(r16)}")
    A(f"v_lshl_add_u32 {v(t1)}, {v(l3)}, 3, {v(t1)}")
    A(f"v_and_b32 {v(t0)}, 7, {v(r16)}")
    A(f"v_lshl_add_u32 {v(vHA)}, {v(t0)}, 5, {v(t1)}")
    A(f"s_and_b32 s{S_T}, s{S_W}, 1\ns_lshl_b32 s{S_T}, s{S_T}, 7")
    A(f"v_xor_b32 {v(vHA)}, s{S_T}, {v(vHA)}")
    for b in range(1, 4): A(f"v_xor_b32 {v(vHA+b)}, {32*b}, {v(vHA)}")
    A(f"v_xor_b32 {v(t0)}, {v(g)}, {v(l7)}")
    A(f"v_lshlrev_b32 {v(t1)}, 7, {v(c16)}")
    A(f"v_lshl_add_u32 {v(t1)}, {v(t0)}, 4, {v(t1)}")
    A(f"s_lshl_b32 s{S_T}, s{S_W}, 12\ns_add_u32 s{S_T2}, s{S_T}, {4*PAGE}")
    A(f"v_add_u32 {v(vXA)}, s{S_T2}, {v(t1)}")
    A(f"v_xor_b32 {v(vXA+1)}, 64, {v(vXA)}")
    A(f"v_xor_b32 {v(vXO)}, 0x1000, {v(vXA)}")
    A(f"v_xor_b32 {v(vXO+1)}, 64, {v(vXO)}")
    A(f"v_lshlrev_b32 {v(vGA)}, 4, {v(g)}")
    A(f"v_add_u32 {v(vGA)}, {L_GATE}, {v(vGA)}")
    A(f"s_and_b32 s{S_T}, s{S_W}, 1\ns_lshl_b32 s{S_T}, s{S_T}, 7\ns_add_u32 s{S_T}, s{S_T}, {L_BIAS}")
    A(f"v_lshlrev_b32 {v(WR)}, 3, {v(g)}")
    A(f"v_add_u32 {v(WR)}, s{S_T}, {v(WR)}")
    A(f"v_and_b32 {v(t0)}, 1, {v(c16)}")
    A(f"v_cmp_eq_u32 s[{MP}:{MP+1}], 1, {v(t0)}")
    A(f"v_lshl_add_u32 {v(t1)}, {v(g)}, 2, {v(t0)}")
    A(f"v_cmp_le_u32 s[{MA}:{MA+1}], {v(t1)}, {v(c16)}")
    A(f"v_add_u32 {v(t1)}, 2, {v(t1)}")
    A(f"v_cmp_le_u32 s[{MB}:{MB+1}], {v(t1)}, {v(c16)}")
    if OPT.get("wsoff", 0): A(f"s_add_u32 s{KA+22}, s{KA+22}, {OPT['wsoff'] << 20}\ns_addc_u32 s{KA+23}, s{KA+23}, 0")
    srd(A, WS, KA+22, WS_BYTES)
    srd(A, QKV, KA+2, 448 * 2688)
    srd(A, WO, KA+4, 448 * 896)
    srd(A, W2, KA+12, 1792 * 896)
    A(f"""s_or_b32 s{S_T}, s{S_RB}, s{S_W}
s_cmp_eq_u32 s{S_T}, 0
s_cselect_b32 s{MFIRST}, -1, 0
s_cselect_b32 s{MFIRST+1}, -1, 0
s_lshl_b32 s{S_T}, s{S_RB}, 3
s_lshl_b32 s{S_T2}, s{S_W}, 1
s_add_u32 s{S_T}, s{S_T}, s{S_T2}
s_mul_i32 s{S_FR}, s{S_T}, {72*1024}
s_lshl_b32 s{S_GT}, s{S_T}, 6
s_add_u32 s{S_GT}, s{S_GT}, {WS_G}
s_xor_b32 s{S_T}, s{S_T}, 2
s_mul_i32 s{S_CO}, s{S_T}, {72*1024}
s_lshl_b32 s{S_T}, s{S_HW}, 4
s_and_b32 s{S_T2}, s{S_W}, 1
s_lshl_b32 s{S_T2}, s{S_T2}, 11
s_add_u32 s{S_T}, s{S_T}, s{S_T2}
s_add_u32 s{S_HS}, s{S_FR}, s{S_T}
s_add_u32 s{S_HS+1}, s{S_HS}, 73728
s_add_u32 s{S_HS+2}, s{S_CO}, s{S_T}
s_add_u32 s{S_HS+3}, s{S_HS+2}, 73728
s_and_b32 s{S_T}, s{S_HC}, 3
s_lshl_b32 s{S_T}, s{S_T}, 1
s_and_b32 s{S_T2}, s{S_W}, 1
s_add_u32 s{S_T}, s{S_T}, s{S_T2}
s_cmp_eq_u32 s{S_T}, 6
s_cselect_b32 s{S_T2}, 0x40000000, 0""")
    A(f"v_or_b32 {v(vFRa)}, s{S_T2}, {v(vFR)}")
    A(f"s_cmp_eq_u32 s{S_T}, 5\ns_cselect_b32 s{S_T2}, 0x40000000, 0")
    A(f"v_or_b32 {v(vFRb)}, s{S_T2}, {v(vFR)}")
    A(f"""s_lshl_b32 s{S_T}, s{S_HC}, 10
s_add_u32 s{S_OS}, s{S_FR}, s{S_T}
s_add_u32 s{S_OS}, s{S_OS}, {56*1024}
s_lshl_b32 s{S_T}, s{S_RB}, 1
s_lshr_b32 s{S_T2}, s{S_W}, 1
s_add_u32 s{S_T}, s{S_T}, s{S_T2}
s_lshl_b32 s{S_T}, s{S_T}, 4
s_add_u32 s{S_T}, s{S_T}, s{S_HC}
s_lshl_b32 s{S_T}, s{S_T}, 1
s_and_b32 s{S_T2}, s{S_W}, 1
s_add_u32 s{S_T}, s{S_T}, s{S_T2}
s_lshl_b32 s{S_T}, s{S_T}, 3
s_add_u32 s{S_FLP}, s{S_T}, {WS_FL}""")
    if OPT.get("prio", 1): A("s_setprio 2")
    A("s_barrier")
    SWc = 88; S_GWc, S_RF = 58, 59
    vD = XR + 96
    vRS, vRD = XR + 108, XR + 109
    SWEEP = OPT.get("sweep", 1)
    lb = newlab("n0")
    A(f"s_or_b32 s{S_T}, s2, s{S_W}\ns_cmp_lg_u32 s{S_T}, 0\ns_cbranch_scc1 {lb}")
    A(f"s_memrealtime s[{NON}:{NON+1}]\ns_waitcnt lgkmcnt(0)\ns_or_b32 s{NON}, s{NON}, 1")
    A(f"v_mov_b32 {v(vN)}, s{NON}\nv_mov_b32 {v(vN+1)}, s{NON+1}")
    A("s_mov_b64 exec, 1")
    A(f"global_store_dwordx2 {v(vZ)}, {v(vN,2)}, s[{DBG}:{DBG+1}] sc1")
    A("s_mov_b64 exec, -1")
    A.label(lb)
    A(f"s_getpc_b64 s[{SWc}:{SWc+1}]")
    A.label(f"{kname}_pc")
    A(f"s_sub_u32 s{SWc}, s{SWc}, {kname}_pc-{kname}\ns_subb_u32 s{SWc+1}, s{SWc+1}, 0")
    A(f"s_lshr_b32 s{S_T}, s2, 3\ns_and_b32 s{S_T}, s{S_T}, 7\ns_lshl_b32 s{S_T}, s{S_T}, 2\ns_add_u32 s{S_T}, s{S_T}, s{S_W}\ns_lshl_b32 s{S_T}, s{S_T}, 10")
    A(f"v_add_u32 {v(t0)}, s{S_T}, {v(vFR)}")
    A(f"v_min_u32 {v(t0)}, {kname}_end-{kname}-16, {v(t0)}")
    A.vmem(f"global_load_dwordx4 {v(vD,4)}, {v(t0)}, s[{SWc}:{SWc+1}]")
    A(f"s_lshl_b32 s{S_GWc}, s2, 2\ns_add_u32 s{S_GWc}, s{S_GWc}, s{S_W}")
    A(f"s_lshl_b32 s{S_RF}, s2, 3\ns_add_u32 s{S_RF}, s{S_RF}, {WS_FL + 16384}")
    if REPACK:
        A(f"v_bfe_u32 {v(t0)}, {v(vL)}, 2, 1")
        A(f"v_mul_u32_u24 {v(vRS)}, 2688, {v(t0)}")
        A(f"v_mul_u32_u24 {v(t1)}, 56, {v(r8)}")
        A(f"v_add_u32 {v(vRS)}, {v(vRS)}, {v(t1)}")
        A(f"v_lshl_add_u32 {v(vRS)}, {v(l3)}, 4, {v(vRS)}")
        A(f"v_mul_u32_u24 {v(vRD)}, {3*448*64}, {v(r8)}")
        A(f"v_lshl_add_u32 {v(vRD)}, {v(l7)}, 4, {v(vRD)}")
        A(f"s_cmp_ge_u32 s2, 224\ns_cselect_b32 s{S_T}, 0x40000000, 0\ns_cmp_eq_u32 s{S_W}, 3\ns_cselect_b32 s{S_T}, 0x40000000, s{S_T}")
        A(f"v_or_b32 {v(vRS)}, s{S_T}, {v(vRS)}")
        A(f"v_or_b32 {v(vRD)}, s{S_T}, {v(vRD)}")
        A(f"s_mul_i32 s{S_T}, s2, {2*2688}\ns_mul_i32 s{S_T2}, s{S_W}, 896\ns_add_u32 s{S_T}, s{S_T}, s{S_T2}")
        A.vmem(f"buffer_load_dwordx4 {v(vD+4,4)}, {v(vRS)}, s[{QKV}:{QKV+3}], s{S_T} offen")
        last["RL"] = A.vmem(f"buffer_load_dwordx4 {v(vD+8,4)}, {v(vRS)}, s[{QKV}:{QKV+3}], s{S_T} offen offset:448")
    elif SWEEP:
        A(f"s_mul_i32 s{S_T}, s{S_GWc}, 1280")
        A.vmem(f"buffer_load_dwordx4 {v(vD,4)}, {v(vFR)}, s[{QKV}:{QKV+3}], s{S_T} offen")
        A("s_mov_b64 exec, 0xffff")
        A.vmem(f"buffer_load_dwordx4 {v(vD,4)}, {v(vFR)}, s[{QKV}:{QKV+3}], s{S_T} offen offset:1024")
        A("s_mov_b64 exec, -1")
    vSW = vD
    def sweep2():
        if not SWEEP: return
        A(f"s_mul_i32 s{S_T}, s{S_GWc}, 1664")
        A.vmem(f"buffer_load_dwordx4 {v(vSW,4)}, {v(vFR)}, s[{W2}:{W2+3}], s{S_T} offen")
        A("s_mov_b32 exec_hi, 0xff")
        A.vmem(f"buffer_load_dwordx4 {v(vSW,4)}, {v(vFR)}, s[{W2}:{W2+3}], s{S_T} offen offset:1024")
        A(f"s_mov_b32 exec_hi, 0\ns_lshl_b32 s{S_T}, s{S_GWc}, 9")
        A.vmem(f"buffer_load_dwordx4 {v(vSW,4)}, {v(vFR)}, s[{WO}:{WO+3}], s{S_T} offen")
        A("s_mov_b32 exec_hi, -1")
    SWAT = OPT.get("swat", -1)
    if SWAT < 0: sweep2()
    def r_store():
        if REPACK:
            A.wait_vm(last["RL"])
            A(f"s_mul_i32 s{S_T}, s{S_W}, {448*64}\ns_lshl_b32 s{S_T2}, s2, 7\ns_add_u32 s{S_T}, s{S_T}, s{S_T2}\ns_add_u32 s{S_T}, s{S_T}, {WS_QR}\ns_add_u32 s{S_T2}, s{S_T}, {8*3*448*64}")
            A.vmem(f"buffer_store_dwordx4 {v(vD+4,4)}, {v(vRD)}, s[{WS}:{WS+3}], s{S_T} offen sc1")
            A.vmem(f"buffer_store_dwordx4 {v(vD+8,4)}, {v(vRD)}, s[{WS}:{WS+3}], s{S_T2} offen sc1")
        nonce_load(A, last)
    def r_done():
        nonce_check(A, last)
        if REPACK: lds_post(A, 48, 1)
    def r_pub():
        if not REPACK: return
        lb = newlab("rp")
        A(f"s_cmp_lg_u32 s{S_W}, 0\ns_cbranch_scc1 {lb}")
        A(f"s_cmp_ge_u32 s2, 224\ns_cbranch_scc1 {lb}")
        sv = (A.vm, A.vm_done, A.ds, A.ds_done)
        lds_wait_min(A, 48, 1)
        publish(A, S_RF, 0)
        A.vm, A.vm_done, A.ds, A.ds_done = sv
        A.label(lb)
        ST("R pub")
    ST("pro done")
    if OPT.get("lonly", 0):
        r_store(); r_done(); r_pub()
        lds_post(A, 16, 99)
        A(f"s_branch {kname}_cfin")

    pre = {}
    busy = [False]
    cold = []
    def acquire(u):
        val = max(SEQ[lu] for lu in NEED[u]) + 1
        lds_wait_min(A, 0, val, pre.pop("t", None))
        ST(f"acq{u}")
    def acquire_atoms(u):
        val = max(SEQ[lu] for lu in NEED[u]) + 1
        sl, ok = newlab("as"), newlab("ak")
        tk = {}
        def a0(): tk["t"] = lds_flag_read(A, 0); busy[0] = True
        def a1(): A.wait_ds(tk["t"]); A(f"v_min3_u32 {v(vFV)}, {v(vFV)}, {v(vFV+1)}, {v(vFV+2)}")
        def a2(): A(f"v_min_u32 {v(vFV)}, {v(vFV)}, {v(vFV+3)}\ns_nop 0")
        def a3(): A(f"v_readfirstlane_b32 s{S_T2}, {v(vFV)}\ns_cmp_ge_u32 s{S_T2}, {val}\ns_cbranch_scc0 {sl}"); A.label(ok); ST(f"acq{u}"); busy[0] = False
        cold.append(f"""{sl}:
    s_sleep 1
    ds_read_b128 {v(vFV,4)}, {v(vFL)}
    s_waitcnt lgkmcnt(0)
    v_min3_u32 {v(vFV)}, {v(vFV)}, {v(vFV+1)}, {v(vFV+2)}
    v_min_u32 {v(vFV)}, {v(vFV)}, {v(vFV+3)}
    s_add_u32 s{S_SPIN}, s{S_SPIN}, 1
    v_readfirstlane_b32 s{S_T2}, {v(vFV)}
    s_cmp_ge_u32 s{S_T2}, {val}
    s_cbranch_scc1 {ok}
    s_cmp_lt_u32 s{S_SPIN}, 0x200000
    s_cbranch_scc1 {sl}
    s_branch {ok}""")
        return a0, [a1, a2, a3]
    def release(u):
        lds_post(A, 16, UIDX[u] + 1)
    class Frag:
        def __init__(self, unit, reads, mf): self.unit = unit; self.reads = reads; self.mf = mf
    done = set()
    from collections import deque
    def run_frags(frags, LA, hooks={}, per_gap=2):
        n = len(frags); tk = [None]*n
        state = run_frags.seq
        q = deque()
        early = {}
        for i in range(n):
            if frags[i].unit not in done and (i == 0 or frags[i-1].unit != frags[i].unit) and i >= 3:
                early[i] = acquire_atoms(frags[i].unit)
        def enqueue(i):
            f = frags[i]
            if i + 3 in early: q.append((None, early[i+3][0]))
            if f.unit not in done:
                done.add(f.unit)
                if i in early:
                    for at in early[i][1]: q.append((None, at))
                else: q.append((None, lambda u=f.unit: acquire(u)))
            rl = f.reads(WR + 4*((state + i) % NWR))
            for k, ins in enumerate(rl):
                def at(ins=ins, i=i): tk[i] = A.dsop(ins)
                q.append((i if k == len(rl) - 1 else None, at))
        enq = 0; emitted = -1
        for i in range(n):
            while enq < min(n, i + LA + 1):
                enqueue(enq); enq += 1
            while emitted < i:
                fi, at = q.popleft(); at()
                if fi is not None: emitted = fi
            ms = frags[i].mf(WR + 4*((state + i) % NWR))
            if ms: A.wait_ds(tk[i])
            for ins in ms:
                A(ins)
                for _ in range(per_gap):
                    if q:
                        fi, at = q.popleft(); at()
                        if fi is not None: emitted = fi
            if i == n - 1 or frags[i+1].unit != frags[i].unit:
                if not ms: A.wait_ds(tk[i])
                if frags[i].unit != ("A", 6) or not OPT.get("lateA6", 1): q.appendleft((None, lambda u=frags[i].unit: release(u)))
            if i in hooks:
                assert not busy[0], f"hook {i} inside an acquire sequence"
                hooks[i]()
        while q: q.popleft()[1]()
        run_frags.seq = (state + n) % NWR
    run_frags.seq = 0
    def trr(dst, va, off): return f"ds_read_b64_tr_b16 {v(dst,2)}, {v(va)} offset:{off}"
    acquire(("A", 0)); done.add(("A", 0))
    for b in range(4): tkb = A.dsop(f"ds_read_b64 {v(vRAW+2*b,2)}, {v(WR)} offset:{32*b}")
    A.wait_ds(tkb)
    for i in range(8):
        A(f"v_lshlrev_b32 {v(vBIAS+2*i)}, 16, {v(vRAW+i)}")
        A(f"v_and_b32 {v(vBIAS+2*i+1)}, 0xffff0000, {v(vRAW+i)}")
    fr = []
    for ks in range(14):
        c, s2 = ks // 2, ks % 2
        for b in range(5):
            def reads(r, ks=ks, c=c, s2=s2, b=b):
                out = []
                if b == 0:
                    for jj in range(4):
                        out.append(f"ds_read_b128 {v(axa(ks,jj),4)}, {v((vXA if jj < 2 else vXO)+s2)} offset:{(page[('X',c)]-4)*PAGE + (jj&1)*2048}")
                if b == 4: return [f"ds_read_b128 {v(r,4)}, {v(vGA)} offset:{64*ks}"]
                return out + [trr(r + 2*hf, vHA + b, page[("H", c)]*PAGE + (32*s2 + 16*hf)*256) for hf in range(2)]
            def mf(r, ks=ks, b=b):
                if b == 4:
                    return [f"v_mfma_f32_16x16x32_bf16 {v(ACG+4*tb,4)}, {v(r,4)}, {v(ax(ks,tb),4)}, {v(ACG+4*tb,4) if ks else '0'}" for tb in range(2)]
                return [f"v_mfma_f32_16x16x32_bf16 {v(ach(jj,b),4)}, {v(r,4)}, {v(axa(ks,jj),4)}, {v(ach(jj,b),4) if ks else v(vBIAS+4*b,4)}" for jj in range(4)]
            fr.append(Frag(("A", c), reads, mf))
    hk = {OPT.get("rst", 1): r_store, OPT.get("rdone", 20): r_done, OPT.get("rdone", 20) + 1: r_pub}
    if SWAT >= 0:
        hk[SWAT] = sweep2
        hk[50] = lambda: A.wait_vm_all()
    run_frags(fr, OPT.get("laA", 5), hooks=hk)
    ST("A done")
    for pp in range(2):
        for jj in range(4):
            for bb in (2*pp, 2*pp + 1):
                r = ach(jj, bb)
                for i in range(4): A(f"v_max_f32 {v(r+i)}, 0, {v(r+i)}")
                A(f"v_pk_mul_f32 {v(r,2)}, {v(r,2)}, {v(r,2)}")
                A(f"v_pk_mul_f32 {v(r+2,2)}, {v(r+2,2)}, {v(r+2,2)}")
                dst = ach(jj, 2*pp) + 2 * (bb & 1)
                A(f"v_cvt_pk_bf16_f32 {v(dst)}, {v(r)}, {v(r+1)}")
                A(f"v_cvt_pk_bf16_f32 {v(dst+1)}, {v(r+2)}, {v(r+3)}")
            last["HS"] = A.vmem(f"buffer_store_dwordx4 {v(ach(jj,2*pp),4)}, {v(vFRb if pp else vFRa)}, s[{WS}:{WS+3}], s{S_HS+jj} offen offset:{1024*pp} sc1")
    for tb in range(2): A(f"v_mul_f32 {v(ACG+4*tb)}, 0xbfb8aa3b, {v(ACG+4*tb)}")
    for tb in range(2): A(f"v_exp_f32 {v(ACG+4*tb)}, {v(ACG+4*tb)}")
    A(f"v_lshrrev_b32 {v(ACG+1)}, 1, {v(vL8)}")
    for tb in range(2): A(f"v_add_f32 {v(ACG+4*tb)}, 1.0, {v(ACG+4*tb)}")
    for tb in range(2): A(f"v_rcp_f32 {v(ACG+4*tb)}, {v(ACG+4*tb)}")
    lb = newlab("g")
    A(f"s_cmp_lg_u32 s{S_HC}, 2\ns_cbranch_scc1 {lb}")
    A("s_mov_b64 exec, 0xffff")
    for tb in range(2): A(f"buffer_store_dword {v(ACG+4*tb)}, {v(ACG+1)}, s[{WS}:{WS+3}], s{S_GT} offen offset:{64*tb} sc1")
    A("s_mov_b64 exec, -1")
    A.label(lb)
    if OPT.get("lateA6", 1): release(("A", 6))
    ST("H epi done")
    q0, q1, q2, q3 = 9, 10, 11, 13
    A(f"v_lshrrev_b32 {v(q0)}, 2, {v(vL)}")
    A(f"v_bfe_u32 {v(q1)}, {v(vL)}, 4, 1")
    A(f"v_and_b32 {v(q2)}, 3, {v(vL)}")
    A(f"v_lshlrev_b32 {v(vQA)}, 6, {v(q0)}")
    A(f"v_lshl_add_u32 {v(vQA)}, {v(q1)}, 5, {v(vQA)}")
    A(f"v_lshl_add_u32 {v(vQA)}, {v(q2)}, 3, {v(vQA)}")
    A(f"v_xor_b32 {v(vQA+1)}, 32, {v(vQA)}")
    A(f"""s_and_b32 s{S_T}, s{S_W}, 1
s_lshl_b32 s{S_T}, s{S_T}, 5
s_lshr_b32 s{S_T2}, s{S_W}, 1
s_lshl_b32 s{S_T2}, s{S_T2}, 12""")
    A(f"v_xor_b32 {v(vQA+2)}, s{S_T}, {v(vQA)}")
    A(f"v_add_u32 {v(vQA+2)}, s{S_T2}, {v(vQA+2)}")
    A(f"v_and_b32 {v(vXH)}, 0x7ff, {v(vXA)}")
    A(f"v_xor_b32 {v(vXH+1)}, 64, {v(vXH)}")
    for z in (1, 2):
        for i in range(3): A(f"v_add_u32 {v(vQA+3*z+i)}, {z*65536}, {v(vQA+i)}")
        for i in range(2): A(f"v_add_u32 {v(vXH+2*z+i)}, {z*65536}, {v(vXH+i)}")
    fr = []
    for ks in range(14):
        c, s2 = ks // 2, ks % 2; pg = page[("Q", c)]; z = pg // 4; rel = (pg % 4) * PAGE
        hold = {}
        for f in range(8):
            def reads(r, ks=ks, s2=s2, f=f, z=z, rel=rel, hold=hold):
                if f == 6:
                    hold["x"] = r
                    return [f"ds_read_b128 {v(r,4)}, {v(vXH+2*z+s2)} offset:{rel + 12288}"]
                va = vQA + 3*z + (2 if f == 7 else (f & 1)); ro = 4096 if f == 7 else 4096*(f//2)
                return [trr(r + 2*hf, va, rel + ro + (32*s2 + 16*hf)*64) for hf in range(2)]
            def mf(r, ks=ks, f=f, hold=hold):
                if f == 6: return []
                if f == 7:
                    d = v(ACC_HL, 4)
                    return [f"v_mfma_f32_16x16x32_bf16 {d}, {v(r,4)}, {v(hold['x'],4)}, {d if ks else '0'}"]
                out = []
                for tb in range(2):
                    d = v(acq(tb, f), 4); cc = d if ks else "0"
                    wf, xf = v(r, 4), v(ax(ks, tb), 4)
                    out.append(f"v_mfma_f32_16x16x32_bf16 {d}, {xf}, {wf}, {cc}" if f >= 4 else f"v_mfma_f32_16x16x32_bf16 {d}, {wf}, {xf}, {cc}")
                return out
            fr.append(Frag(("Q", c), reads, mf))
    def pubH():
        A.wait_vm_all(); publish(A, S_FLP, 0); ST("H pub")
    pubH()
    run_frags(fr, NWR - 2)
    ST("B done")
    XCH = 8 * PAGE
    E = XR
    KP, QP, VP, HLP, vXCA = E, E + 12, E + 20, E + 32, E + 34
    SS = E + 40
    TT_ = E + 56
    PPp = E + 64
    OO = E + 72
    OP = E + 88
    vG3, vSEL = E + 96, E + 97
    u0, u1, u2 = E + 104, E + 105, E + 106
    tkc = lds_flag_read(A, 16)
    def pk(dst, src):
        A(f"v_cvt_pk_bf16_f32 {v(dst)}, {v(src)}, {v(src+1)}")
        A(f"v_cvt_pk_bf16_f32 {v(dst+1)}, {v(src+2)}, {v(src+3)}")
    A(f"s_lshl_b32 s{S_T}, s{S_W}, 11\ns_add_u32 s{S_T}, s{S_T}, {XCH}")
    A(f"v_add_u32 {v(vXCA)}, s{S_T}, {v(vFR)}")
    A(f"v_add_u32 {v(vXCA+1)}, s{S_T}, {v(vL8)}")
    pk(KP + 8, acq(1, 2)); pk(KP + 10, acq(1, 3))
    pk(VP + 4, acq(1, 4)); pk(VP + 10, acq(1, 5))
    lds_wait_min(A, 16, UIDX[("Q", 0)] + 1, tkc)
    pk(HLP, ACC_HL)
    A.dsop(f"ds_write_b128 {v(vXCA)}, {v(KP+8,4)} offset:2048")
    A.dsop(f"ds_write_b64 {v(vXCA+1)}, {v(VP+4,2)} offset:{2048+1024}")
    A.dsop(f"ds_write_b64 {v(vXCA+1)}, {v(VP+10,2)} offset:{2048+1536}")
    A(f"s_cmp_ge_u32 s{S_W}, 2\ns_cbranch_scc1 {kname}_hv")
    A(f"s_lshl_b32 s{S_T}, s{S_W}, 3\ns_add_u32 s{S_T}, s{S_T}, {XCH}")
    A(f"v_add_u32 {v(vXCA+2)}, s{S_T}, {v(vFR)}")
    A(f"ds_write_b64 {v(vXCA+2)}, {v(HLP,2)}")
    A(f"s_branch {kname}_hd")
    A.label(f"{kname}_hv")
    A(f"s_and_b32 s{S_T}, s{S_W}, 1\ns_lshl_b32 s{S_T}, s{S_T}, 9\ns_add_u32 s{S_T}, s{S_T}, {XCH+1024}")
    A(f"v_bfe_u32 {v(vXCA+2)}, {v(vL)}, 2, 2")
    A(f"v_lshlrev_b32 {v(vXCA+2)}, 7, {v(vXCA+2)}")
    A(f"v_lshrrev_b32 {v(vXCA+3)}, 4, {v(vL)}")
    A(f"v_lshl_add_u32 {v(vXCA+2)}, {v(vXCA+3)}, 5, {v(vXCA+2)}")
    A(f"v_and_b32 {v(vXCA+3)}, 3, {v(vL)}")
    A(f"v_lshl_add_u32 {v(vXCA+2)}, {v(vXCA+3)}, 1, {v(vXCA+2)}")
    A(f"v_add_u32 {v(vXCA+2)}, s{S_T}, {v(vXCA+2)}")
    A(f"ds_write_b16 {v(vXCA+2)}, {v(HLP)}")
    A(f"ds_write_b16_d16_hi {v(vXCA+2)}, {v(HLP)} offset:8")
    A(f"ds_write_b16 {v(vXCA+2)}, {v(HLP+1)} offset:16")
    A(f"ds_write_b16_d16_hi {v(vXCA+2)}, {v(HLP+1)} offset:24")
    A.label(f"{kname}_hd")
    lds_post(A, 32, 1)
    A.ds_done = 0 if False else A.ds_done
    A(f"v_lshrrev_b32 {v(u0)}, 4, {v(vL)}")
    A(f"v_cmp_eq_u32 vcc, 3, {v(u0)}")
    A(f"v_mov_b32 {v(u0)}, 0x0c0c0100\nv_mov_b32 {v(u1)}, 0x01000c0c\nv_mov_b32 {v(u2)}, 0x0c0c0c0c")
    A(f"v_cndmask_b32 {v(vG3)}, -1, 0, vcc")
    A(f"v_cndmask_b32 {v(u0)}, {v(u0)}, {v(u1)}, s[{MP}:{MP+1}]")
    A(f"v_cndmask_b32 {v(vSEL+0)}, {v(u0)}, {v(u2)}, s[{MA}:{MA+1}]")
    A(f"v_cndmask_b32 {v(vSEL+2)}, {v(u2)}, {v(u0)}, s[{MA}:{MA+1}]")
    A(f"v_mov_b32 {v(u0)}, 0x0c0c0302\nv_mov_b32 {v(u1)}, 0x03020c0c")
    A(f"v_cndmask_b32 {v(u0)}, {v(u0)}, {v(u1)}, s[{MP}:{MP+1}]")
    A(f"v_cndmask_b32 {v(vSEL+1)}, {v(u0)}, {v(u2)}, s[{MB}:{MB+1}]")
    A(f"v_cndmask_b32 {v(vSEL+3)}, {v(u2)}, {v(u0)}, s[{MB}:{MB+1}]")
    pk(KP + 4, acq(0, 2)); pk(KP + 6, acq(0, 3))
    pk(VP + 2, acq(0, 4)); pk(VP + 8, acq(0, 5))
    for tb in (1, 0):
        pk(QP + 4*tb, acq(tb, 0)); pk(QP + 2 + 4*tb, acq(tb, 1))
        A(f"v_and_b32 {v(QP+2+4*tb)}, {v(vG3)}, {v(QP+2+4*tb)}")
        A(f"v_and_b32 {v(QP+3+4*tb)}, {v(vG3)}, {v(QP+3+4*tb)}")
    A.wait_ds_all()
    lds_wait_min(A, 32, 1)
    A.dsop(f"ds_read_b128 {v(KP,4)}, {v(vXCA)}")
    A.dsop(f"ds_read_b64 {v(VP,2)}, {v(vXCA+1)} offset:1024")
    tkx = A.dsop(f"ds_read_b64 {v(VP+6,2)}, {v(vXCA+1)} offset:1536")
    A(f"s_add_u32 s{S_GT}, s{S_OS}, 73728")
    CSC = "0x3e8b97f6"
    def S_(tb, cur): return SS + 8*tb + 4*cur
    A(f"v_mfma_f32_16x16x32_bf16 {v(S_(1,0),4)}, {v(KP+4,4)}, {v(QP+4,4)}, 0")
    A(f"v_mfma_f32_16x16x32_bf16 {v(S_(1,1),4)}, {v(KP+8,4)}, {v(QP+4,4)}, 0")
    A(f"v_mfma_f32_16x16x32_bf16 {v(S_(0,1),4)}, {v(KP+4,4)}, {v(QP,4)}, 0")
    A.wait_ds(tkx)
    A(f"v_mfma_f32_16x16x32_bf16 {v(S_(0,0),4)}, {v(KP,4)}, {v(QP,4)}, 0")
    A(f"v_mov_b32 {v(u0)}, 0xf149f2ca")
    A.nop(5)
    def both(fn):
        for tb in (1, 0): fn(tb, TT_ + 4*tb, TT_ + 4*tb + 1, TT_ + 4*tb + 2, TT_ + 4*tb + 3)
    both(lambda tb, tA, tB, tC, tD: A(f"v_cndmask_b32 {v(tC)}, {v(S_(tb,1))}, {v(S_(tb,1)+1)}, s[{MP}:{MP+1}]\nv_cndmask_b32 {v(tD)}, {v(S_(tb,1)+2)}, {v(S_(tb,1)+3)}, s[{MP}:{MP+1}]"))
    both(lambda tb, tA, tB, tC, tD: A(f"v_cndmask_b32 {v(tA)}, {v(S_(tb,0))}, {v(S_(tb,0)+1)}, s[{MP}:{MP+1}]\nv_cndmask_b32 {v(tB)}, {v(S_(tb,0)+2)}, {v(S_(tb,0)+3)}, s[{MP}:{MP+1}]"))
    A(f"v_cndmask_b32 {v(TT_)}, {v(TT_)}, {v(u0)}, s[{MFIRST}:{MFIRST+1}]")
    A(f"v_cndmask_b32 {v(TT_+1)}, {v(TT_+1)}, {v(u0)}, s[{MFIRST}:{MFIRST+1}]")
    both(lambda tb, tA, tB, tC, tD: A(f"v_cndmask_b32 {v(tA)}, {v(tA)}, {v(tC)}, s[{MA}:{MA+1}]\nv_cndmask_b32 {v(tB)}, {v(tB)}, {v(tD)}, s[{MB}:{MB+1}]"))
    both(lambda tb, tA, tB, tC, tD: A(f"v_max_f32 {v(tC)}, {v(tA)}, {v(tB)}"))
    def xreduce(op):
        for sw in ("v_permlane16_swap_b32", "v_permlane32_swap_b32"):
            both(lambda tb, tA, tB, tC, tD: A(f"v_mov_b32 {v(tD)}, {v(tC)}"))
            A("s_nop 0")
            both(lambda tb, tA, tB, tC, tD: A(f"{sw} {v(tC)}, {v(tD)}"))
            A("s_nop 0")
            both(lambda tb, tA, tB, tC, tD: A(f"{op} {v(tC)}, {v(tC)}, {v(tD)}"))
    xreduce("v_max_f32")
    both(lambda tb, tA, tB, tC, tD: A(f"v_sub_f32 {v(tA)}, {v(tA)}, {v(tC)}\nv_sub_f32 {v(tB)}, {v(tB)}, {v(tC)}"))
    both(lambda tb, tA, tB, tC, tD: A(f"v_mul_f32 {v(tA)}, {CSC}, {v(tA)}\nv_mul_f32 {v(tB)}, {CSC}, {v(tB)}"))
    both(lambda tb, tA, tB, tC, tD: A(f"v_exp_f32 {v(tA)}, {v(tA)}\nv_exp_f32 {v(tB)}, {v(tB)}"))
    A("s_nop 0")
    both(lambda tb, tA, tB, tC, tD: A(f"v_add_f32 {v(tC)}, {v(tA)}, {v(tB)}"))
    xreduce("v_add_f32")
    both(lambda tb, tA, tB, tC, tD: A(f"v_rcp_f32 {v(tC)}, {v(tC)}"))
    A("s_nop 0")
    both(lambda tb, tA, tB, tC, tD: A(f"v_mul_f32 {v(tC)}, {v(tC)}, {v(ACG+4*tb)}"))
    both(lambda tb, tA, tB, tC, tD: A(f"v_mul_f32 {v(tA)}, {v(tA)}, {v(tC)}\nv_mul_f32 {v(tB)}, {v(tB)}, {v(tC)}"))
    both(lambda tb, tA, tB, tC, tD: A(f"v_cvt_pk_bf16_f32 {v(tA)}, {v(tA)}, {v(tB)}"))
    both(lambda tb, tA, tB, tC, tD: A("\n".join(f"v_perm_b32 {v(PPp+4*tb+i)}, {v(tA)}, {v(tA)}, {v(vSEL+i)}" for i in range(4))))
    A("s_nop 0")
    for tb in (1, 0):
        A(f"v_mfma_f32_16x16x32_bf16 {v(OO+8*tb,4)}, {v(VP+2*tb,4)}, {v(PPp+4*tb,4)}, 0")
        A(f"v_mfma_f32_16x16x32_bf16 {v(OO+8*tb+4,4)}, {v(VP+6+2*tb,4)}, {v(PPp+4*tb,4)}, 0")
    A.nop(6)
    for tb in (1, 0):
        op = OP + 4*tb
        pk(op, OO + 8*tb); pk(op + 2, OO + 8*tb + 4)
        A(f"v_and_b32 {v(op+2)}, {v(vG3)}, {v(op+2)}")
        A(f"v_and_b32 {v(op+3)}, {v(vG3)}, {v(op+3)}")
        last["OS"] = A.vmem(f"buffer_store_dwordx4 {v(op,4)}, {v(vFR)}, s[{WS}:{WS+3}], s{S_OS if tb == 0 else S_GT} offen sc1")
    ST("attn done")
    A.wait_vm_all()
    publish(A, S_FLP, 8192)
    ST("O pub")
    A.label(f"{kname}_cfin")
    ST.dump(WS, S_W8, vL, vT)
    A("s_endpgm")
    for cblk in cold: A.raw(cblk)

    A = L; ST = Stamper(L, vST, "L", [98, 72, 74, 76, 78, 64, 66, 70]); last = {}
    A.label(f"{kname}_L")
    S_XO, S_HO, S_QO, S_XH, S_M4, S_M1, S_MXH, S_FLC, S_FO, S_WOB, S_W2B, S_RF, S_GW = 48, 49, 50, 51, 52, 53, 54, 55, 56, 57, 58, 59, 60
    SW = 88
    vXD, vXHD, vHD0, vHD1, vQD, vW2D, vRS, vRD = 24, 25, 26, 27, 28, 29, 30, 31
    vD = 32
    ST("start")
    A(f"v_mul_u32_u24 {v(t1)}, 896, {v(r8)}")
    A(f"v_xor_b32 {v(t0)}, {v(l7)}, {v(r8)}")
    A(f"v_lshl_add_u32 {v(vXD)}, {v(t0)}, 4, {v(t1)}")
    A(f"v_and_b32 {v(t0)}, 1, {v(g)}")
    A(f"v_xor_b32 {v(t0)}, {v(t0)}, {v(l7)}")
    A(f"v_lshl_add_u32 {v(vW2D)}, {v(t0)}, 4, {v(t1)}")
    A(f"v_mul_u32_u24 {v(t1)}, 3584, {v(g)}")
    A(f"v_lshlrev_b32 {v(t0)}, 1, {v(g)}")
    A(f"v_xor_b32 {v(t0)}, {v(t0)}, {v(c16)}")
    A(f"v_lshl_add_u32 {v(vHD0)}, {v(t0)}, 4, {v(t1)}")
    A(f"v_xor_b32 {v(vHD1)}, 0x80, {v(vHD0)}")
    A("s_waitcnt lgkmcnt(0)")
    srd(A, X, KA, 2048 * 896)
    srd(A, W1, KA+8, 448 * 3584)
    srd(A, QKV, KA+2, 448 * 2688)
    srd(A, WO, KA+4, 448 * 896)
    srd(A, W2, KA+12, 1792 * 896)
    srd(A, B1, KA+10, 3584)
    srd(A, GW, KA+16, 896)
    srd(A, B2, KA+14, 896)
    srd(A, OUT, KA+18, 2048 * 896)
    if OPT.get("wsoff", 0): A(f"s_add_u32 s{KA+22}, s{KA+22}, {OPT['wsoff'] << 20}\ns_addc_u32 s{KA+23}, s{KA+23}, 0")
    srd(A, WS, KA+22, WS_BYTES)
    A(f"s_lshl_b32 s{S_GW}, s2, 2\ns_add_u32 s{S_GW}, s{S_GW}, s{S_W}")
    if SWEEP == 2:
        A(f"s_mul_i32 s{S_T}, s{S_GW}, 1792")
        A.vmem(f"buffer_load_dwordx4 {v(vD,4)}, {v(vFR)}, s[{X}:{X+3}], s{S_T} offen")
        A("s_mov_b32 exec_hi, 0xffff")
        A.vmem(f"buffer_load_dwordx4 {v(vD,4)}, {v(vFR)}, s[{X}:{X+3}], s{S_T} offen offset:1024")
        A("s_mov_b32 exec_hi, -1")
        A(f"s_mul_i32 s{S_T}, s{S_GW}, 1664")
        A.vmem(f"buffer_load_dwordx4 {v(vD,4)}, {v(vFR)}, s[{W1}:{W1+3}], s{S_T} offen")
        A("s_mov_b32 exec_hi, 0xff")
        A.vmem(f"buffer_load_dwordx4 {v(vD,4)}, {v(vFR)}, s[{W1}:{W1+3}], s{S_T} offen offset:1024")
        A("s_mov_b32 exec_hi, -1")
    QROW = 64 if REPACK else 2688
    A(f"""s_lshr_b32 s{S_T}, s{S_W}, 1
s_lshl_b32 s{S_T}, s{S_T}, 5
s_and_b32 s{S_T2}, s{S_W}, 1
s_lshl_b32 s{S_T2}, s{S_T2}, 2
s_add_u32 s{S_T}, s{S_T}, s{S_T2}
s_mul_i32 s{S_HO}, s{S_T}, 3584
s_add_u32 s{S_HO}, s{S_HO}, s{S_HW}
s_mul_i32 s{S_QO}, s{S_T}, {QROW}
s_mul_i32 s{S_T2}, s{S_HC}, {3*448*64 if REPACK else 56}
s_add_u32 s{S_QO}, s{S_QO}, s{S_T2}
s_lshl_b32 s{S_T}, s{S_RB}, 7
s_lshl_b32 s{S_T2}, s{S_W}, 5
s_add_u32 s{S_T2}, s{S_T}, s{S_T2}
s_mul_i32 s{S_XO}, s{S_T2}, 896
s_sub_i32 s{S_T}, s{S_T}, 16
s_max_i32 s{S_T}, s{S_T}, 0
s_lshl_b32 s{S_T2}, s{S_W}, 2
s_add_u32 s{S_T}, s{S_T}, s{S_T2}
s_mul_i32 s{S_XH}, s{S_T}, 896
s_lshl_b32 s{S_M4}, s{S_W}, 12
s_lshl_b32 s{S_M1}, s{S_W}, 10
s_lshl_b32 s{S_MXH}, s{S_W}, 9""")
    S_R1, S_R2, S_R3 = 94, 95, 96
    if OPT.get("rot", 1):
        A(f"""s_lshl_b32 s{S_T}, s{S_HC}, 1
s_add_u32 s{S_T}, s{S_T}, s{S_RB}
s_mul_i32 s{S_T2}, s{S_T}, 37
s_lshr_b32 s{S_T2}, s{S_T2}, 8
s_mul_i32 s{S_T2}, s{S_T2}, 7
s_sub_u32 s{S_R1}, s{S_T}, s{S_T2}
s_and_b32 s{S_T}, s{S_TT}, 3
s_mul_i32 s{S_T}, s{S_T}, 7
s_add_u32 s{S_T}, s{S_T}, 1
s_lshr_b32 s{S_T}, s{S_T}, 1
s_lshl_b32 s{S_T2}, s{S_CT}, 1
s_add_u32 s{S_T}, s{S_T}, s{S_T2}
s_sub_u32 s{S_T2}, s{S_T}, 14
s_cmp_ge_u32 s{S_T}, 14
s_cselect_b32 s{S_R2}, s{S_T2}, s{S_T}
s_add_u32 s{S_T}, s{S_TT}, s{S_CT}
s_and_b32 s{S_R3}, s{S_T}, 3""")
    else:
        A(f"s_mov_b32 s{S_R1}, 0\ns_mov_b32 s{S_R2}, 0\ns_mov_b32 s{S_R3}, 0")
    lb = newlab("w0")
    A(f"s_cmp_lg_u32 s{S_W}, 0\ns_cbranch_scc1 {lb}")
    A(f"s_mov_b32 m0, {L_BIAS}\ns_mov_b64 exec, 0xffff")
    A(f"buffer_load_dwordx4 {v(vFR)}, s[{B1}:{B1+3}], s{S_HW} offen lds")
    A(f"s_mov_b32 m0, {L_GATE}\ns_mov_b32 exec_lo, -1\ns_mov_b32 exec_hi, 0xffffff")
    A(f"s_lshl_b32 s{S_T}, s{S_R1}, 7")
    A(f"v_add_u32 {v(t0)}, s{S_T}, {v(vFR)}")
    A(f"v_subrev_u32 {v(t1)}, 896, {v(t0)}")
    A(f"v_min_u32 {v(t0)}, {v(t0)}, {v(t1)}")
    A(f"buffer_load_dwordx4 {v(t0)}, s[{GW}:{GW+3}], 0 offen lds")
    A("s_mov_b64 exec, -1")
    A.label(lb)
    S_CB = 93
    def rot_base(sdst, srot, idx, mod, mult, sadd):
        A(f"s_add_u32 s{sdst}, s{srot}, {idx}")
        A(f"s_sub_u32 s{S_T2}, s{sdst}, {mod}")
        A(f"s_cmp_ge_u32 s{sdst}, {mod}")
        A(f"s_cselect_b32 s{sdst}, s{S_T2}, s{sdst}")
        A(f"s_mul_i32 s{sdst}, s{sdst}, {mult}")
        A(f"s_add_u32 s{sdst}, s{sdst}, s{sadd}")
    def dma(m0reg, m0off, sreg, soff, va, sr, flags=""):
        A(f"s_add_u32 m0, s{m0reg}, {m0off}")
        A(f"s_add_u32 s{S_T}, s{sreg}, {soff}")
        return A.vmem(f"buffer_load_dwordx4 {v(va)}, s[{sr}:{sr+3}], s{S_T} offen {flags} lds")
    def load(lu):
        k, c = lu; pb = page[lu] * PAGE
        if k == "H":
            rot_base(S_CB, S_R1, c, 7, 64*3584, S_HO)
            for gi in range(4): t = dma(S_M4, pb + gi*1024, S_CB, 8*gi*3584, vHD1 if gi & 1 else vHD0, W1)
        elif k == "X":
            rot_base(S_CB, S_R1, c, 7, 128, S_XO)
            for q in range(4): t = dma(S_M4, pb + q*1024, S_CB, q*8*896, vXD, X)
        elif k == "Q":
            rot_base(S_CB, S_R1, c, 7, 4096 if REPACK else 172032, S_QO)
            for p in range(3):
                if REPACK: dma(S_M1, pb + p*4096, S_CB, WS_QR + p*448*64, vQD, WS, "sc1")
                else: dma(S_M1, pb + p*4096, S_CB, 896*p, vQD, QKV)
            rot_base(S_CB, S_R1, c, 7, 128, S_XH)
            A(f"s_mov_b64 exec, s[{M32}:{M32+1}]")
            t = dma(S_MXH, pb + 12288, S_CB, 0, vXHD, X)
            A("s_mov_b64 exec, -1")
        last[lu] = t
    def poll(tag, sreg, off, wide=False):
        lp, ok = newlab("pl"), newlab("pk")
        A(f"s_add_u32 s{S_T}, s{sreg}, {off}")
        if not wide: A(f"s_mov_b64 exec, s[{M32}:{M32+1}]")
        A.label(lp)
        if wide:
            A(f"buffer_load_dwordx4 {v(vD+12,4)}, {v(vFR)}, s[{WS}:{WS+3}], s{S_T} offen sc1")
            A(f"buffer_load_dwordx4 {v(vD+16,4)}, {v(vFR)}, s[{WS}:{WS+3}], s{S_T} offen offset:768 sc1")
            A("s_waitcnt vmcnt(0)")
            A(f"v_cmp_ne_u64 vcc, s[{NON}:{NON+1}], {v(vD+12,2)}")
            for i in range(1, 4):
                A(f"v_cmp_ne_u64 s[{SW}:{SW+1}], s[{NON}:{NON+1}], {v(vD+12+2*i,2)}")
                A(f"s_or_b64 vcc, vcc, s[{SW}:{SW+1}]")
            A(f"s_cmp_eq_u64 vcc, 0\ns_cbranch_scc1 {ok}")
        else:
            A(f"buffer_load_dwordx2 {v(vD+12,2)}, {v(vL8)}, s[{WS}:{WS+3}], s{S_T} offen sc1")
            A("s_waitcnt vmcnt(0)")
            A(f"v_cmp_ne_u64 vcc, s[{NON}:{NON+1}], {v(vD+12,2)}")
            A(f"s_cbranch_vccz {ok}")
        A(f"s_sleep {OPT.get('psleep', 3)}")
        spin_guard(A, lp)
        A.label(ok)
        A("s_mov_b64 exec, -1")
        A.vm_done = A.vm
        ST(f"poll {tag} ok")
    def poll_issue(key, sreg, off):
        A(f"s_add_u32 s{S_T}, s{sreg}, {off}")
        A(f"s_mov_b64 exec, s[{M32}:{M32+1}]")
        last[key] = A.vmem(f"buffer_load_dwordx2 {v(vD+12,2)}, {v(vL8)}, s[{WS}:{WS+3}], s{S_T} offen sc1")
        A("s_mov_b64 exec, -1")
    def poll_finish(key, tag, sreg, off):
        ok = newlab("pf")
        A.wait_vm(last[key])
        A(f"s_mov_b64 exec, s[{M32}:{M32+1}]")
        A(f"v_cmp_ne_u64 vcc, s[{NON}:{NON+1}], {v(vD+12,2)}")
        A("s_mov_b64 exec, -1")
        A(f"s_cbranch_vccz {ok}")
        sv = (A.vm, A.vm_done)
        poll(tag, sreg, off)
        A.vm, A.vm_done = sv
        A.label(ok)
    ST("addr done")
    posted = [0]
    def post_upto(n, stamp=True):
        if n <= posted[0]: return
        A.wait_vm(last[seq[n-1]])
        lds_post(A, 0, n)
        posted[0] = n
        if stamp: ST(f"post {seq[n-1]}")
    if OPT.get("conly", 0):
        A("s_barrier")
        lds_post(A, 0, 99)
        A(f"s_branch {kname}_lfin")
    load(seq[0]); ST("H0 iss"); load(seq[1]); ST("X0 iss")
    NB = OPT.get("nbar", 2)
    if NB == 2: A("s_barrier")
    A(f"s_and_b32 s{S_T}, s{S_W}, 1\ns_lshl_b32 s{S_T}, s{S_T}, 6")
    A(f"v_xor_b32 {v(vXHD)}, s{S_T}, {v(vXD)}")
    A(f"v_and_b32 {v(t0)}, 3, {v(r16)}")
    A(f"v_lshl_add_u32 {v(t0)}, {v(g)}, 3, {v(t0)}")
    A(f"v_mul_u32_u24 {v(vQD)}, {QROW}, {v(t0)}")
    A(f"v_and_b32 {v(t0)}, 1, {v(g)}")
    A(f"v_lshlrev_b32 {v(t1)}, 1, {v(t0)}")
    A(f"v_xor_b32 {v(t1)}, {v(t1)}, {v(l3)}")
    A(f"v_lshl_add_u32 {v(vQD)}, {v(t1)}, 4, {v(vQD)}")
    S_CO = 61
    A(f"""s_lshl_b32 s{S_T}, s{S_TT}, 8
s_add_u32 s{S_FLC}, s{S_T}, {WS_FL}
s_lshl_b32 s{S_RF}, s2, 3
s_add_u32 s{S_RF}, s{S_RF}, {WS_FL + 16384}
s_mul_i32 s{S_FO}, s{S_TT}, {4*73728}
s_lshl_b32 s{S_CO}, s{S_CT}, 7
s_mul_i32 s{S_WOB}, s{S_W}, {112*896}
s_add_u32 s{S_WOB}, s{S_WOB}, s{S_CO}
s_mul_i32 s{S_W2B}, s{S_W}, {448*896}
s_add_u32 s{S_W2B}, s{S_W2B}, s{S_CO}""")
    S_FH, S_FOo = 62, 63
    A(f"""s_mul_i32 s{S_T}, s{S_W}, {14*1024}
s_add_u32 s{S_FH}, s{S_FO}, s{S_T}
s_add_u32 s{S_FOo}, s{S_FO}, s{S_M4}
s_add_u32 s{S_FOo}, s{S_FOo}, {56*1024}""")
    ST("rl iss")
    LAG = OPT.get("lag", 3)
    NL = len(seq)
    released = [-1]
    issued_n = [2]
    relpre = {}
    def wait_release(r):
        if r > released[0]:
            def slow():
                A.wait_vm_all()
                lds_post(A, 0, issued_n[0])
            lds_wait_min(A, 16, r + 1, relpre.pop("t", None), slow=slow)
            released[0] = r
    NP2 = OPT.get("np2", 6)
    def p2page(i): return p2free[i % NP2][1]
    vPA = 32; vG = 40; vB2 = 48
    WB = 64; RG = 96; NFS = 6
    ACB = RG + 16 * NFS
    FSLOT = {i: i % NFS for i in range(18)}
    def fa(i, j): return RG + 16 * FSLOT[i] + 4 * j
    def fprev(i):
        c = [k for k in range(i) if FSLOT[k] == FSLOT[i]]
        return max(c) if c else -1
    def jobs_W(i):
        def pre():
            if i < NP2: wait_release(p2free[i][0])
            if i < 14: rot_base(S_CB, S_R2, i, 14, 32*896, S_W2B)
            else: rot_base(S_CB, S_R3, i - 14, 4, 28*896, S_WOB)
            for q in range(4):
                last[("W", i)] = dma(S_M4, p2page(i)*PAGE + q*1024, S_CB, 8*q*896, vW2D, W2 if i < 14 else WO)
        return [pre]
    def jobs_F(i):
        def f():
            if i < 14: rot_base(S_CB, S_R2, i, 14, 1024, S_FH)
            else: rot_base(S_CB, S_R3, i - 14, 4, 1024, S_FOo)
            for j in range(4):
                if j: A(f"s_add_u32 s{S_CB}, s{S_CB}, 73728")
                last[("F", i)] = A.vmem(f"buffer_load_dwordx4 {v(fa(i,j),4)}, {v(vFR)}, s[{WS}:{WS+3}], s{S_CB} offen sc1")
        return [f]
    NWE = OPT.get("nwe", 3)
    A(f"s_cmp_lt_u32 s{S_CT}, 7\ns_cselect_b32 s{WO+2}, s{WO+2}, 0\ns_cselect_b32 s{W2+2}, s{W2+2}, 0")
    for n in range(2, NL):
        lu = seq[n]
        if lu == ("Q", 0):
            for i in range(NWE):
                for f in jobs_W(i): f()
                if i == 0: post_upto(n - 2)
                if i == 1: post_upto(n)
            post_upto(n)
            nonce_check(A, last)
            if REPACK:
                A(f"s_mov_b32 s{SW+2}, {WS_FL + 16384}")
                poll("R", SW + 2, 0, wide=True)
        wait_release(after[lu])
        if n + 1 < NL and after[seq[n+1]] > released[0] and seq[n+1] != ("Q", 0): relpre["t"] = lds_flag_read(A, 16)
        load(lu); issued_n[0] = n + 1
        if n + 1 == NB: A("s_barrier")
        if n == 3: post_upto(2)
        if n == 9: nonce_load(A, last)
        m = n + 1 - LAG
        if m >= 2 and seq[m-1][0] != "H": post_upto(m)
    post_upto(NL)
    if OPT.get("lonly", 0): A(f"s_branch {kname}_lfin")
    if OPT.get("l2w", 1):
        A(f"s_mov_b32 s{W2+2}, {1792*896}\ns_mov_b32 s{WO+2}, {448*896}")
        A(f"s_lshr_b32 s{S_T}, s2, 3\ns_lshl_b32 s{S_T}, s{S_T}, 2\ns_add_u32 s{S_T}, s{S_T}, s{S_W}")
        A(f"s_mul_i32 s{S_CB}, s{S_T}, 12544\ns_mul_i32 s{S_T2}, s{S_T}, 3136")
        for k in range(13):
            if k % 4 == 0 and k: A(f"s_add_u32 s{S_CB}, s{S_CB}, 4096")
            if k == 12: A("s_mov_b64 exec, 0xffff")
            A.vmem(f"buffer_load_dwordx4 {v(RG,4)}, {v(vFR)}, s[{W2}:{W2+3}], s{S_CB} offen offset:{1024*(k%4)}")
        A("s_mov_b64 exec, -1")
        for k in range(4):
            if k == 3: A("s_mov_b64 exec, 0xff")
            A.vmem(f"buffer_load_dwordx4 {v(RG,4)}, {v(vFR)}, s[{WO}:{WO+3}], s{S_T2} offen offset:{1024*k}")
        A("s_mov_b64 exec, -1")
    A(f"s_cmp_ge_u32 s{S_CT}, 7\ns_cbranch_scc1 {kname}_lfin")
    NW0 = max(NWE, OPT.get("nw0", 3))
    for i in range(NWE, NW0):
        for f in jobs_W(i): f()
    A(f"v_bfe_u32 {v(t0)}, {v(vL)}, 3, 1")
    A(f"v_lshl_add_u32 {v(t0)}, {v(l3)}, 1, {v(t0)}")
    A(f"v_lshlrev_b32 {v(t1)}, 7, {v(r16)}")
    A(f"v_lshl_add_u32 {v(t1)}, {v(t0)}, 4, {v(t1)}")
    poll("H", S_FLC, 0)
    A(f"v_add_u32 {v(vPA)}, s{S_M4}, {v(t1)}")
    A(f"v_xor_b32 {v(vPA+1)}, 16, {v(vPA)}")
    for z in (1, 2):
        for i in range(2): A(f"v_add_u32 {v(vPA+2*z+i)}, {z*65536}, {v(vPA+i)}")
    fi = 0; wi = NW0
    for i in range(min(NFS - 1, 4)):
        for f in jobs_F(i): f()
        fi += 1
    def aw2(buf, t): return WB + 16*buf + 4*t
    rdt = {}
    def reads2(i):
        pg = p2page(i); z = pg // 4; rel = (pg % 4) * PAGE
        A.wait_vm(last[("W", i)])
        for t in range(4):
            for hf in range(2):
                rdt[(i, t)] = A.dsop(f"ds_read_b64_tr_b16 {v(aw2(i&1,t)+2*hf,2)}, {v(vPA+2*z+(t>>1))} offset:{rel + hf*2048 + 8*(t&1)}")
    def small_loads():
        A(f"v_lshlrev_b32 {v(t0)}, 2, {v(c16)}")
        A(f"s_lshl_b32 s{S_T}, s{S_TT}, 8\ns_add_u32 s{S_T}, s{S_T}, {WS_G}")
        for j in range(4):
            A.vmem(f"buffer_load_dword {v(vG+j)}, {v(t0)}, s[{WS}:{WS+3}], s{S_T} offen offset:{64*j} sc1")
        A(f"v_lshlrev_b32 {v(t1)}, 5, {v(g)}")
        A.vmem(f"buffer_load_dwordx4 {v(vB2+8,4)}, {v(t1)}, s[{B2}:{B2+3}], s{S_CO} offen")
        last["SM"] = A.vmem(f"buffer_load_dwordx4 {v(vB2+12,4)}, {v(t1)}, s[{B2}:{B2+3}], s{S_CO} offen offset:16")
    reads2(0)
    for i in range(18):
        while wi < 18 and wi - NP2 < i and wi <= i + NP2 - 1:
            for f in jobs_W(wi): f()
            wi += 1
            break
        while fi < 18 and fprev(fi) < i:
            if fi == 14: poll_finish("PO", "O", S_FLC, 8192)
            for f in jobs_F(fi): f()
            fi += 1
            break
        if i == 6: small_loads()
        if i == OPT.get("pollO", 6): poll_issue("PO", S_FLC, 8192)
        if i + 1 < 18:
            while wi <= i + 1:
                for f in jobs_W(wi): f()
                wi += 1
            reads2(i + 1)
        A.wait_vm(last[("F", i)])
        if i % 3 == 0: ST(f"p2 step {i}")
        if i == 14:
            A.wait_vm(last["SM"])
            for j in range(4): A(f"v_sub_f32 {v(vG+4+j)}, 1.0, {v(vG+j)}")
            for k in range(7):
                A(f"v_lshlrev_b32 {v(vB2+2*k)}, 16, {v(vB2+8+k)}")
                A(f"v_and_b32 {v(vB2+2*k+1)}, 0xffff0000, {v(vB2+8+k)}")
            A(f"v_lshlrev_b32 {v(vB2+14)}, 16, {v(vB2+15)}")
            A(f"v_and_b32 {v(vB2+15)}, 0xffff0000, {v(vB2+15)}")
            for r in range(0, 16, 2):
                for j in range(4):
                    A(f"v_pk_mul_f32 {v(ACB+16*j+r,2)}, {v(ACB+16*j+r,2)}, {v(vG+4+j-(j&1),2)} op_sel:[0,{j&1}] op_sel_hi:[1,{j&1}]")
            A("s_nop 1")
        for t in range(4):
            A.wait_ds(rdt[(i, t)])
            for j in range(4):
                d = v(ACB + 16*j + 4*t, 4)
                A(f"v_mfma_f32_16x16x32_bf16 {d}, {v(aw2(i&1,t),4)}, {v(fa(i,j),4)}, {'0' if i == 0 else d}")
    assert fi == 18 and wi == 18
    ST("p2 loop done")
    ACA = ACB
    RP = [p2page(k) for k in range(3)]
    RV = RG
    for k in range(3): A(f"v_add_u32 {v(vPA+k)}, {RP[k]*PAGE}, {v(vFR)}")
    for k in range(3): A(f"v_add_u32 {v(vPA+3+k)}, s{S_M4}, {v(vPA+k)}")
    A.nop(4)
    for w in range(4):
        if w < 3: A(f"s_cmp_lg_u32 s{S_W}, {w}\ns_cbranch_scc1 {kname}_w{w+1}")
        for j in range(4):
            if j == w: continue
            k = (j - w - 1) & 3
            for t in range(4):
                A(f"ds_write_b128 {v(vPA+3+k)}, {v(ACA+16*j+4*t,4)} offset:{t*1024}")
        for r in range(16): A(f"v_fma_f32 {v(RV+r)}, {v(vG+4+w)}, {v(vB2+r)}, {v(ACA+16*w+r)}")
        A("s_waitcnt lgkmcnt(0)\ns_barrier")
        for k in range(3):
            srcw = (w - k - 1) & 3
            for t in range(4):
                A(f"ds_read_b128 {v(RV+16+16*k+4*t,4)}, {v(vPA+k)} offset:{srcw*4096 + t*1024}")
        if w < 3:
            A(f"s_branch {kname}_wd")
            A.label(f"{kname}_w{w+1}")
    A.label(f"{kname}_wd")
    A(f"v_mul_u32_u24 {v(t0)}, 896, {v(c16)}")
    A(f"v_add_u32 {v(t0)}, {v(t0)}, {v(t1)}")
    A(f"""s_lshl_b32 s{S_T}, s{S_TT}, 6
s_lshl_b32 s{S_T2}, s{S_W}, 4
s_add_u32 s{S_T}, s{S_T}, s{S_T2}
s_mul_i32 s{S_T}, s{S_T}, 896
s_add_u32 s{S_T}, s{S_T}, s{S_CO}""")
    for k in range(3):
        A(f"s_waitcnt lgkmcnt({8-4*k})")
        for r in range(0, 16, 2):
            A(f"v_pk_add_f32 {v(RV+r,2)}, {v(RV+r,2)}, {v(RV+16+16*k+r,2)}")
    for r in range(8):
        A(f"v_cvt_pk_bf16_f32 {v(WB+r)}, {v(RV+2*r)}, {v(RV+2*r+1)}")
    A(f"buffer_store_dwordx4 {v(WB,4)}, {v(t0)}, s[{OUT}:{OUT+3}], s{S_T} offen")
    A(f"buffer_store_dwordx4 {v(WB+4,4)}, {v(t0)}, s[{OUT}:{OUT+3}], s{S_T} offen offset:16")
    ST("end")
    if OPT.get("xtra", 0):
        A("s_load_dwordx2 s[72:73], s[0:1], 24\ns_waitcnt lgkmcnt(0)")
        srd(A, 76, 72, 2048 * 896)
        A(f"s_lshr_b32 s{S_T}, s2, 3\ns_lshl_b32 s{S_T}, s{S_T}, 2\ns_add_u32 s{S_T}, s{S_T}, s{S_W}\ns_mul_i32 s{S_T}, s{S_T}, 16384")
        for rep in range(OPT.get("xrep", 1)):
            for k in range(16):
                A(f"s_add_u32 s{S_T2}, s{S_T}, {1024*k}")
                A(f"buffer_load_dwordx4 {v(RG,4)}, {v(vFR)}, s[76:79], s{S_T2} offen")
        A("s_waitcnt vmcnt(0)")
    if OPT.get("minT", 0):
        A.label("Lhold")
        A(f"s_memrealtime s[72:73]\ns_waitcnt lgkmcnt(0)\ns_sub_u32 s72, s72, s{NON}\ns_cmp_lt_u32 s72, {OPT['minT']}\ns_cbranch_scc1 Lhold")
    A.label(f"{kname}_lfin")
    ST.dump(WS, S_W8, vL, vT)
    A.label(f"{kname}_end")
    A("s_endpgm")
    return P.text() + C.text() + L.text(), page, after

def desc(kname, nv, accoff, ns=102):
    return f""".amdhsa_kernel {kname}
  .amdhsa_next_free_vgpr {nv}
  .amdhsa_next_free_sgpr {ns}
  .amdhsa_accum_offset {accoff}
  .amdhsa_group_segment_fixed_size 0
  .amdhsa_kernarg_size 96
  .amdhsa_user_sgpr_count 2
  .amdhsa_user_sgpr_kernarg_segment_ptr 1
  .amdhsa_system_sgpr_workgroup_id_x 1
.end_amdhsa_kernel
"""

if __name__ == "__main__":
    out = sys.argv[1]
    STAMPS = "--stamps" in sys.argv
    for x in sys.argv[2:]:
        if "=" in x:
            k_, v_ = x.split("="); OPT[k_] = v_.split(";") if k_.startswith("sel") else int(v_)
    k = NAME + "_kernel"
    t = f"; @launch grid=(256,1,1) block=(512,1,1) lds=163840\n"
    t += '.amdgcn_target "amdgcn-amd-amdhsa--gfx950"\n.text\n'
    body, page, after = gen(k)
    if "--plan" in sys.argv:
        for lu in page: print(lu, "page", page[lu], "after", UNITS[after[lu]] if after.get(lu, -1) >= 0 else None)
    t += f".globl {k}\n.p2align 8\n.type {k},@function\n" + body
    t += '.section .rodata,"a"\n.p2align 6\n' + desc(k, 256, 256)
    open(out, "w").write(t)
```

```python
import sys
from collections import deque
from asmlib import Asm, v, a, s

NAME = "gated_mix__sliding_local_dilated__dense_activation_squared_relu__prompt"
WS_G = 128 * 72 * 1024
WS_FL = WS_G + 8192
WS_QR = WS_FL + 20480
WS_ST = WS_QR + 16 * 3 * 448 * 64
WS_BYTES = WS_ST + 262144
PAGE = 16384
L_BIAS = 8 * PAGE + 14336
L_GATE = L_BIAS + 256
L_DUM = L_GATE + 896
L_FLG = 8 * PAGE + 15872
STAMPS = False
OPT = {}

def srd(A, d, lo, nbytes):
    A(f"s_mov_b32 s{d}, s{lo}")
    A(f"s_and_b32 s{d+1}, s{lo+1}, 0xffff")
    A(f"s_mov_b32 s{d+2}, {nbytes}")
    A(f"s_mov_b32 s{d+3}, 0x20000")

class Stamper:
    def __init__(self, vreg, tag, pairs):
        self.n = 0; self.v = vreg; self.tag = tag; self.pairs = pairs
    def __call__(self, A, what=""):
        if not STAMPS: return
        sel = OPT.get("sel" + self.tag)
        if sel is not None and what != "start" and not any(what.startswith(x) for x in sel): return
        assert self.n < len(self.pairs), "too many stamps"
        p = self.pairs[self.n]
        A(f"s_memtime s[{p}:{p+1}]")
        print(f"stamp {self.tag} {self.n}: {what}")
        self.n += 1
    def dump(self, A, WS, S_W8, vL, vt):
        if not STAMPS: return
        A("s_mov_b64 exec, -1")
        A(f"v_mov_b32 v{self.v}, 0")
        A("s_waitcnt lgkmcnt(0)")
        A(f"v_writelane_b32 v{self.v}, s100, 62")
        A("s_memrealtime s[100:101]")
        A("s_waitcnt lgkmcnt(0)")
        A(f"v_writelane_b32 v{self.v}, s100, 63")
        for i in range(self.n): A(f"v_writelane_b32 v{self.v}, s{self.pairs[i]}, {i}")
        A(f"s_and_b32 s100, s{S_W8}, 3\ns_cmp_lg_u32 s100, {OPT.get('stw', 0)}\ns_cbranch_scc1 Lnodump{self.tag}")
        A(f"s_lshl_b32 s100, s2, 1\ns_add_u32 s100, s100, {0 if self.tag == 'C' else 1}\ns_lshl_b32 s100, s100, 8\ns_add_u32 s100, s100, {WS_ST}")
        A(f"v_lshlrev_b32 v{vt}, 2, v{vL}")
        A(f"buffer_store_dword v{self.v}, v{vt}, s[{WS}:{WS+3}], s100 offen")
        A.label(f"Lnodump{self.tag}")

UNITS = [("A", c) for c in range(7)] + [("Q", c) for c in range(7)]
UIDX = {u: i for i, u in enumerate(UNITS)}
NEED = {("A", c): [("H", c), ("X", c)] for c in range(7)}
NEED.update({("Q", c): [("Q", c)] for c in range(7)})
def make_plan():
    page = {}; after = {}; seq = []
    for c in range(7):
        page[("H", c)] = c % 4; page[("X", c)] = 4 + c % 4
        after[("H", c)] = after[("X", c)] = -1 if c < 4 else UIDX[("A", c - 4)]
        seq += [("H", c), ("X", c)]
    NWE = OPT.get("nwe", 3)
    free = [(-1, 9)]
    for c in range(3, 7): free += [(UIDX[("A", c)], c % 4), (UIDX[("A", c)], 4 + c % 4)]
    p2 = free[:NWE]; free = free[NWE:]
    for c in range(7):
        lu = ("Q", c)
        free.sort()
        rel, pg = (-1, 8) if c == 0 else free.pop(0)
        page[lu] = pg; after[lu] = rel
        if c: free.append((UIDX[lu], pg))
        seq.append(lu)
    free.sort()
    return page, after, seq, p2 + free

def gen(kname):
    page, after, seq, p2free = make_plan()
    SEQ = {lu: i for i, lu in enumerate(seq)}
    NL = len(seq)
    REPACK = OPT.get("repack", 1)
    S_W8, S_RB, S_HC, S_TT, S_CT = 3, 4, 5, 6, 7
    X, QKV, W1, WS, WO, W2, OUT, B1, GW, B2 = 8, 12, 16, 20, 24, 28, 32, 36, 40, 44
    KA = 48; DBG = 68
    MP, MA, MB, MFIRST, M32, NON = 72, 74, 76, 78, 80, 82
    S_T, S_T2, S_W, S_HW = 84, 85, 86, 87
    SW = 88; S_SPIN = 92; S_CB = 93; S_R1, S_R2, S_R3 = 94, 95, 96
    P = Asm(); C = Asm(); L = Asm(); S = Asm(); Q = Asm()
    vTID, vL, vFR, vST = 0, 1, 2, 3
    vZ, vL8, vN = 4, 5, 6
    vT = 8
    vFL, vFLW, vPV = 16, 17, 18
    vFV = 20
    c16, g, r8, l7, l3, r16, t0, t1 = [vT + i for i in range(8)]
    lab = [0]
    def newlab(t):
        lab[0] += 1; return f"L{t}{lab[0]}"
    STC = Stamper(vST, "C", [98, 8, 10, 12, 14, 16, 18, 24, 26, 28, 30, 32, 34, 36, 38, 40, 42, 44, 46, 60, 62, 64, 66, 88, 90, 94, 96])
    STL = Stamper(vST, "L", [98, 36, 38, 16, 18, 8, 10] if OPT.get("stlate", 0) else [98, 36, 38])

    A = P
    A.label(kname)
    A(f"s_cmp_ge_u32 s2, 256\ns_cbranch_scc1 {kname}_end")
    A(f"s_load_dwordx16 s[{KA}:{KA+15}], s[0:1], 0")
    A(f"s_load_dwordx8 s[{KA+16}:{KA+23}], s[0:1], 64")
    if STAMPS: A("s_memrealtime s[100:101]\ns_memtime s[98:99]"); STC.n = STL.n = 1; print("stamp C 0: start\nstamp L 0: start")
    A(f"v_lshrrev_b32 {v(vT)}, 6, {v(vTID)}")
    A(f"v_and_b32 {v(vL)}, 63, {v(vTID)}")
    A(f"v_readfirstlane_b32 s{S_W8}, {v(vT)}")
    A(f"v_lshlrev_b32 {v(vFR)}, 4, {v(vL)}")
    A(f"v_and_b32 {v(c16)}, 15, {v(vL)}")
    A(f"v_lshrrev_b32 {v(g)}, 4, {v(vL)}")
    A(f"v_lshrrev_b32 {v(r8)}, 3, {v(vL)}")
    A(f"v_and_b32 {v(l7)}, 7, {v(vL)}")
    A(f"""s_and_b32 s{S_W}, s{S_W8}, 3
s_lshr_b32 s{S_T}, s2, 3
s_and_b32 s{S_RB}, s2, 1
s_lshl_b32 s{S_RB}, s{S_RB}, 3
s_and_b32 s{S_T2}, s{S_T}, 7
s_add_u32 s{S_RB}, s{S_RB}, s{S_T2}
s_bfe_u32 s{S_HC}, s2, 0x20001
s_mul_i32 s{S_HW}, s{S_HC}, 896
s_lshl_b32 s{S_HC}, s{S_HC}, 2
s_lshr_b32 s{S_T2}, s{S_T}, 3
s_add_u32 s{S_HC}, s{S_HC}, s{S_T2}
s_lshl_b32 s{S_T}, s{S_T2}, 8
s_cmp_eq_u32 s{S_T2}, 3
s_cselect_b32 s{S_T}, 640, s{S_T}
s_add_u32 s{S_HW}, s{S_HW}, s{S_T}""")
    def common2(A):
        A(f"v_lshlrev_b32 {v(vL8)}, 3, {v(vL)}")
        A(f"v_mov_b32 {v(vZ)}, 0")
        A(f"v_mov_b32 {v(vFL)}, {L_FLG}")
        A(f"v_and_b32 {v(l3)}, 3, {v(vL)}")
        A(f"v_lshrrev_b32 {v(r16)}, 2, {v(vL)}")
        A(f"""s_and_b32 s{S_TT}, s2, 7
s_lshl_b32 s{S_TT}, s{S_TT}, 2
s_bfe_u32 s{S_T2}, s2, 0x20003
s_add_u32 s{S_TT}, s{S_TT}, s{S_T2}
s_lshr_b32 s{S_CT}, s2, 5
s_mov_b32 s{M32}, -1
s_mov_b32 s{M32+1}, 0
s_mov_b32 s{S_SPIN}, 0
s_lshl_b32 s{S_T}, s{S_W}, 2
s_add_u32 s{S_T}, s{S_T}, {L_FLG}""")
        A(f"v_lshlrev_b32 {v(vFLW)}, 2, {v(vL)}")
        A(f"v_add_u32 {v(vFLW)}, {L_DUM}, {v(vFLW)}")
        A(f"v_writelane_b32 {v(vFLW)}, s{S_T}, 0")
    A(f"s_cmp_ge_u32 s{S_W8}, 4\ns_cbranch_scc1 {kname}_C")
    A(f"s_cmp_ge_u32 s{S_W8}, 2\ns_cbranch_scc1 {kname}_S")

    def spin_guard(A, target):
        A(f"s_add_u32 s{S_SPIN}, s{S_SPIN}, 1\ns_cmp_lt_u32 s{S_SPIN}, 0x200000\ns_cbranch_scc1 {target}")
    def lds_post(A, off, val):
        A(f"v_mov_b32 {v(vPV)}, {val}")
        A.dsop(f"ds_max_u32 {v(vFLW)}, {v(vPV)} offset:{off}")
    def lds_flag_read(A, off):
        return A.dsop(f"ds_read_b128 {v(vFV,4)}, {v(vFL)} offset:{off}")
    def lds_wait_min(A, off, val, ticket=None, slow=None):
        lp, ok = newlab("lw"), newlab("lk")
        if ticket is None: ticket = lds_flag_read(A, off)
        A.wait_ds(ticket)
        def check():
            A(f"v_min3_u32 {v(vFV)}, {v(vFV)}, {v(vFV+1)}, {v(vFV+2)}")
            A(f"v_min_u32 {v(vFV)}, {v(vFV)}, {v(vFV+3)}")
            A("s_nop 0")
            A(f"v_readfirstlane_b32 s{S_T2}, {v(vFV)}")
            A(f"s_cmp_ge_u32 s{S_T2}, {val}\ns_cbranch_scc1 {ok}")
        if slow is not None:
            sv = (A.vm, A.vm_done, A.ds, A.ds_done)
            for step in slow():
                check()
                step()
                A(f"ds_read_b128 {v(vFV,4)}, {v(vFL)} offset:{off}\ns_waitcnt lgkmcnt(0)")
            A.vm, A.vm_done, A.ds, A.ds_done = sv
        A.label(lp)
        check()
        A(f"s_sleep 1\nds_read_b128 {v(vFV,4)}, {v(vFL)} offset:{off}\ns_waitcnt lgkmcnt(0)")
        spin_guard(A, lp)
        A.label(ok)
    def nonce_fetch(A):
        lp, ok = newlab("nf"), newlab("ng")
        A.label(lp)
        A(f"global_load_dwordx2 {v(vN,2)}, {v(vZ)}, s[{DBG}:{DBG+1}] sc1\ns_waitcnt vmcnt(0)")
        A(f"v_readfirstlane_b32 s{NON}, {v(vN)}")
        A(f"s_cmp_lg_u32 s{NON}, 0\ns_cbranch_scc1 {ok}")
        A("s_sleep 4")
        spin_guard(A, lp)
        A.label(ok)
        A(f"s_mov_b64 exec, 1\nds_write_b64 {v(vFL)}, {v(vN,2)} offset:64\ns_mov_b64 exec, -1")
    def nonce_load(A, last): pass
    def nonce_check(A, last):
        lp, ok = newlab("nc"), newlab("nk")
        A.label(lp)
        A(f"ds_read_b64 {v(vN,2)}, {v(vFL)} offset:64")
        A.wait_ds_all()
        A(f"v_readfirstlane_b32 s{NON}, {v(vN)}\nv_readfirstlane_b32 s{NON+1}, {v(vN+1)}")
        A(f"s_cmp_lg_u32 s{NON}, 0\ns_cbranch_scc1 {ok}")
        A("s_sleep 2")
        spin_guard(A, lp)
        A.label(ok)
    SP = 64
    WSP = 0
    def spoll_issue(A, sreg, off, n16=True, extra=None):
        A(f"s_add_u32 s{S_T}, s{sreg}, {off}")
        A(f"s_load_dwordx16 s[{SP}:{SP+15}], s[{WSP}:{WSP+1}], s{S_T} glc")
        if extra is not None:
            A(f"s_add_u32 s{S_T}, s{extra[0]}, {extra[1]}")
            A(f"s_load_dwordx4 s[{SW}:{SW+3}], s[{WSP}:{WSP+1}], s{S_T} glc")
    def spoll_finish(A, sreg, off, extra=None):
        lp, ok, rt = newlab("sp"), newlab("sk"), newlab("sr")
        A.label(lp)
        A.wait_ds_all()
        regs_ = [SP + 2*i for i in range(8)] + ([SW, SW + 2] if extra is not None else [])
        for r in regs_:
            A(f"s_cmp_eq_u64 s[{r}:{r+1}], s[{NON}:{NON+1}]\ns_cbranch_scc0 {rt}")
        A(f"s_branch {ok}")
        A.label(rt)
        A(f"s_sleep {OPT.get('psleep', 1)}")
        spoll_issue(A, sreg, off, extra=extra)
        spin_guard(A, lp)
        A("s_waitcnt lgkmcnt(0)")
        A.label(ok)
    def publish(A, sreg, off):
        A(f"v_mov_b32 {v(vN)}, s{NON}\nv_mov_b32 {v(vN+1)}, s{NON+1}")
        A(f"s_add_u32 s{S_T}, s{sreg}, {off}")
        A("s_mov_b64 exec, 1")
        A.vmem(f"buffer_store_dwordx2 {v(vN,2)}, {v(vZ)}, s[{WS}:{WS+3}], s{S_T} offen sc1")
        A("s_mov_b64 exec, -1")
    def rot_base(A, sdst, srot, idx, mod, mult, sadd):
        A(f"s_add_u32 s{sdst}, s{srot}, {idx}")
        A(f"s_sub_u32 s{S_T2}, s{sdst}, {mod}")
        A(f"s_cmp_ge_u32 s{sdst}, {mod}")
        A(f"s_cselect_b32 s{sdst}, s{S_T2}, s{sdst}")
        A(f"s_mul_i32 s{sdst}, s{sdst}, {mult}")
        A(f"s_add_u32 s{sdst}, s{sdst}, s{sadd}")
    def dma(A, m0reg, m0off, sreg, soff, va, sr, flags=""):
        A(f"s_add_u32 m0, s{m0reg}, {m0off}")
        A(f"s_add_u32 s{S_T}, s{sreg}, {soff}")
        return A.vmem(f"buffer_load_dwordx4 {v(va)}, s[{sr}:{sr+3}], s{S_T} offen {flags} lds")
    vD = 32
    def poll(A, tag, sreg, off, mask=None, wide=False):
        lp, ok = newlab("pl"), newlab("pk")
        A(f"s_add_u32 s{S_T}, s{sreg}, {off}")
        if not wide: A(f"s_mov_b64 exec, {mask}")
        A.label(lp)
        if wide:
            A(f"buffer_load_dwordx4 {v(vD+12,4)}, {v(vFR)}, s[{WS}:{WS+3}], s{S_T} offen sc1")
            A(f"buffer_load_dwordx4 {v(vD+16,4)}, {v(vFR)}, s[{WS}:{WS+3}], s{S_T} offen offset:768 sc1")
            A("s_waitcnt vmcnt(0)")
            A(f"v_cmp_ne_u64 vcc, s[{NON}:{NON+1}], {v(vD+12,2)}")
            for i in range(1, 4):
                A(f"v_cmp_ne_u64 s[{SW}:{SW+1}], s[{NON}:{NON+1}], {v(vD+12+2*i,2)}")
                A(f"s_or_b64 vcc, vcc, s[{SW}:{SW+1}]")
            A(f"s_cmp_eq_u64 vcc, 0\ns_cbranch_scc1 {ok}")
        else:
            A(f"buffer_load_dwordx2 {v(vD+12,2)}, {v(vL8)}, s[{WS}:{WS+3}], s{S_T} offen sc1")
            A("s_waitcnt vmcnt(0)")
            A(f"v_cmp_ne_u64 vcc, s[{NON}:{NON+1}], {v(vD+12,2)}")
            A(f"s_cbranch_vccz {ok}")
        A("s_sleep 8")
        spin_guard(A, lp)
        A.label(ok)
        A("s_mov_b64 exec, -1")
        A.vm_done = A.vm
    S_XO, S_HO, S_QO, S_XH, S_M4, S_M8, S_M2, S_FLC, S_FO, S_WOB, S_W2B, S_RF, S_M1, S_CO, S_FH, S_FOo = range(48, 64)
    vXD, vHD0, vHD1, vQD, vW2D, vRS, vRD = 24, 25, 26, 27, 28, 29, 30
    QROW = 64 if REPACK else 2688
    def lgroup_rest(A):
        srd(A, QKV, KA+2, 448 * 2688)
        srd(A, WO, KA+4, 448 * 896)
        srd(A, W2, KA+12, 1792 * 896)
        srd(A, GW, KA+16, 896)
        srd(A, B2, KA+14, 896)
        srd(A, OUT, KA+18, 2048 * 896)
        srd(A, WS, KA+22, WS_BYTES)
        A(f"s_mov_b64 s[{WSP}:{WSP+1}], s[{KA+22}:{KA+23}]")
    def p2_scalars(A):
        A(f"v_mul_u32_u24 {v(t1)}, 896, {v(r8)}")
        A(f"v_and_b32 {v(t0)}, 1, {v(g)}")
        A(f"v_xor_b32 {v(t0)}, {v(t0)}, {v(l7)}")
        A(f"v_lshl_add_u32 {v(vW2D)}, {v(t0)}, 4, {v(t1)}")
        A(f"""s_lshl_b32 s{S_M4}, s{S_W}, 12
s_lshl_b32 s{S_T}, s{S_TT}, 8
s_add_u32 s{S_FLC}, s{S_T}, {WS_FL}
s_mul_i32 s{S_FO}, s{S_TT}, {4*73728}
s_lshl_b32 s{S_CO}, s{S_CT}, 7
s_mul_i32 s{S_WOB}, s{S_W}, {112*896}
s_add_u32 s{S_WOB}, s{S_WOB}, s{S_CO}
s_mul_i32 s{S_W2B}, s{S_W}, {448*896}
s_add_u32 s{S_W2B}, s{S_W2B}, s{S_CO}
s_mul_i32 s{S_T}, s{S_W}, {14*1024}
s_add_u32 s{S_FH}, s{S_FO}, s{S_T}
s_add_u32 s{S_FOo}, s{S_FO}, s{S_M4}
s_add_u32 s{S_FOo}, s{S_FOo}, {56*1024}
s_and_b32 s{S_T}, s{S_TT}, 3
s_mul_i32 s{S_T}, s{S_T}, 7
s_add_u32 s{S_T}, s{S_T}, 1
s_lshr_b32 s{S_T}, s{S_T}, 1
s_lshl_b32 s{S_T2}, s{S_CT}, 1
s_add_u32 s{S_T}, s{S_T}, s{S_T2}
s_sub_u32 s{S_T2}, s{S_T}, 14
s_cmp_ge_u32 s{S_T}, 14
s_cselect_b32 s{S_R2}, s{S_T2}, s{S_T}
s_add_u32 s{S_T}, s{S_TT}, s{S_CT}
s_and_b32 s{S_R3}, s{S_T}, 3""")

    A = L; last = {}
    A(f"v_mul_u32_u24 {v(t1)}, 896, {v(r8)}")
    A(f"v_xor_b32 {v(t0)}, {v(l7)}, {v(r8)}")
    A(f"v_lshl_add_u32 {v(vXD)}, {v(t0)}, 4, {v(t1)}")
    A(f"v_mul_u32_u24 {v(t1)}, 3584, {v(g)}")
    A(f"v_lshlrev_b32 {v(t0)}, 1, {v(g)}")
    A(f"v_xor_b32 {v(t0)}, {v(t0)}, {v(c16)}")
    A(f"v_lshl_add_u32 {v(vHD0)}, {v(t0)}, 4, {v(t1)}")
    A(f"v_xor_b32 {v(vHD1)}, 0x80, {v(vHD0)}")
    A(f"""s_lshl_b32 s{S_T}, s{S_HC}, 1
s_add_u32 s{S_T}, s{S_T}, s{S_RB}
s_mul_i32 s{S_T2}, s{S_T}, 37
s_lshr_b32 s{S_T2}, s{S_T2}, 8
s_mul_i32 s{S_T2}, s{S_T2}, 7
s_sub_u32 s{S_R1}, s{S_T}, s{S_T2}
s_mul_i32 s{SW}, s{S_W}, {32*3584}
s_add_u32 s{SW}, s{SW}, s{S_HW}
s_lshl_b32 s{S_T}, s{S_RB}, 7
s_lshl_b32 s{S_T2}, s{S_W}, 6
s_add_u32 s{S_T2}, s{S_T}, s{S_T2}
s_mul_i32 s{SW+1}, s{S_T2}, 896
s_lshl_b32 s{SW+2}, s{S_W}, 13""")
    if not OPT.get("rot", 1): A(f"s_mov_b32 s{S_R1}, 0")
    A("s_waitcnt lgkmcnt(0)")
    srd(A, W1, KA+8, 448 * 3584)
    srd(A, X, KA, 2048 * 896)
    srd(A, B1, KA+10, 3584)
    regs = {"HO": SW, "XO": SW + 1, "M8": SW + 2}
    def load(lu):
        k, c = lu; pb = page[lu] * PAGE
        if k == "H":
            rot_base(A, S_CB, S_R1, c, 7, 64*3584, regs["HO"])
            for hf in range(2):
                for gi in range(4): t = dma(A, regs["M8"], pb + hf*4096 + gi*1024, S_CB, (8*gi + 4*hf)*3584, vHD1 if gi & 1 else vHD0, W1)
        elif k == "X":
            rot_base(A, S_CB, S_R1, c, 7, 128, regs["XO"])
            for q in range(8): t = dma(A, regs["M8"], pb + q*1024, S_CB, q*8*896, vXD, X)
        elif k == "Q":
            rot_base(A, S_CB, S_R1, c, 7, 4096 if REPACK else 172032, S_QO)
            for p in range(3):
                for hf in range(2):
                    if REPACK: dma(A, S_M2, pb + p*4096 + hf*1024, S_CB, WS_QR + p*448*64 + 4*hf*64, vQD, WS, "sc1")
                    else: dma(A, S_M2, pb + p*4096 + hf*1024, S_CB, 896*p + 4*hf*2688, vQD, QKV)
            rot_base(A, S_CB, S_R1, c, 7, 128, S_XH)
            t = dma(A, S_M1, pb + 12288, S_CB, 0, vXD, X)
        last[lu] = t
    lb = newlab("w0")
    A(f"s_cmp_lg_u32 s{S_W}, 0\ns_cbranch_scc1 {lb}")
    A(f"s_mov_b32 m0, {L_BIAS}\ns_mov_b64 exec, 0xffff")
    A(f"buffer_load_dwordx4 {v(vFR)}, s[{B1}:{B1+3}], s{S_HW} offen lds")
    A("s_mov_b64 exec, -1")
    A.label(lb)
    load(seq[0]); load(seq[1]); STL(A, "X0 iss")
    common2(A)
    A("s_barrier")
    lgroup_rest(A)
    A(f"s_mov_b32 s{S_HO}, s{SW}\ns_mov_b32 s{S_XO}, s{SW+1}\ns_mov_b32 s{S_M8}, s{SW+2}")
    regs.update({"HO": S_HO, "XO": S_XO, "M8": S_M8})
    load(seq[2]); load(seq[3])
    p2_scalars(A)
    A(f"""s_mul_i32 s{S_QO}, s{S_W}, {32*QROW}
s_mul_i32 s{S_T2}, s{S_HC}, {3*448*64 if REPACK else 56}
s_add_u32 s{S_QO}, s{S_QO}, s{S_T2}
s_lshl_b32 s{S_T}, s{S_RB}, 7
s_sub_i32 s{S_T}, s{S_T}, 16
s_max_i32 s{S_T}, s{S_T}, 0
s_lshl_b32 s{S_T2}, s{S_W}, 3
s_add_u32 s{S_T}, s{S_T}, s{S_T2}
s_mul_i32 s{S_XH}, s{S_T}, 896
s_lshl_b32 s{S_M2}, s{S_W}, 11
s_lshl_b32 s{S_M1}, s{S_W}, 10""")
    A(f"v_and_b32 {v(t0)}, 3, {v(r16)}")
    A(f"v_lshl_add_u32 {v(t0)}, {v(g)}, 3, {v(t0)}")
    A(f"v_mul_u32_u24 {v(vQD)}, {QROW}, {v(t0)}")
    A(f"v_and_b32 {v(t0)}, 1, {v(g)}")
    A(f"v_lshlrev_b32 {v(t1)}, 1, {v(t0)}")
    A(f"v_xor_b32 {v(t1)}, {v(t1)}, {v(l3)}")
    A(f"v_lshl_add_u32 {v(vQD)}, {v(t1)}, 4, {v(vQD)}")
    posted = [0]
    def post_upto(n):
        if n <= posted[0]: return
        A.wait_vm(last[seq[n-1]])
        lds_post(A, 0, n)
        posted[0] = n
        STL(A, f"post {seq[n-1]}")
    post_upto(2)
    LAG = OPT.get("lag", 3)
    released = [-1]; issued_n = [4]; relpre = {}
    def wait_release(A, r, slow=None):
        if r > released[0]:
            lds_wait_min(A, 16, r + 1, relpre.pop("t", None), slow=slow)
            released[0] = r
    def slow_post():
        steps = []
        for m in range(posted[0] + 1, issued_n[0] + 1):
            if seq[m-1][0] == "H": continue
            def st(m=m):
                A.wait_vm(last[seq[m-1]])
                lds_post(A, 0, m)
            steps.append(st)
        return steps
    for n in range(4, NL):
        lu = seq[n]
        if lu == ("Q", 0):
            post_upto(n)
            nonce_check(A, last)
            if REPACK:
                A(f"s_mov_b32 s{SW+2}, {WS_FL + 16384}")
                poll(A, "R", SW + 2, 0, wide=True); STL(A, "poll R ok")
            lb = newlab("w0")
            A(f"s_cmp_lg_u32 s{S_W}, 0\ns_cbranch_scc1 {lb}")
            A(f"s_lshl_b32 s{S_T}, s{S_R1}, 7")
            A(f"v_add_u32 {v(t0)}, s{S_T}, {v(vFR)}")
            A(f"v_subrev_u32 {v(t1)}, 896, {v(t0)}")
            A(f"v_min_u32 {v(t0)}, {v(t0)}, {v(t1)}")
            A(f"s_mov_b32 m0, {L_GATE}\ns_mov_b32 exec_hi, 0xffffff")
            A(f"buffer_load_dwordx4 {v(t0)}, s[{GW}:{GW+3}], 0 offen lds")
            A("s_mov_b32 exec_hi, -1")
            A.label(lb)
        wait_release(A, after[lu], slow_post)
        if n + 1 < NL and after[seq[n+1]] > released[0] and seq[n+1] != ("Q", 0): relpre["t"] = lds_flag_read(A, 16)
        load(lu); issued_n[0] = n + 1
        if n == 9: nonce_load(A, last)
        m = n + 1 - LAG
        if m >= 2 and seq[m-1][0] != "H": post_upto(m)
    post_upto(NL)
    A(f"s_branch {kname}_P2")

    A = S; last = {}
    A.label(f"{kname}_S")
    common2(A)
    A("s_waitcnt lgkmcnt(0)")
    lb = newlab("n0")
    A(f"s_cmp_lg_u32 s2, 0\ns_cbranch_scc1 {lb}\ns_cmp_lg_u32 s{S_W}, 2\ns_cbranch_scc1 {lb}")
    A(f"s_memrealtime s[{NON}:{NON+1}]\ns_waitcnt lgkmcnt(0)\ns_or_b32 s{NON}, s{NON}, 1")
    A(f"v_mov_b32 {v(vN)}, s{NON}\nv_mov_b32 {v(vN+1)}, s{NON+1}")
    A("s_mov_b64 exec, 1")
    A(f"global_store_dwordx2 {v(vZ)}, {v(vN,2)}, s[{DBG}:{DBG+1}] sc1")
    A("s_mov_b64 exec, -1")
    A.label(lb)
    srd(A, W1, KA+8, 448 * 3584)
    srd(A, X, KA, 2048 * 896)
    lgroup_rest(A)
    A(f"s_getpc_b64 s[{SW}:{SW+1}]")
    A.label(f"{kname}_pc")
    A(f"s_sub_u32 s{SW}, s{SW}, {kname}_pc-{kname}\ns_subb_u32 s{SW+1}, s{SW+1}, 0")
    A(f"s_bfe_u32 s{S_T}, s2, 0x40003\ns_lshl_b32 s{S_T}, s{S_T}, 1\ns_and_b32 s{S_T2}, s{S_W}, 1\ns_add_u32 s{S_T}, s{S_T}, s{S_T2}\ns_lshl_b32 s{S_T}, s{S_T}, 10")
    A(f"v_add_u32 {v(t0)}, s{S_T}, {v(vFR)}")
    A(f"v_min_u32 {v(t0)}, {kname}_end-{kname}-16, {v(t0)}")
    A.vmem(f"global_load_dwordx4 {v(vD,4)}, {v(t0)}, s[{SW}:{SW+1}]")
    A("s_barrier")
    p2_scalars(A)
    vSPa, vSPb = 26, 27
    A(f"v_lshlrev_b32 {v(vSPa)}, 7, {v(vL)}")
    if OPT.get("m1", 1):
        srd(A, X, 100, 2048 * 896) if False else None
        A(f"s_and_b32 s{S_T}, s2, 1\ns_mul_i32 s{S_T}, s{S_T}, {1024*896}\ns_lshr_b32 s{S_T2}, s2, 3\ns_mul_i32 s{S_CB}, s{S_T2}, {224*128}\ns_add_u32 s{S_T}, s{S_T}, s{S_CB}")
        A(f"s_and_b32 s{S_CB}, s{S_W}, 1\ns_mul_i32 s{S_CB}, s{S_CB}, {112*128}\ns_add_u32 s{S_T}, s{S_T}, s{S_CB}")
        A.vmem(f"buffer_load_dword {v(vD)}, {v(vSPa)}, s[{X}:{X+3}], s{S_T} offen")
        A(f"s_add_u32 s{S_T}, s{S_T}, 8192\ns_mov_b32 exec_hi, 0xffff")
        A.vmem(f"buffer_load_dword {v(vD)}, {v(vSPa)}, s[{X}:{X+3}], s{S_T} offen")
        A("s_mov_b32 exec_hi, -1")
        A(f"v_mul_u32_u24 {v(t0)}, 9363, {v(vL)}")
        A(f"v_lshrrev_b32 {v(t0)}, 16, {v(t0)}")
        A(f"v_mul_u32_u24 {v(t0)}, {3584 - 896}, {v(t0)}")
        A(f"v_add_u32 {v(vSPb)}, {v(t0)}, {v(vSPa)}")
        A(f"s_lshl_b32 s{S_T2}, s{S_T2}, 1\ns_and_b32 s{S_CB}, s{S_W}, 1\ns_add_u32 s{S_T2}, s{S_T2}, s{S_CB}\ns_mul_i32 s{S_T}, s{S_T2}, {7*3584}")
        A(f"s_bfe_u32 s{S_CB}, s2, 0x20001\ns_mul_i32 s{S_CB}, s{S_CB}, 896\ns_add_u32 s{S_T}, s{S_T}, s{S_CB}\ns_mov_b32 exec_hi, 0x1ffff")
        A.vmem(f"buffer_load_dword {v(vD)}, {v(vSPb)}, s[{W1}:{W1+3}], s{S_T} offen")
        A("s_mov_b32 exec_hi, -1")
    RGs = 96
    if REPACK:
        A(f"v_bfe_u32 {v(t0)}, {v(vL)}, 2, 1")
        A(f"v_mul_u32_u24 {v(vRS)}, 2688, {v(t0)}")
        A(f"v_mul_u32_u24 {v(t1)}, 56, {v(r8)}")
        A(f"v_add_u32 {v(vRS)}, {v(vRS)}, {v(t1)}")
        A(f"v_lshl_add_u32 {v(vRS)}, {v(l3)}, 4, {v(vRS)}")
        A(f"v_mul_u32_u24 {v(vRD)}, {3*448*64}, {v(r8)}")
        A(f"v_lshl_add_u32 {v(vRD)}, {v(l7)}, 4, {v(vRD)}")
        A(f"s_cmp_ge_u32 s2, 224\ns_cselect_b32 s{S_T}, 0x40000000, 0")
        A(f"v_or_b32 {v(vRS)}, s{S_T}, {v(vRS)}")
        A(f"v_or_b32 {v(vRD)}, s{S_T}, {v(vRD)}")
        A(f"s_mul_i32 s{S_T}, s2, {2*2688}\ns_and_b32 s{S_T2}, s{S_W}, 1\ns_mul_i32 s{S_T2}, s{S_T2}, 1344\ns_add_u32 s{S_T}, s{S_T}, s{S_T2}")
        for k in range(3):
            last["RL"] = A.vmem(f"buffer_load_dwordx4 {v(RGs+4*k,4)}, {v(vRS)}, s[{QKV}:{QKV+3}], s{S_T} offen offset:{448*k}")
        nonce_load(A, last)
        dst = [(jj >> 1)*448*64 + (jj & 1)*8*3*448*64 for jj in range(6)]
        A(f"s_lshl_b32 s{S_CB}, s2, 7\ns_add_u32 s{S_CB}, s{S_CB}, {WS_QR}\ns_and_b32 s{SW+2}, s{S_W}, 1")
        A.wait_vm(last["RL"])
        for k in range(3):
            A(f"s_mul_i32 s{S_T}, s{SW+2}, {dst[3+k]-dst[k]}\ns_add_u32 s{S_T}, s{S_T}, {dst[k]}\ns_add_u32 s{S_T}, s{S_T}, s{S_CB}")
            A.vmem(f"buffer_store_dwordx4 {v(RGs+4*k,4)}, {v(vRD)}, s[{WS}:{WS+3}], s{S_T} offen sc1")
        lb = newlab("nw")
        A(f"s_cmp_lg_u32 s{S_W}, 3\ns_cbranch_scc1 {lb}")
        nonce_fetch(A)
        A.label(lb)
        A.wait_vm_all()
        lds_post(A, 48, 1)
        nonce_check(A, last)
        lb = newlab("rp")
        A(f"s_cmp_lg_u32 s{S_W}, 2\ns_cbranch_scc1 {lb}\ns_cmp_ge_u32 s2, 224\ns_cbranch_scc1 {lb}")
        sv = (A.vm, A.vm_done, A.ds, A.ds_done)
        lds_wait_min(A, 48, 1)
        A(f"s_lshl_b32 s{S_RF}, s2, 3\ns_add_u32 s{S_RF}, s{S_RF}, {WS_FL + 16384}")
        publish(A, S_RF, 0)
        A.vm, A.vm_done, A.ds, A.ds_done = sv
        A.label(lb)
        STL(A, "R pub")
    else:
        A(f"s_lshl_b32 s{S_T}, s2, 1\ns_and_b32 s{S_T2}, s{S_W}, 1\ns_add_u32 s{S_T}, s{S_T}, s{S_T2}\ns_mul_i32 s{S_T}, s{S_T}, 2432")
        if OPT.get("sweep", 1):
            for k in range(3): A.vmem(f"buffer_load_dwordx4 {v(vD,4)}, {v(vFR)}, s[{QKV}:{QKV+3}], s{S_T} offen offset:{1024*k}")
        lb = newlab("nw")
        A(f"s_cmp_lg_u32 s{S_W}, 3\ns_cbranch_scc1 {lb}")
        nonce_fetch(A)
        A.label(lb)
        nonce_check(A, last)
    if OPT.get("sweep", 0):
        A(f"s_lshl_b32 s{S_CB}, s2, 1\ns_and_b32 s{S_T2}, s{S_W}, 1\ns_add_u32 s{S_CB}, s{S_CB}, s{S_T2}\ns_mul_i32 s{S_T}, s{S_CB}, 3200")
        for k in range(4):
            if k == 3: A("s_mov_b64 exec, 0xff")
            A.vmem(f"buffer_load_dwordx4 {v(vD,4)}, {v(vFR)}, s[{W2}:{W2+3}], s{S_T} offen offset:{1024*k}")
        A(f"s_mov_b64 exec, -1\ns_mul_i32 s{S_T}, s{S_CB}, 896\ns_mov_b32 exec_hi, 0xffffff")
        A.vmem(f"buffer_load_dwordx4 {v(vD,4)}, {v(vFR)}, s[{WO}:{WO+3}], s{S_T} offen")
        A("s_mov_b32 exec_hi, -1")
    if OPT.get("l2w", 1):
        lds_wait_min(A, 0, OPT.get("l2at", 14))
        A(f"s_lshr_b32 s{S_T}, s2, 3\ns_lshl_b32 s{S_T}, s{S_T}, 1\ns_and_b32 s{S_T2}, s{S_W}, 1\ns_add_u32 s{S_T}, s{S_T}, s{S_T2}")
        A(f"s_mul_i32 s{S_CB}, s{S_T}, 25088\ns_mul_i32 s{S_T2}, s{S_T}, 6272")
        for k in range(4):
            if k: A(f"s_add_u32 s{S_CB}, s{S_CB}, 8192")
            if k == 3: A("s_mov_b64 exec, 0xf")
            A.vmem(f"buffer_load_dword {v(vD)}, {v(vSPa)}, s[{W2}:{W2+3}], s{S_CB} offen")
        A("s_mov_b32 exec_lo, -1\ns_mov_b32 exec_hi, 0x1ffff")
        A.vmem(f"buffer_load_dword {v(vD)}, {v(vSPa)}, s[{WO}:{WO+3}], s{S_T2} offen")
        A("s_mov_b64 exec, -1")
        STL(A, "l2w iss")
    A.wait_vm_all()

    A = Q; last = {}
    A.label(f"{kname}_P2")
    A(f"s_cmp_ge_u32 s{S_CT}, 7\ns_cbranch_scc1 {kname}_lfin")
    released[0] = -1; relpre.clear()
    NP2 = OPT.get("np2", 7)
    def p2page(i): return p2free[i % NP2][1]
    vPA = 32; vG = 40; vB2 = 48
    WB = 64; RG = 96; NFS = 6
    ACB = RG + 16 * NFS
    def fa(i, j): return RG + 16 * (i % NFS) + 4 * j
    def job_W(i):
        if i < NP2: wait_release(A, p2free[i][0])
        if i < 14: rot_base(A, S_CB, S_R2, i, 14, 32*896, S_W2B)
        else: rot_base(A, S_CB, S_R3, i - 14, 4, 28*896, S_WOB)
        for q in range(4):
            last[("W", i)] = dma(A, S_M4, p2page(i)*PAGE + q*1024, S_CB, 8*q*896, vW2D, W2 if i < 14 else WO)
    def job_F(i):
        if i < 14: rot_base(A, S_CB, S_R2, i, 14, 1024, S_FH)
        else: rot_base(A, S_CB, S_R3, i - 14, 4, 1024, S_FOo)
        for j in range(4):
            if j: A(f"s_add_u32 s{S_CB}, s{S_CB}, 73728")
            last[("F", i)] = A.vmem(f"buffer_load_dwordx4 {v(fa(i,j),4)}, {v(vFR)}, s[{WS}:{WS+3}], s{S_CB} offen sc1")
    NW0 = OPT.get("nw0", 3)
    if OPT.get("wat", 0): wait_release(A, OPT["wat"] - 1)
    for i in range(NW0): job_W(i)
    STL(A, "W0 iss")
    A(f"v_bfe_u32 {v(t0)}, {v(vL)}, 3, 1")
    A(f"v_lshl_add_u32 {v(t0)}, {v(l3)}, 1, {v(t0)}")
    A(f"v_lshlrev_b32 {v(t1)}, 7, {v(r16)}")
    A(f"v_lshl_add_u32 {v(t1)}, {v(t0)}, 4, {v(t1)}")
    S_FLW = S_RF
    A(f"s_lshl_b32 s{S_FLW}, s{S_W}, 6\ns_add_u32 s{S_FLW}, s{S_FLW}, s{S_FLC}")
    spoll_issue(A, S_FLW, 0); spoll_finish(A, S_FLW, 0); STL(A, "poll H ok")
    if OPT.get("prio2", 0) == 2: A("s_setprio 1")
    fi = 0; wi = NW0
    for i in range(NFS - 1):
        job_F(i); fi += 1
    A(f"v_add_u32 {v(vPA)}, s{S_M4}, {v(t1)}")
    A(f"v_xor_b32 {v(vPA+1)}, 16, {v(vPA)}")
    for z in (1, 2):
        for i in range(2): A(f"v_add_u32 {v(vPA+2*z+i)}, {z*65536}, {v(vPA+i)}")
    A(f"v_lshlrev_b32 {v(t1)}, 5, {v(g)}")
    def aw2(buf, t): return WB + 16*buf + 4*t
    rdt = {}
    def reads2(i):
        pg = p2page(i); z = pg // 4; rel = (pg % 4) * PAGE
        out = []
        for t in range(4):
            for hf in range(2):
                def at(t=t, hf=hf):
                    rdt[(i, t)] = A.dsop(f"ds_read_b64_tr_b16 {v(aw2(i&1,t)+2*hf,2)}, {v(vPA+2*z+(t>>1))} offset:{rel + hf*2048 + 8*(t&1)}")
                out.append(at)
        return out
    def small_loads():
        A(f"v_lshlrev_b32 {v(t0)}, 2, {v(c16)}")
        A(f"s_lshl_b32 s{S_T}, s{S_TT}, 8\ns_add_u32 s{S_T}, s{S_T}, {WS_G}")
        for j in range(4):
            A.vmem(f"buffer_load_dword {v(vG+j)}, {v(t0)}, s[{WS}:{WS+3}], s{S_T} offen offset:{64*j} sc1")
        A.vmem(f"buffer_load_dwordx4 {v(vB2+8,4)}, {v(t1)}, s[{B2}:{B2+3}], s{S_CO} offen")
        last["SM"] = A.vmem(f"buffer_load_dwordx4 {v(vB2+12,4)}, {v(t1)}, s[{B2}:{B2+3}], s{S_CO} offen offset:16")
    GX = (S_FLC, 8192 + 32)
    def poll_issue(): spoll_issue(A, S_FLW, 8192, extra=GX)
    def poll_finish():
        spoll_finish(A, S_FLW, 8192, extra=GX); STL(A, "poll O ok")
    A.wait_vm(last[("W", 0)])
    for at in reads2(0): at()
    for i in range(18):
        if fi < 18 and fi - NFS < i:
            if fi == 14: poll_finish(); small_loads()
            job_F(fi); fi += 1
        if wi < 18 and wi - NP2 < i:
            job_W(wi); wi += 1
        if i == OPT.get("pollO", 7): poll_issue()
        rd = []
        if i + 1 < 18:
            while wi <= i + 1:
                job_W(wi); wi += 1
            A.wait_vm(last[("W", i + 1)])
            rd = reads2(i + 1)
        A.wait_vm(last[("F", i)])
        STL(A, f"p2 step {i} ")
        if i == 14:
            A.wait_vm(last["SM"])
            for j in range(4): A(f"v_sub_f32 {v(vG+4+j)}, 1.0, {v(vG+j)}")
            for k in range(7):
                A(f"v_lshlrev_b32 {v(vB2+2*k)}, 16, {v(vB2+8+k)}")
                A(f"v_and_b32 {v(vB2+2*k+1)}, 0xffff0000, {v(vB2+8+k)}")
            A(f"v_lshlrev_b32 {v(vB2+14)}, 16, {v(vB2+15)}")
            A(f"v_and_b32 {v(vB2+15)}, 0xffff0000, {v(vB2+15)}")
            for r in range(0, 16, 2):
                for j in range(4):
                    A(f"v_pk_mul_f32 {v(ACB+16*j+r,2)}, {v(ACB+16*j+r,2)}, {v(vG+4+j-(j&1),2)} op_sel:[0,{j&1}] op_sel_hi:[1,{j&1}]")
            A("s_nop 1")
        if i == 17: break
        for t in range(4):
            A.wait_ds(rdt[(i, t)])
            for j in range(4):
                d = v(ACB + 16*j + 4*t, 4)
                A(f"v_mfma_f32_16x16x32_bf16 {d}, {v(aw2(i&1,t),4)}, {v(fa(i,j),4)}, {'0' if i == 0 else d}")
                if rd: rd.pop(0)()
    assert fi == 18 and wi == 18
    RP = [p2page(k) for k in range(3)]
    assert all(p2page(17) != p for p in RP)
    RV = RG if 17 % NFS >= 4 else RG + 32
    RV = RG
    for k in range(3): A(f"v_add_u32 {v(vPA+k)}, {RP[k]*PAGE}, {v(vFR)}")
    for k in range(3): A(f"v_add_u32 {v(vPA+3+k)}, s{S_M4}, {v(vPA+k)}")
    A.wait_ds_all()
    for w in range(4):
        if w < 3: A(f"s_cmp_lg_u32 s{S_W}, {w}\ns_cbranch_scc1 {kname}_w{w+1}")
        order = [(w + 1) & 3, (w + 2) & 3, (w + 3) & 3, w]
        wr = deque()
        for n, j in enumerate(order):
            for t in range(4):
                d = v(ACB + 16*j + 4*t, 4)
                A(f"v_mfma_f32_16x16x32_bf16 {d}, {v(aw2(1,t),4)}, {v(fa(17,j),4)}, {d}")
                if n >= 2 and wr: A(wr.popleft())
            if n < 3:
                k = (j - w - 1) & 3
                for t in range(4): wr.append(f"ds_write_b128 {v(vPA+3+k)}, {v(ACB+16*j+4*t,4)} offset:{t*1024}")
        A.nop(4)
        while wr: A(wr.popleft())
        A.nop(2)
        for r in range(16): A(f"v_fma_f32 {v(RV+r)}, {v(vG+4+w)}, {v(vB2+r)}, {v(ACB+16*w+r)}")
        A("s_waitcnt lgkmcnt(0)\ns_barrier")
        for k in range(3):
            srcw = (w - k - 1) & 3
            for t in range(4):
                A(f"ds_read_b128 {v(RV+16+16*k+4*t,4)}, {v(vPA+k)} offset:{srcw*4096 + t*1024}")
        if w < 3:
            A(f"s_branch {kname}_wd")
            A.label(f"{kname}_w{w+1}")
    A.label(f"{kname}_wd")
    A(f"v_mul_u32_u24 {v(t0)}, 896, {v(c16)}")
    A(f"v_add_u32 {v(t0)}, {v(t0)}, {v(t1)}")
    A(f"""s_lshl_b32 s{S_T}, s{S_TT}, 6
s_lshl_b32 s{S_T2}, s{S_W}, 4
s_add_u32 s{S_T}, s{S_T}, s{S_T2}
s_mul_i32 s{S_T}, s{S_T}, 896
s_add_u32 s{S_T}, s{S_T}, s{S_CO}""")
    for k in range(3):
        A(f"s_waitcnt lgkmcnt({8-4*k})")
        for r in range(0, 16, 2):
            A(f"v_pk_add_f32 {v(RV+r,2)}, {v(RV+r,2)}, {v(RV+16+16*k+r,2)}")
    for r in range(8):
        A(f"v_cvt_pk_bf16_f32 {v(WB+r)}, {v(RV+2*r)}, {v(RV+2*r+1)}")
    A(f"buffer_store_dwordx4 {v(WB,4)}, {v(t0)}, s[{OUT}:{OUT+3}], s{S_T} offen")
    A(f"buffer_store_dwordx4 {v(WB+4,4)}, {v(t0)}, s[{OUT}:{OUT+3}], s{S_T} offen offset:16")
    STL(A, "end")
    if OPT.get("minT", 0):
        A.label("Lhold")
        A(f"s_memrealtime s[72:73]\ns_waitcnt lgkmcnt(0)\ns_sub_u32 s72, s72, s{NON}\ns_cmp_lt_u32 s72, {OPT['minT']}\ns_cbranch_scc1 Lhold")
    A.label(f"{kname}_lfin")
    STL.dump(A, WS, S_W8, vL, vT)
    A("s_endpgm")

    A = C; last = {}
    A.label(f"{kname}_C")
    ST = lambda what: STC(A, what)
    S_FR, S_FLP, S_GT, S_OS, S_P = 48, 49, 50, 51, 52
    S_HS = 54
    vHA, vXA, vXO, vFRa, vFRb, vGA = 24, 28, 30, 32, 33, 34
    XT = 36
    vQA, vXH = 36, 45
    XR = 52; ACC = 164; WR = 228; NWR = 7
    def ax(ks, tb): return XR + 4 * (2 * ks + tb)
    def axa(ks, jj): return ax(ks, jj) if jj < 2 else XT + 8 * (ks & 1) + 4 * (jj - 2)
    def ach(jj, bb): return ACC + 4 * (4 * jj + bb)
    def acq(tb, t): return ACC + 4 * (6 * tb + t)
    ACC_HL = ACC + 48
    ACG = ACC + 52
    vBIAS = XR + 80; vRAW = XR + 64
    common2(A)
    A(f"v_lshl_add_u32 {v(t0)}, {v(vL)}, 2, {v(vFL)}")
    A(f"v_mov_b32 {v(t1)}, 0")
    A(f"s_mov_b64 vcc, 0x300c")
    A(f"v_cndmask_b32 {v(t1)}, {v(t1)}, -1, vcc")
    A("s_mov_b64 exec, 0x3ffff")
    A(f"ds_write_b32 {v(t0)}, {v(t1)}")
    A("s_mov_b64 exec, -1")
    A("s_waitcnt lgkmcnt(0)")
    A("s_barrier")
    if OPT.get("prio", 1): A("s_setprio 2")
    A(f"v_lshlrev_b32 {v(t1)}, 8, {v(r16)}")
    A(f"v_lshl_add_u32 {v(t1)}, {v(l3)}, 3, {v(t1)}")
    A(f"v_and_b32 {v(t0)}, 7, {v(r16)}")
    A(f"v_lshl_add_u32 {v(vHA)}, {v(t0)}, 5, {v(t1)}")
    A(f"s_and_b32 s{S_T}, s{S_W}, 1\ns_lshl_b32 s{S_T}, s{S_T}, 7")
    A(f"v_xor_b32 {v(vHA)}, s{S_T}, {v(vHA)}")
    for b in range(1, 4): A(f"v_xor_b32 {v(vHA+b)}, {32*b}, {v(vHA)}")
    A(f"v_xor_b32 {v(t0)}, {v(g)}, {v(l7)}")
    A(f"v_lshlrev_b32 {v(t1)}, 7, {v(c16)}")
    A(f"v_lshl_add_u32 {v(t1)}, {v(t0)}, 4, {v(t1)}")
    A(f"s_lshl_b32 s{S_T}, s{S_W}, 12\ns_add_u32 s{S_T2}, s{S_T}, {4*PAGE}")
    A(f"v_add_u32 {v(vXA)}, s{S_T2}, {v(t1)}")
    A(f"v_xor_b32 {v(vXA+1)}, 64, {v(vXA)}")
    A(f"v_xor_b32 {v(vXO)}, 0x1000, {v(vXA)}")
    A(f"v_xor_b32 {v(vXO+1)}, 64, {v(vXO)}")
    A(f"v_lshlrev_b32 {v(vGA)}, 4, {v(g)}")
    A(f"v_add_u32 {v(vGA)}, {L_GATE}, {v(vGA)}")
    A(f"s_and_b32 s{S_T}, s{S_W}, 1\ns_lshl_b32 s{S_T}, s{S_T}, 7\ns_add_u32 s{S_T}, s{S_T}, {L_BIAS}")
    A(f"v_lshlrev_b32 {v(WR)}, 3, {v(g)}")
    A(f"v_add_u32 {v(WR)}, s{S_T}, {v(WR)}")
    A(f"v_and_b32 {v(t0)}, 1, {v(c16)}")
    A(f"v_cmp_eq_u32 s[{MP}:{MP+1}], 1, {v(t0)}")
    A(f"v_lshl_add_u32 {v(t1)}, {v(g)}, 2, {v(t0)}")
    A(f"v_cmp_le_u32 s[{MA}:{MA+1}], {v(t1)}, {v(c16)}")
    A(f"v_add_u32 {v(t1)}, 2, {v(t1)}")
    A(f"v_cmp_le_u32 s[{MB}:{MB+1}], {v(t1)}, {v(c16)}")
    srd(A, WS, KA+22, WS_BYTES)
    A(f"""s_or_b32 s{S_T}, s{S_RB}, s{S_W}
s_cmp_eq_u32 s{S_T}, 0
s_cselect_b32 s{MFIRST}, -1, 0
s_cselect_b32 s{MFIRST+1}, -1, 0
s_lshl_b32 s{S_T}, s{S_RB}, 3
s_lshl_b32 s{S_T2}, s{S_W}, 1
s_add_u32 s{S_T}, s{S_T}, s{S_T2}
s_mul_i32 s{S_FR}, s{S_T}, {72*1024}
s_lshl_b32 s{S_GT}, s{S_T}, 6
s_add_u32 s{S_GT}, s{S_GT}, {WS_G}
s_xor_b32 s{S_T}, s{S_T}, 2
s_mul_i32 s{S_P}, s{S_T}, {72*1024}
s_lshl_b32 s{S_T}, s{S_HW}, 4
s_and_b32 s{S_T2}, s{S_W}, 1
s_lshl_b32 s{S_T2}, s{S_T2}, 11
s_add_u32 s{S_T}, s{S_T}, s{S_T2}
s_add_u32 s{S_HS}, s{S_FR}, s{S_T}
s_add_u32 s{S_HS+1}, s{S_HS}, 73728
s_add_u32 s{S_HS+2}, s{S_P}, s{S_T}
s_add_u32 s{S_HS+3}, s{S_HS+2}, 73728
s_and_b32 s{S_T}, s{S_HC}, 3
s_lshl_b32 s{S_T}, s{S_T}, 1
s_and_b32 s{S_T2}, s{S_W}, 1
s_add_u32 s{S_T}, s{S_T}, s{S_T2}
s_cmp_eq_u32 s{S_T}, 6
s_cselect_b32 s{S_T2}, 0x40000000, 0""")
    A(f"v_or_b32 {v(vFRa)}, s{S_T2}, {v(vFR)}")
    A(f"s_cmp_eq_u32 s{S_T}, 5\ns_cselect_b32 s{S_T2}, 0x40000000, 0")
    A(f"v_or_b32 {v(vFRb)}, s{S_T2}, {v(vFR)}")
    A(f"""s_lshl_b32 s{S_T}, s{S_HC}, 10
s_add_u32 s{S_OS}, s{S_FR}, s{S_T}
s_add_u32 s{S_OS}, s{S_OS}, {56*1024}
s_lshl_b32 s{S_T}, s{S_RB}, 1
s_lshr_b32 s{S_T2}, s{S_W}, 1
s_add_u32 s{S_T}, s{S_T}, s{S_T2}
s_lshl_b32 s{S_T}, s{S_T}, 4
s_add_u32 s{S_T}, s{S_T}, s{S_HC}
s_lshl_b32 s{S_T}, s{S_T}, 1
s_and_b32 s{S_T2}, s{S_W}, 1
s_add_u32 s{S_T}, s{S_T}, s{S_T2}
s_lshl_b32 s{S_T}, s{S_T}, 3
s_add_u32 s{S_FLP}, s{S_T}, {WS_FL}""")
    ST("pro done")
    busy = [False]; cold = []
    def acquire(u):
        lds_wait_min(A, 0, max(SEQ[lu] for lu in NEED[u]) + 1)
        ST(f"acq{u}")
    def acquire_atoms(u):
        val = max(SEQ[lu] for lu in NEED[u]) + 1
        sl, ok = newlab("as"), newlab("ak")
        tk = {}
        def a0(): tk["t"] = lds_flag_read(A, 0); busy[0] = True
        def a1(): A.wait_ds(tk["t"]); A(f"v_min_u32 {v(vFV)}, {v(vFV)}, {v(vFV+1)}\ns_nop 0")
        def a3(): A(f"v_readfirstlane_b32 s{S_T2}, {v(vFV)}\ns_cmp_ge_u32 s{S_T2}, {val}\ns_cbranch_scc0 {sl}"); A.label(ok); ST(f"acq{u}"); busy[0] = False
        cold.append(f"""{sl}:
    s_sleep 1
    ds_read_b128 {v(vFV,4)}, {v(vFL)}
    s_waitcnt lgkmcnt(0)
    v_min_u32 {v(vFV)}, {v(vFV)}, {v(vFV+1)}
    s_add_u32 s{S_SPIN}, s{S_SPIN}, 1
    v_readfirstlane_b32 s{S_T2}, {v(vFV)}
    s_cmp_ge_u32 s{S_T2}, {val}
    s_cbranch_scc1 {ok}
    s_cmp_lt_u32 s{S_SPIN}, 0x200000
    s_cbranch_scc1 {sl}
    s_branch {ok}""")
        return a0, [a1, a3]
    def release(u): lds_post(A, 16, UIDX[u] + 1)
    class Frag:
        def __init__(self, unit, reads, mf): self.unit = unit; self.reads = reads; self.mf = mf
    done = set()
    def run_frags(frags, LA, hooks={}, per_gap=2, late=None):
        n = len(frags); tk = [None]*n
        state = run_frags.seq
        q = deque(); early = {}
        for i in range(n):
            if frags[i].unit not in done and (i == 0 or frags[i-1].unit != frags[i].unit) and i >= 3:
                early[i] = acquire_atoms(frags[i].unit)
        def enqueue(i):
            f = frags[i]
            if i + 3 in early: q.append((None, early[i+3][0]))
            if f.unit not in done:
                done.add(f.unit)
                if i in early:
                    for at in early[i][1]: q.append((None, at))
                else: q.append((None, lambda u=f.unit: acquire(u)))
            rl = f.reads(WR + 4*((state + i) % NWR))
            for k, ins in enumerate(rl):
                def at(ins=ins, i=i): tk[i] = A.dsop(ins)
                q.append((i if k == len(rl) - 1 else None, at))
        enq = 0; emitted = -1
        for i in range(n):
            while enq < min(n, i + LA + 1):
                enqueue(enq); enq += 1
            while emitted < i:
                fi_, at = q.popleft(); at()
                if fi_ is not None: emitted = fi_
            ms = frags[i].mf(WR + 4*((state + i) % NWR))
            if ms: A.wait_ds(tk[i])
            for ins in ms:
                A(ins)
                for _ in range(per_gap):
                    if q:
                        fi_, at = q.popleft(); at()
                        if fi_ is not None: emitted = fi_
            if (i == n - 1 or frags[i+1].unit != frags[i].unit) and frags[i].unit != late:
                if not ms: A.wait_ds(tk[i])
                q.appendleft((None, lambda u=frags[i].unit: release(u)))
            if i in hooks:
                pass
                hooks[i]()
        while q: q.popleft()[1]()
        run_frags.seq = (state + n) % NWR
    run_frags.seq = 0
    def trr(dst, va, off): return f"ds_read_b64_tr_b16 {v(dst,2)}, {v(va)} offset:{off}"
    acquire(("A", 0)); done.add(("A", 0))
    for b in range(4): tkb = A.dsop(f"ds_read_b64 {v(vRAW+2*b,2)}, {v(WR)} offset:{32*b}")
    A.wait_ds(tkb)
    for i in range(8):
        A(f"v_lshlrev_b32 {v(vBIAS+2*i)}, 16, {v(vRAW+i)}")
        A(f"v_and_b32 {v(vBIAS+2*i+1)}, 0xffff0000, {v(vRAW+i)}")
    fr = []
    for ks in range(14):
        c, s2 = ks // 2, ks % 2
        for b in range(4):
            def reads(r, ks=ks, c=c, s2=s2, b=b):
                out = []
                if b == 0:
                    for jj in range(4):
                        out.append(f"ds_read_b128 {v(axa(ks,jj),4)}, {v((vXA if jj < 2 else vXO)+s2)} offset:{(page[('X',c)]-4)*PAGE + (jj&1)*2048}")
                return out + [trr(r + 2*hf, vHA + b, page[("H", c)]*PAGE + (32*s2 + 16*hf)*256) for hf in range(2)]
            def mf(r, ks=ks, b=b):
                return [f"v_mfma_f32_16x16x32_bf16 {v(ach(jj,b),4)}, {v(r,4)}, {v(axa(ks,jj),4)}, {v(ach(jj,b),4) if ks else v(vBIAS+4*b,4)}" for jj in range(4)]
            fr.append(Frag(("A", c), reads, mf))
    run_frags(fr, 4, hooks={32: lambda: nonce_load(A, last)}, late=("A", 6) if OPT.get("lateA6", 1) else None)
    ST("A done")
    for pp in range(2):
        for jj in range(4):
            for bb in (2*pp, 2*pp + 1):
                r = ach(jj, bb)
                for i in range(4): A(f"v_max_f32 {v(r+i)}, 0, {v(r+i)}")
                A(f"v_pk_mul_f32 {v(r,2)}, {v(r,2)}, {v(r,2)}")
                A(f"v_pk_mul_f32 {v(r+2,2)}, {v(r+2,2)}, {v(r+2,2)}")
                dst = ach(jj, 2*pp) + 2 * (bb & 1)
                A(f"v_cvt_pk_bf16_f32 {v(dst)}, {v(r)}, {v(r+1)}")
                A(f"v_cvt_pk_bf16_f32 {v(dst+1)}, {v(r+2)}, {v(r+3)}")
            A.vmem(f"buffer_store_dwordx4 {v(ach(jj,2*pp),4)}, {v(vFRb if pp else vFRa)}, s[{WS}:{WS+3}], s{S_HS+jj} offen offset:{1024*pp} sc1")
    if OPT.get("lateA6", 1): release(("A", 6))
    ST("H epi done")
    A(f"v_bfe_u32 {v(t0)}, {v(vL)}, 4, 1")
    A(f"v_lshlrev_b32 {v(vQA)}, 6, {v(r16)}")
    A(f"v_lshl_add_u32 {v(vQA)}, {v(t0)}, 5, {v(vQA)}")
    A(f"v_lshl_add_u32 {v(vQA)}, {v(l3)}, 3, {v(vQA)}")
    A(f"v_xor_b32 {v(vQA+1)}, 32, {v(vQA)}")
    A(f"""s_and_b32 s{S_T}, s{S_W}, 1
s_lshl_b32 s{S_T}, s{S_T}, 5
s_lshr_b32 s{S_T2}, s{S_W}, 1
s_lshl_b32 s{S_T2}, s{S_T2}, 12""")
    A(f"v_xor_b32 {v(vQA+2)}, s{S_T}, {v(vQA)}")
    A(f"v_add_u32 {v(vQA+2)}, s{S_T2}, {v(vQA+2)}")
    A(f"v_and_b32 {v(vXH)}, 0x7ff, {v(vXA)}")
    A(f"v_xor_b32 {v(vXH+1)}, 64, {v(vXH)}")
    for z in (1, 2):
        for i in range(3): A(f"v_add_u32 {v(vQA+3*z+i)}, {z*65536}, {v(vQA+i)}")
        for i in range(2): A(f"v_add_u32 {v(vXH+2*z+i)}, {z*65536}, {v(vXH+i)}")
    nonce_check(A, last)
    def pubH():
        A.wait_vm_all(); publish(A, S_FLP, 0); ST("H pub")
    fr = []
    for ks in range(14):
        c, s2 = ks // 2, ks % 2; pg = page[("Q", c)]; z = pg // 4; rel = (pg % 4) * PAGE
        hold = {}
        for f in range(9):
            def reads(r, ks=ks, s2=s2, f=f, z=z, rel=rel, hold=hold):
                if f == 6:
                    hold["x"] = r
                    return [f"ds_read_b128 {v(r,4)}, {v(vXH+2*z+s2)} offset:{rel + 12288}"]
                if f == 8: return [f"ds_read_b128 {v(r,4)}, {v(vGA)} offset:{64*ks}"]
                va = vQA + 3*z + (2 if f == 7 else (f & 1)); ro = 4096 if f == 7 else 4096*(f//2)
                return [trr(r + 2*hf, va, rel + ro + (32*s2 + 16*hf)*64) for hf in range(2)]
            def mf(r, ks=ks, f=f, hold=hold):
                if f == 6: return []
                if f == 7:
                    d = v(ACC_HL, 4)
                    return [f"v_mfma_f32_16x16x32_bf16 {d}, {v(r,4)}, {v(hold['x'],4)}, {d if ks else '0'}"]
                out = []
                for tb in range(2):
                    d = v(ACG + 4*tb, 4) if f == 8 else v(acq(tb, f), 4)
                    cc = d if ks else "0"
                    wf, xf = v(r, 4), v(ax(ks, tb), 4)
                    out.append(f"v_mfma_f32_16x16x32_bf16 {d}, {xf}, {wf}, {cc}" if f in (4, 5) else f"v_mfma_f32_16x16x32_bf16 {d}, {wf}, {xf}, {cc}")
                return out
            fr.append(Frag(("Q", c), reads, mf))
    PH = OPT.get("pubH", -1)
    if PH < 0: pubH()
    if OPT.get("prio2", 0): A("s_setprio 0")
    run_frags(fr, NWR - 2, hooks={} if PH < 0 else {PH: pubH})
    ST("B done")
    XCH = 8 * PAGE
    E = XR
    KP, QP, VP, HLP, vXCA = E, E + 12, E + 20, E + 32, E + 34
    SS = E + 40; TT_ = E + 56; PPp = E + 64; OO = E + 72; OP = E + 88
    vG3, vSEL = E + 96, E + 97
    u0, u1, u2 = E + 104, E + 105, E + 106
    tkc = lds_flag_read(A, 16)
    def pk(dst, src):
        A(f"v_cvt_pk_bf16_f32 {v(dst)}, {v(src)}, {v(src+1)}")
        A(f"v_cvt_pk_bf16_f32 {v(dst+1)}, {v(src+2)}, {v(src+3)}")
    A(f"s_lshl_b32 s{S_T}, s{S_W}, 11\ns_add_u32 s{S_T}, s{S_T}, {XCH}")
    A(f"v_add_u32 {v(vXCA)}, s{S_T}, {v(vFR)}")
    A(f"v_add_u32 {v(vXCA+1)}, s{S_T}, {v(vL8)}")
    pk(KP + 8, acq(1, 2)); pk(KP + 10, acq(1, 3))
    pk(VP + 4, acq(1, 4)); pk(VP + 10, acq(1, 5))
    lds_wait_min(A, 16, UIDX[("Q", 0)] + 1, tkc)
    pk(HLP, ACC_HL)
    A.dsop(f"ds_write_b128 {v(vXCA)}, {v(KP+8,4)} offset:2048")
    A.dsop(f"ds_write_b64 {v(vXCA+1)}, {v(VP+4,2)} offset:{2048+1024}")
    A.dsop(f"ds_write_b64 {v(vXCA+1)}, {v(VP+10,2)} offset:{2048+1536}")
    A(f"s_cmp_ge_u32 s{S_W}, 2\ns_cbranch_scc1 {kname}_hv")
    A(f"s_lshl_b32 s{S_T}, s{S_W}, 3\ns_add_u32 s{S_T}, s{S_T}, {XCH}")
    A(f"v_add_u32 {v(vXCA+2)}, s{S_T}, {v(vFR)}")
    A(f"ds_write_b64 {v(vXCA+2)}, {v(HLP,2)}")
    A(f"s_branch {kname}_hd")
    A.label(f"{kname}_hv")
    A(f"s_and_b32 s{S_T}, s{S_W}, 1\ns_lshl_b32 s{S_T}, s{S_T}, 9\ns_add_u32 s{S_T}, s{S_T}, {XCH+1024}")
    A(f"v_bfe_u32 {v(vXCA+2)}, {v(vL)}, 2, 2")
    A(f"v_lshlrev_b32 {v(vXCA+2)}, 7, {v(vXCA+2)}")
    A(f"v_lshl_add_u32 {v(vXCA+2)}, {v(g)}, 5, {v(vXCA+2)}")
    A(f"v_lshl_add_u32 {v(vXCA+2)}, {v(l3)}, 1, {v(vXCA+2)}")
    A(f"v_add_u32 {v(vXCA+2)}, s{S_T}, {v(vXCA+2)}")
    A(f"ds_write_b16 {v(vXCA+2)}, {v(HLP)}")
    A(f"ds_write_b16_d16_hi {v(vXCA+2)}, {v(HLP)} offset:8")
    A(f"ds_write_b16 {v(vXCA+2)}, {v(HLP+1)} offset:16")
    A(f"ds_write_b16_d16_hi {v(vXCA+2)}, {v(HLP+1)} offset:24")
    A.label(f"{kname}_hd")
    lds_post(A, 32, 1)
    A(f"v_cmp_eq_u32 vcc, 3, {v(g)}")
    A(f"v_mov_b32 {v(u0)}, 0x0c0c0100\nv_mov_b32 {v(u1)}, 0x01000c0c\nv_mov_b32 {v(u2)}, 0x0c0c0c0c")
    A(f"v_cndmask_b32 {v(vG3)}, -1, 0, vcc")
    A(f"v_cndmask_b32 {v(u0)}, {v(u0)}, {v(u1)}, s[{MP}:{MP+1}]")
    A(f"v_cndmask_b32 {v(vSEL+0)}, {v(u0)}, {v(u2)}, s[{MA}:{MA+1}]")
    A(f"v_cndmask_b32 {v(vSEL+2)}, {v(u2)}, {v(u0)}, s[{MA}:{MA+1}]")
    A(f"v_mov_b32 {v(u0)}, 0x0c0c0302\nv_mov_b32 {v(u1)}, 0x03020c0c")
    A(f"v_cndmask_b32 {v(u0)}, {v(u0)}, {v(u1)}, s[{MP}:{MP+1}]")
    A(f"v_cndmask_b32 {v(vSEL+1)}, {v(u0)}, {v(u2)}, s[{MB}:{MB+1}]")
    A(f"v_cndmask_b32 {v(vSEL+3)}, {v(u2)}, {v(u0)}, s[{MB}:{MB+1}]")
    for tb in range(2): A(f"v_mul_f32 {v(ACG+4*tb)}, 0xbfb8aa3b, {v(ACG+4*tb)}")
    for tb in range(2): A(f"v_exp_f32 {v(ACG+4*tb)}, {v(ACG+4*tb)}")
    A(f"v_lshrrev_b32 {v(ACG+1)}, 1, {v(vL8)}")
    for tb in range(2): A(f"v_add_f32 {v(ACG+4*tb)}, 1.0, {v(ACG+4*tb)}")
    for tb in range(2): A(f"v_rcp_f32 {v(ACG+4*tb)}, {v(ACG+4*tb)}")
    pk(KP + 4, acq(0, 2)); pk(KP + 6, acq(0, 3))
    pk(VP + 2, acq(0, 4)); pk(VP + 8, acq(0, 5))
    lb = newlab("g")
    A(f"s_cmp_lg_u32 s{S_HC}, 2\ns_cbranch_scc1 {lb}")
    A("s_mov_b64 exec, 0xffff")
    for tb in range(2): A(f"buffer_store_dword {v(ACG+4*tb)}, {v(ACG+1)}, s[{WS}:{WS+3}], s{S_GT} offen offset:{64*tb} sc1")
    A("s_mov_b64 exec, -1")
    A.label(lb)
    for tb in (1, 0):
        pk(QP + 4*tb, acq(tb, 0)); pk(QP + 2 + 4*tb, acq(tb, 1))
        A(f"v_and_b32 {v(QP+2+4*tb)}, {v(vG3)}, {v(QP+2+4*tb)}")
        A(f"v_and_b32 {v(QP+3+4*tb)}, {v(vG3)}, {v(QP+3+4*tb)}")
    A.wait_ds_all()
    lds_wait_min(A, 32, 1)
    A.dsop(f"ds_read_b128 {v(KP,4)}, {v(vXCA)}")
    A.dsop(f"ds_read_b64 {v(VP,2)}, {v(vXCA+1)} offset:1024")
    tkx = A.dsop(f"ds_read_b64 {v(VP+6,2)}, {v(vXCA+1)} offset:1536")
    A(f"s_add_u32 s{S_GT}, s{S_OS}, 73728")
    CSC = "0x3e8b97f6"
    def S_(tb, cur): return SS + 8*tb + 4*cur
    A(f"v_mfma_f32_16x16x32_bf16 {v(S_(1,0),4)}, {v(KP+4,4)}, {v(QP+4,4)}, 0")
    A(f"v_mfma_f32_16x16x32_bf16 {v(S_(1,1),4)}, {v(KP+8,4)}, {v(QP+4,4)}, 0")
    A(f"v_mfma_f32_16x16x32_bf16 {v(S_(0,1),4)}, {v(KP+4,4)}, {v(QP,4)}, 0")
    A.wait_ds(tkx)
    A(f"v_mfma_f32_16x16x32_bf16 {v(S_(0,0),4)}, {v(KP,4)}, {v(QP,4)}, 0")
    A(f"v_mov_b32 {v(u0)}, 0xf149f2ca")
    A.nop(5)
    def both(fn):
        for tb in (1, 0): fn(tb, TT_ + 4*tb, TT_ + 4*tb + 1, TT_ + 4*tb + 2, TT_ + 4*tb + 3)
    both(lambda tb, tA, tB, tC, tD: A(f"v_cndmask_b32 {v(tC)}, {v(S_(tb,1))}, {v(S_(tb,1)+1)}, s[{MP}:{MP+1}]\nv_cndmask_b32 {v(tD)}, {v(S_(tb,1)+2)}, {v(S_(tb,1)+3)}, s[{MP}:{MP+1}]"))
    both(lambda tb, tA, tB, tC, tD: A(f"v_cndmask_b32 {v(tA)}, {v(S_(tb,0))}, {v(S_(tb,0)+1)}, s[{MP}:{MP+1}]\nv_cndmask_b32 {v(tB)}, {v(S_(tb,0)+2)}, {v(S_(tb,0)+3)}, s[{MP}:{MP+1}]"))
    A(f"v_cndmask_b32 {v(TT_)}, {v(TT_)}, {v(u0)}, s[{MFIRST}:{MFIRST+1}]")
    A(f"v_cndmask_b32 {v(TT_+1)}, {v(TT_+1)}, {v(u0)}, s[{MFIRST}:{MFIRST+1}]")
    both(lambda tb, tA, tB, tC, tD: A(f"v_cndmask_b32 {v(tA)}, {v(tA)}, {v(tC)}, s[{MA}:{MA+1}]\nv_cndmask_b32 {v(tB)}, {v(tB)}, {v(tD)}, s[{MB}:{MB+1}]"))
    both(lambda tb, tA, tB, tC, tD: A(f"v_max_f32 {v(tC)}, {v(tA)}, {v(tB)}"))
    def xreduce(op):
        for sw in ("v_permlane16_swap_b32", "v_permlane32_swap_b32"):
            both(lambda tb, tA, tB, tC, tD: A(f"v_mov_b32 {v(tD)}, {v(tC)}"))
            A("s_nop 0")
            both(lambda tb, tA, tB, tC, tD: A(f"{sw} {v(tC)}, {v(tD)}"))
            A("s_nop 0")
            both(lambda tb, tA, tB, tC, tD: A(f"{op} {v(tC)}, {v(tC)}, {v(tD)}"))
    xreduce("v_max_f32")
    both(lambda tb, tA, tB, tC, tD: A(f"v_sub_f32 {v(tA)}, {v(tA)}, {v(tC)}\nv_sub_f32 {v(tB)}, {v(tB)}, {v(tC)}"))
    both(lambda tb, tA, tB, tC, tD: A(f"v_mul_f32 {v(tA)}, {CSC}, {v(tA)}\nv_mul_f32 {v(tB)}, {CSC}, {v(tB)}"))
    both(lambda tb, tA, tB, tC, tD: A(f"v_exp_f32 {v(tA)}, {v(tA)}\nv_exp_f32 {v(tB)}, {v(tB)}"))
    A("s_nop 0")
    both(lambda tb, tA, tB, tC, tD: A(f"v_add_f32 {v(tC)}, {v(tA)}, {v(tB)}"))
    xreduce("v_add_f32")
    both(lambda tb, tA, tB, tC, tD: A(f"v_rcp_f32 {v(tC)}, {v(tC)}"))
    A("s_nop 0")
    both(lambda tb, tA, tB, tC, tD: A(f"v_mul_f32 {v(tC)}, {v(tC)}, {v(ACG+4*tb)}"))
    both(lambda tb, tA, tB, tC, tD: A(f"v_mul_f32 {v(tA)}, {v(tA)}, {v(tC)}\nv_mul_f32 {v(tB)}, {v(tB)}, {v(tC)}"))
    both(lambda tb, tA, tB, tC, tD: A(f"v_cvt_pk_bf16_f32 {v(tA)}, {v(tA)}, {v(tB)}"))
    both(lambda tb, tA, tB, tC, tD: A("\n".join(f"v_perm_b32 {v(PPp+4*tb+i)}, {v(tA)}, {v(tA)}, {v(vSEL+i)}" for i in range(4))))
    A("s_nop 0")
    for tb in (1, 0):
        A(f"v_mfma_f32_16x16x32_bf16 {v(OO+8*tb,4)}, {v(VP+2*tb,4)}, {v(PPp+4*tb,4)}, 0")
        A(f"v_mfma_f32_16x16x32_bf16 {v(OO+8*tb+4,4)}, {v(VP+6+2*tb,4)}, {v(PPp+4*tb,4)}, 0")
    A.nop(6)
    for tb in (1, 0):
        op = OP + 4*tb
        pk(op, OO + 8*tb); pk(op + 2, OO + 8*tb + 4)
        A(f"v_and_b32 {v(op+2)}, {v(vG3)}, {v(op+2)}")
        A(f"v_and_b32 {v(op+3)}, {v(vG3)}, {v(op+3)}")
        A.vmem(f"buffer_store_dwordx4 {v(op,4)}, {v(vFR)}, s[{WS}:{WS+3}], s{S_OS if tb == 0 else S_GT} offen sc1")
    ST("attn done")
    A.wait_vm_all()
    publish(A, S_FLP, 8192)
    ST("O pub")
    STC.dump(A, WS, S_W8, vL, vT)
    A("s_endpgm")
    for cblk in cold: A.raw(cblk)
    A.label(f"{kname}_end")
    A("s_endpgm")
    return P.text() + L.text() + S.text() + Q.text() + C.text(), page, after

def desc(kname, nv, accoff, ns=102):
    return f""".amdhsa_kernel {kname}
  .amdhsa_next_free_vgpr {nv}
  .amdhsa_next_free_sgpr {ns}
  .amdhsa_accum_offset {accoff}
  .amdhsa_group_segment_fixed_size 0
  .amdhsa_kernarg_size 96
  .amdhsa_user_sgpr_count 2
  .amdhsa_user_sgpr_kernarg_segment_ptr 1
  .amdhsa_system_sgpr_workgroup_id_x 1
.end_amdhsa_kernel
"""

if __name__ == "__main__":
    out = sys.argv[1]
    STAMPS = "--stamps" in sys.argv
    for x in sys.argv[2:]:
        if "=" in x:
            k_, v_ = x.split("=", 1); OPT[k_] = v_.split(";") if k_.startswith("sel") else int(v_)
    k = NAME + "_kernel"
    t = f"; @launch grid=(256,1,1) block=(512,1,1) lds=163840\n"
    t += '.amdgcn_target "amdgcn-amd-amdhsa--gfx950"\n.text\n'
    body, page, after = gen(k)
    t += f".globl {k}\n.p2align 8\n.type {k},@function\n" + body
    t += '.section .rodata,"a"\n.p2align 6\n' + desc(k, 256, 256)
    open(out, "w").write(t)
```

```python
import sys
from collections import deque
from asmlib import Asm, v, a, s

NAME = "gated_mix__sliding_local_dilated__dense_activation_squared_relu__prompt"
WS_G = 128 * 72 * 1024
WS_FL = WS_G + 8192
WS_QR = WS_FL + 20480
WS_ST = WS_QR + 16 * 3 * 448 * 64
WS_BYTES = WS_ST + 262144
PAGE = 16384
L_BIAS = 8 * PAGE + 14336
L_GATE = L_BIAS + 256
L_DUM = L_GATE + 896
L_FLG = 8 * PAGE + 15872
STAMPS = False
OPT = {}

def srd(A, d, lo, nbytes):
    A(f"s_mov_b32 s{d}, s{lo}")
    A(f"s_and_b32 s{d+1}, s{lo+1}, 0xffff")
    A(f"s_mov_b32 s{d+2}, {nbytes}")
    A(f"s_mov_b32 s{d+3}, 0x20000")

class Stamper:
    def __init__(self, vreg, tag, pairs):
        self.n = 0; self.v = vreg; self.tag = tag; self.pairs = pairs
    def __call__(self, A, what=""):
        if not STAMPS: return
        sel = OPT.get("sel" + self.tag)
        if sel is not None and what != "start" and not any(what.startswith(x) for x in sel): return
        assert self.n < len(self.pairs), "too many stamps"
        p = self.pairs[self.n]
        A(f"s_memtime s[{p}:{p+1}]")
        print(f"stamp {self.tag} {self.n}: {what}")
        self.n += 1
    def dump(self, A, WS, S_W8, vL, vt):
        if not STAMPS: return
        A("s_mov_b64 exec, -1")
        A(f"v_mov_b32 v{self.v}, 0")
        A("s_waitcnt lgkmcnt(0)")
        A(f"v_writelane_b32 v{self.v}, s100, 62")
        A("s_memrealtime s[100:101]")
        A("s_waitcnt lgkmcnt(0)")
        A(f"v_writelane_b32 v{self.v}, s100, 63")
        for i in range(self.n): A(f"v_writelane_b32 v{self.v}, s{self.pairs[i]}, {i}")
        A(f"s_and_b32 s100, s{S_W8}, 3\ns_cmp_lg_u32 s100, {OPT.get('stw', 0)}\ns_cbranch_scc1 Lnodump{self.tag}")
        A(f"s_lshl_b32 s100, s2, 1\ns_add_u32 s100, s100, {0 if self.tag == 'C' else 1}\ns_lshl_b32 s100, s100, 8\ns_add_u32 s100, s100, {WS_ST}")
        A(f"v_lshlrev_b32 v{vt}, 2, v{vL}")
        A(f"buffer_store_dword v{self.v}, v{vt}, s[{WS}:{WS+3}], s100 offen")
        A.label(f"Lnodump{self.tag}")

UNITS = [("A", c) for c in range(7)] + [("Q", c) for c in range(7)]
UIDX = {u: i for i, u in enumerate(UNITS)}
NEED = {("A", c): [("H", c), ("X", c)] for c in range(7)}
NEED.update({("Q", c): [("Q", c)] for c in range(7)})
def make_plan():
    page = {}; after = {}; seq = []
    for c in range(7):
        page[("H", c)] = c % 4; page[("X", c)] = 4 + c % 4
        after[("H", c)] = after[("X", c)] = -1 if c < 4 else UIDX[("A", c - 4)]
        seq += [("H", c), ("X", c)]
    NWE = OPT.get("nwe", 3)
    free = [(-1, 9)]
    for c in range(3, 7): free += [(UIDX[("A", c)], c % 4), (UIDX[("A", c)], 4 + c % 4)]
    p2 = free[:NWE]; free = free[NWE:]
    for c in range(7):
        lu = ("Q", c)
        free.sort()
        rel, pg = (-1, 8) if c == 0 else free.pop(0)
        page[lu] = pg; after[lu] = rel
        if c: free.append((UIDX[lu], pg))
        seq.append(lu)
    free.sort()
    return page, after, seq, p2 + free

def gen(kname):
    page, after, seq, p2free = make_plan()
    SEQ = {lu: i for i, lu in enumerate(seq)}
    NL = len(seq)
    REPACK = OPT.get("repack", 1)
    S_W8, S_RB, S_HC, S_TT, S_CT = 3, 4, 5, 6, 7
    X, QKV, W1, WS, WO, W2, OUT, B1, GW, B2 = 8, 12, 16, 20, 24, 28, 32, 36, 40, 44
    KA = 48; DBG = 68
    MP, MA, MB, MFIRST, M32, NON = 72, 74, 76, 78, 80, 82
    S_T, S_T2, S_W, S_HW = 84, 85, 86, 87
    SW = 88; S_SPIN = 92; S_CB = 93; S_R1, S_R2, S_R3 = 94, 95, 96
    P = Asm(); C = Asm(); L = Asm(); S = Asm(); Q = Asm()
    vTID, vL, vFR, vST = 0, 1, 2, 3
    vZ, vL8, vN = 4, 5, 6
    vT = 8
    vFL, vFLW, vPV = 16, 17, 18
    vFV = 20
    c16, g, r8, l7, l3, r16, t0, t1 = [vT + i for i in range(8)]
    lab = [0]
    def newlab(t):
        lab[0] += 1; return f"L{t}{lab[0]}"
    STC = Stamper(vST, "C", [98, 8, 10, 12, 14, 16, 18, 24, 26, 28, 30, 32, 34, 36, 38, 40, 42, 44, 46, 60, 62, 64, 66, 88, 90, 94, 96])
    STL = Stamper(vST, "L", [98, 36, 38, 16, 18, 8, 10] if OPT.get("stlate", 0) else [98, 36, 38])

    A = P
    A.label(kname)
    A(f"s_cmp_ge_u32 s2, 256\ns_cbranch_scc1 {kname}_end")
    A(f"s_load_dwordx16 s[{KA}:{KA+15}], s[0:1], 0")
    A(f"s_load_dwordx8 s[{KA+16}:{KA+23}], s[0:1], 64")
    if STAMPS: A("s_memrealtime s[100:101]\ns_memtime s[98:99]"); STC.n = STL.n = 1; print("stamp C 0: start\nstamp L 0: start")
    A(f"v_lshrrev_b32 {v(vT)}, 6, {v(vTID)}")
    A(f"v_and_b32 {v(vL)}, 63, {v(vTID)}")
    A(f"v_readfirstlane_b32 s{S_W8}, {v(vT)}")
    A(f"v_lshlrev_b32 {v(vFR)}, 4, {v(vL)}")
    A(f"v_and_b32 {v(c16)}, 15, {v(vL)}")
    A(f"v_lshrrev_b32 {v(g)}, 4, {v(vL)}")
    A(f"v_lshrrev_b32 {v(r8)}, 3, {v(vL)}")
    A(f"v_and_b32 {v(l7)}, 7, {v(vL)}")
    A(f"""s_and_b32 s{S_W}, s{S_W8}, 3
s_lshr_b32 s{S_T}, s2, 3
s_and_b32 s{S_RB}, s2, 1
s_lshl_b32 s{S_RB}, s{S_RB}, 3
s_and_b32 s{S_T2}, s{S_T}, 7
s_add_u32 s{S_RB}, s{S_RB}, s{S_T2}
s_bfe_u32 s{S_HC}, s2, 0x20001
s_mul_i32 s{S_HW}, s{S_HC}, 896
s_lshl_b32 s{S_HC}, s{S_HC}, 2
s_lshr_b32 s{S_T2}, s{S_T}, 3
s_add_u32 s{S_HC}, s{S_HC}, s{S_T2}
s_lshl_b32 s{S_T}, s{S_T2}, 8
s_cmp_eq_u32 s{S_T2}, 3
s_cselect_b32 s{S_T}, 640, s{S_T}
s_add_u32 s{S_HW}, s{S_HW}, s{S_T}""")
    def common2(A):
        A(f"v_lshlrev_b32 {v(vL8)}, 3, {v(vL)}")
        A(f"v_mov_b32 {v(vZ)}, 0")
        A(f"v_mov_b32 {v(vFL)}, {L_FLG}")
        A(f"v_and_b32 {v(l3)}, 3, {v(vL)}")
        A(f"v_lshrrev_b32 {v(r16)}, 2, {v(vL)}")
        A(f"""s_and_b32 s{S_TT}, s2, 7
s_lshl_b32 s{S_TT}, s{S_TT}, 2
s_bfe_u32 s{S_T2}, s2, 0x20003
s_add_u32 s{S_TT}, s{S_TT}, s{S_T2}
s_lshr_b32 s{S_CT}, s2, 5
s_mov_b32 s{M32}, -1
s_mov_b32 s{M32+1}, 0
s_mov_b32 s{S_SPIN}, 0
s_lshl_b32 s{S_T}, s{S_W}, 2
s_add_u32 s{S_T}, s{S_T}, {L_FLG}""")
        A(f"v_lshlrev_b32 {v(vFLW)}, 2, {v(vL)}")
        A(f"v_add_u32 {v(vFLW)}, {L_DUM}, {v(vFLW)}")
        A(f"v_writelane_b32 {v(vFLW)}, s{S_T}, 0")
    A(f"s_cmp_ge_u32 s{S_W8}, 4\ns_cbranch_scc1 {kname}_C")
    A(f"s_cmp_ge_u32 s{S_W8}, 2\ns_cbranch_scc1 {kname}_S")

    def spin_guard(A, target):
        A(f"s_add_u32 s{S_SPIN}, s{S_SPIN}, 1\ns_cmp_lt_u32 s{S_SPIN}, 0x200000\ns_cbranch_scc1 {target}")
    def lds_post(A, off, val):
        A(f"v_mov_b32 {v(vPV)}, {val}")
        A.dsop(f"ds_max_u32 {v(vFLW)}, {v(vPV)} offset:{off}")
    def lds_flag_read(A, off):
        return A.dsop(f"ds_read_b128 {v(vFV,4)}, {v(vFL)} offset:{off}")
    def lds_wait_min(A, off, val, ticket=None, slow=None):
        lp, ok = newlab("lw"), newlab("lk")
        if ticket is None: ticket = lds_flag_read(A, off)
        A.wait_ds(ticket)
        def check():
            A(f"v_min3_u32 {v(vFV)}, {v(vFV)}, {v(vFV+1)}, {v(vFV+2)}")
            A(f"v_min_u32 {v(vFV)}, {v(vFV)}, {v(vFV+3)}")
            A("s_nop 0")
            A(f"v_readfirstlane_b32 s{S_T2}, {v(vFV)}")
            A(f"s_cmp_ge_u32 s{S_T2}, {val}\ns_cbranch_scc1 {ok}")
        if slow is not None:
            sv = (A.vm, A.vm_done, A.ds, A.ds_done)
            for step in slow():
                check()
                step()
                A(f"ds_read_b128 {v(vFV,4)}, {v(vFL)} offset:{off}\ns_waitcnt lgkmcnt(0)")
            A.vm, A.vm_done, A.ds, A.ds_done = sv
        A.label(lp)
        check()
        A(f"s_sleep 1\nds_read_b128 {v(vFV,4)}, {v(vFL)} offset:{off}\ns_waitcnt lgkmcnt(0)")
        spin_guard(A, lp)
        A.label(ok)
    def nonce_fetch(A):
        lp, ok = newlab("nf"), newlab("ng")
        A.label(lp)
        A(f"global_load_dwordx2 {v(vN,2)}, {v(vZ)}, s[{DBG}:{DBG+1}] sc1\ns_waitcnt vmcnt(0)")
        A(f"v_readfirstlane_b32 s{NON}, {v(vN)}")
        A(f"s_cmp_lg_u32 s{NON}, 0\ns_cbranch_scc1 {ok}")
        A("s_sleep 4")
        spin_guard(A, lp)
        A.label(ok)
        A(f"s_mov_b64 exec, 1\nds_write_b64 {v(vFL)}, {v(vN,2)} offset:64\ns_mov_b64 exec, -1")
    def nonce_load(A, last): pass
    def nonce_check(A, last):
        lp, ok = newlab("nc"), newlab("nk")
        A.label(lp)
        A(f"ds_read_b64 {v(vN,2)}, {v(vFL)} offset:64")
        A.wait_ds_all()
        A(f"v_readfirstlane_b32 s{NON}, {v(vN)}\nv_readfirstlane_b32 s{NON+1}, {v(vN+1)}")
        A(f"s_cmp_lg_u32 s{NON}, 0\ns_cbranch_scc1 {ok}")
        A("s_sleep 2")
        spin_guard(A, lp)
        A.label(ok)
    SP = 64
    WSP = 0
    def spoll_issue(A, sreg, off, n16=True, extra=None):
        A(f"s_add_u32 s{S_T}, s{sreg}, {off}")
        A(f"s_load_dwordx16 s[{SP}:{SP+15}], s[{WSP}:{WSP+1}], s{S_T} glc")
        if extra is not None:
            A(f"s_add_u32 s{S_T}, s{extra[0]}, {extra[1]}")
            A(f"s_load_dwordx4 s[{SW}:{SW+3}], s[{WSP}:{WSP+1}], s{S_T} glc")
    def spoll_finish(A, sreg, off, extra=None):
        lp, ok, rt = newlab("sp"), newlab("sk"), newlab("sr")
        A.label(lp)
        A.wait_ds_all()
        regs_ = [SP + 2*i for i in range(8)] + ([SW, SW + 2] if extra is not None else [])
        for r in regs_:
            A(f"s_cmp_eq_u64 s[{r}:{r+1}], s[{NON}:{NON+1}]\ns_cbranch_scc0 {rt}")
        A(f"s_branch {ok}")
        A.label(rt)
        A(f"s_sleep {OPT.get('psleep', 1)}")
        spoll_issue(A, sreg, off, extra=extra)
        spin_guard(A, lp)
        A("s_waitcnt lgkmcnt(0)")
        A.label(ok)
    def publish(A, sreg, off):
        A(f"v_mov_b32 {v(vN)}, s{NON}\nv_mov_b32 {v(vN+1)}, s{NON+1}")
        A(f"s_add_u32 s{S_T}, s{sreg}, {off}")
        A("s_mov_b64 exec, 1")
        A.vmem(f"buffer_store_dwordx2 {v(vN,2)}, {v(vZ)}, s[{WS}:{WS+3}], s{S_T} offen sc1")
        A("s_mov_b64 exec, -1")
    def rot_base(A, sdst, srot, idx, mod, mult, sadd):
        A(f"s_add_u32 s{sdst}, s{srot}, {idx}")
        A(f"s_sub_u32 s{S_T2}, s{sdst}, {mod}")
        A(f"s_cmp_ge_u32 s{sdst}, {mod}")
        A(f"s_cselect_b32 s{sdst}, s{S_T2}, s{sdst}")
        A(f"s_mul_i32 s{sdst}, s{sdst}, {mult}")
        A(f"s_add_u32 s{sdst}, s{sdst}, s{sadd}")
    def dma(A, m0reg, m0off, sreg, soff, va, sr, flags=""):
        A(f"s_add_u32 m0, s{m0reg}, {m0off}")
        A(f"s_add_u32 s{S_T}, s{sreg}, {soff}")
        return A.vmem(f"buffer_load_dwordx4 {v(va)}, s[{sr}:{sr+3}], s{S_T} offen {flags} lds")
    vD = 32
    def poll(A, tag, sreg, off, mask=None, wide=False):
        lp, ok = newlab("pl"), newlab("pk")
        A(f"s_add_u32 s{S_T}, s{sreg}, {off}")
        if not wide: A(f"s_mov_b64 exec, {mask}")
        A.label(lp)
        if wide:
            A(f"buffer_load_dwordx4 {v(vD+12,4)}, {v(vFR)}, s[{WS}:{WS+3}], s{S_T} offen sc1")
            A(f"buffer_load_dwordx4 {v(vD+16,4)}, {v(vFR)}, s[{WS}:{WS+3}], s{S_T} offen offset:768 sc1")
            A("s_waitcnt vmcnt(0)")
            A(f"v_cmp_ne_u64 vcc, s[{NON}:{NON+1}], {v(vD+12,2)}")
            for i in range(1, 4):
                A(f"v_cmp_ne_u64 s[{SW}:{SW+1}], s[{NON}:{NON+1}], {v(vD+12+2*i,2)}")
                A(f"s_or_b64 vcc, vcc, s[{SW}:{SW+1}]")
            A(f"s_cmp_eq_u64 vcc, 0\ns_cbranch_scc1 {ok}")
        else:
            A(f"buffer_load_dwordx2 {v(vD+12,2)}, {v(vL8)}, s[{WS}:{WS+3}], s{S_T} offen sc1")
            A("s_waitcnt vmcnt(0)")
            A(f"v_cmp_ne_u64 vcc, s[{NON}:{NON+1}], {v(vD+12,2)}")
            A(f"s_cbranch_vccz {ok}")
        A("s_sleep 8")
        spin_guard(A, lp)
        A.label(ok)
        A("s_mov_b64 exec, -1")
        A.vm_done = A.vm
    S_XO, S_HO, S_QO, S_XH, S_M4, S_M8, S_M2, S_FLC, S_FO, S_WOB, S_W2B, S_RF, S_M1, S_CO, S_FH, S_FOo = range(48, 64)
    vXD, vHD0, vHD1, vQD, vW2D, vRS, vRD = 24, 25, 26, 27, 28, 29, 30
    QROW = 64 if REPACK else 2688
    def lgroup_rest(A):
        srd(A, QKV, KA+2, 448 * 2688)
        srd(A, WO, KA+4, 448 * 896)
        srd(A, W2, KA+12, 1792 * 896)
        srd(A, GW, KA+16, 896)
        srd(A, B2, KA+14, 896)
        srd(A, OUT, KA+18, 2048 * 896)
        srd(A, WS, KA+22, WS_BYTES)
        A(f"s_mov_b64 s[{WSP}:{WSP+1}], s[{KA+22}:{KA+23}]")
    def p2_scalars(A):
        A(f"v_mul_u32_u24 {v(t1)}, 896, {v(r8)}")
        A(f"v_and_b32 {v(t0)}, 1, {v(g)}")
        A(f"v_xor_b32 {v(t0)}, {v(t0)}, {v(l7)}")
        A(f"v_lshl_add_u32 {v(vW2D)}, {v(t0)}, 4, {v(t1)}")
        A(f"""s_lshl_b32 s{S_M4}, s{S_W}, 12
s_lshl_b32 s{S_T}, s{S_TT}, 8
s_add_u32 s{S_FLC}, s{S_T}, {WS_FL}
s_mul_i32 s{S_FO}, s{S_TT}, {4*73728}
s_lshl_b32 s{S_CO}, s{S_CT}, 7
s_mul_i32 s{S_WOB}, s{S_W}, {112*896}
s_add_u32 s{S_WOB}, s{S_WOB}, s{S_CO}
s_mul_i32 s{S_W2B}, s{S_W}, {448*896}
s_add_u32 s{S_W2B}, s{S_W2B}, s{S_CO}
s_mul_i32 s{S_T}, s{S_W}, {14*1024}
s_add_u32 s{S_FH}, s{S_FO}, s{S_T}
s_add_u32 s{S_FOo}, s{S_FO}, s{S_M4}
s_add_u32 s{S_FOo}, s{S_FOo}, {56*1024}
s_and_b32 s{S_T}, s{S_TT}, 3
s_mul_i32 s{S_T}, s{S_T}, 7
s_add_u32 s{S_T}, s{S_T}, 1
s_lshr_b32 s{S_T}, s{S_T}, 1
s_lshl_b32 s{S_T2}, s{S_CT}, 1
s_add_u32 s{S_T}, s{S_T}, s{S_T2}
s_sub_u32 s{S_T2}, s{S_T}, 14
s_cmp_ge_u32 s{S_T}, 14
s_cselect_b32 s{S_R2}, s{S_T2}, s{S_T}
s_add_u32 s{S_T}, s{S_TT}, s{S_CT}
s_and_b32 s{S_R3}, s{S_T}, 3""")

    A = L; last = {}
    A(f"v_mul_u32_u24 {v(t1)}, 896, {v(r8)}")
    A(f"v_xor_b32 {v(t0)}, {v(l7)}, {v(r8)}")
    A(f"v_lshl_add_u32 {v(vXD)}, {v(t0)}, 4, {v(t1)}")
    A(f"v_mul_u32_u24 {v(t1)}, 3584, {v(g)}")
    A(f"v_lshlrev_b32 {v(t0)}, 1, {v(g)}")
    A(f"v_xor_b32 {v(t0)}, {v(t0)}, {v(c16)}")
    A(f"v_lshl_add_u32 {v(vHD0)}, {v(t0)}, 4, {v(t1)}")
    A(f"v_xor_b32 {v(vHD1)}, 0x80, {v(vHD0)}")
    A(f"""s_lshl_b32 s{S_T}, s{S_HC}, 1
s_add_u32 s{S_T}, s{S_T}, s{S_RB}
s_mul_i32 s{S_T2}, s{S_T}, 37
s_lshr_b32 s{S_T2}, s{S_T2}, 8
s_mul_i32 s{S_T2}, s{S_T2}, 7
s_sub_u32 s{S_R1}, s{S_T}, s{S_T2}
s_mul_i32 s{SW}, s{S_W}, {32*3584}
s_add_u32 s{SW}, s{SW}, s{S_HW}
s_lshl_b32 s{S_T}, s{S_RB}, 7
s_lshl_b32 s{S_T2}, s{S_W}, 6
s_add_u32 s{S_T2}, s{S_T}, s{S_T2}
s_mul_i32 s{SW+1}, s{S_T2}, 896
s_lshl_b32 s{SW+2}, s{S_W}, 13""")
    if not OPT.get("rot", 1): A(f"s_mov_b32 s{S_R1}, 0")
    A("s_waitcnt lgkmcnt(0)")
    srd(A, W1, KA+8, 448 * 3584)
    srd(A, X, KA, 2048 * 896)
    srd(A, B1, KA+10, 3584)
    regs = {"HO": SW, "XO": SW + 1, "M8": SW + 2}
    def load(lu):
        k, c = lu; pb = page[lu] * PAGE
        if k == "H":
            rot_base(A, S_CB, S_R1, c, 7, 64*3584, regs["HO"])
            for hf in range(2):
                for gi in range(4): t = dma(A, regs["M8"], pb + hf*4096 + gi*1024, S_CB, (8*gi + 4*hf)*3584, vHD1 if gi & 1 else vHD0, W1)
        elif k == "X":
            rot_base(A, S_CB, S_R1, c, 7, 128, regs["XO"])
            for q in range(8): t = dma(A, regs["M8"], pb + q*1024, S_CB, q*8*896, vXD, X)
        elif k == "Q":
            rot_base(A, S_CB, S_R1, c, 7, 4096 if REPACK else 172032, S_QO)
            for p in range(3):
                for hf in range(2):
                    if REPACK: dma(A, S_M2, pb + p*4096 + hf*1024, S_CB, WS_QR + p*448*64 + 4*hf*64, vQD, WS, "sc1")
                    else: dma(A, S_M2, pb + p*4096 + hf*1024, S_CB, 896*p + 4*hf*2688, vQD, QKV)
            rot_base(A, S_CB, S_R1, c, 7, 128, S_XH)
            t = dma(A, S_M1, pb + 12288, S_CB, 0, vXD, X)
        last[lu] = t
    lb = newlab("w0")
    A(f"s_cmp_lg_u32 s{S_W}, 0\ns_cbranch_scc1 {lb}")
    A(f"s_mov_b32 m0, {L_BIAS}\ns_mov_b64 exec, 0xffff")
    A(f"buffer_load_dwordx4 {v(vFR)}, s[{B1}:{B1+3}], s{S_HW} offen lds")
    A("s_mov_b64 exec, -1")
    A.label(lb)
    load(seq[0]); load(seq[1]); STL(A, "X0 iss")
    common2(A)
    A("s_barrier")
    lgroup_rest(A)
    A(f"s_mov_b32 s{S_HO}, s{SW}\ns_mov_b32 s{S_XO}, s{SW+1}\ns_mov_b32 s{S_M8}, s{SW+2}")
    regs.update({"HO": S_HO, "XO": S_XO, "M8": S_M8})
    load(seq[2]); load(seq[3])
    p2_scalars(A)
    A(f"""s_mul_i32 s{S_QO}, s{S_W}, {32*QROW}
s_mul_i32 s{S_T2}, s{S_HC}, {3*448*64 if REPACK else 56}
s_add_u32 s{S_QO}, s{S_QO}, s{S_T2}
s_lshl_b32 s{S_T}, s{S_RB}, 7
s_sub_i32 s{S_T}, s{S_T}, 16
s_max_i32 s{S_T}, s{S_T}, 0
s_lshl_b32 s{S_T2}, s{S_W}, 3
s_add_u32 s{S_T}, s{S_T}, s{S_T2}
s_mul_i32 s{S_XH}, s{S_T}, 896
s_lshl_b32 s{S_M2}, s{S_W}, 11
s_lshl_b32 s{S_M1}, s{S_W}, 10""")
    A(f"v_and_b32 {v(t0)}, 3, {v(r16)}")
    A(f"v_lshl_add_u32 {v(t0)}, {v(g)}, 3, {v(t0)}")
    A(f"v_mul_u32_u24 {v(vQD)}, {QROW}, {v(t0)}")
    A(f"v_and_b32 {v(t0)}, 1, {v(g)}")
    A(f"v_lshlrev_b32 {v(t1)}, 1, {v(t0)}")
    A(f"v_xor_b32 {v(t1)}, {v(t1)}, {v(l3)}")
    A(f"v_lshl_add_u32 {v(vQD)}, {v(t1)}, 4, {v(vQD)}")
    posted = [0]
    def post_upto(n):
        if n <= posted[0]: return
        A.wait_vm(last[seq[n-1]])
        lds_post(A, 0, n)
        posted[0] = n
        STL(A, f"post {seq[n-1]}")
    post_upto(2)
    LAG = OPT.get("lag", 3)
    released = [-1]; issued_n = [4]; relpre = {}
    def wait_release(A, r, slow=None):
        if r > released[0]:
            lds_wait_min(A, 16, r + 1, relpre.pop("t", None), slow=slow)
            released[0] = r
    def slow_post():
        steps = []
        for m in range(posted[0] + 1, issued_n[0] + 1):
            if seq[m-1][0] == "H": continue
            def st(m=m):
                A.wait_vm(last[seq[m-1]])
                lds_post(A, 0, m)
            steps.append(st)
        return steps
    for n in range(4, NL):
        lu = seq[n]
        if lu == ("Q", 0):
            post_upto(n)
            nonce_check(A, last)
            if REPACK:
                A(f"s_mov_b32 s{SW+2}, {WS_FL + 16384}")
                poll(A, "R", SW + 2, 0, wide=True); STL(A, "poll R ok")
            lb = newlab("w0")
            A(f"s_cmp_lg_u32 s{S_W}, 0\ns_cbranch_scc1 {lb}")
            A(f"s_lshl_b32 s{S_T}, s{S_R1}, 7")
            A(f"v_add_u32 {v(t0)}, s{S_T}, {v(vFR)}")
            A(f"v_subrev_u32 {v(t1)}, 896, {v(t0)}")
            A(f"v_min_u32 {v(t0)}, {v(t0)}, {v(t1)}")
            A(f"s_mov_b32 m0, {L_GATE}\ns_mov_b32 exec_hi, 0xffffff")
            A(f"buffer_load_dwordx4 {v(t0)}, s[{GW}:{GW+3}], 0 offen lds")
            A("s_mov_b32 exec_hi, -1")
            A.label(lb)
        wait_release(A, after[lu], slow_post)
        if n + 1 < NL and after[seq[n+1]] > released[0] and seq[n+1] != ("Q", 0): relpre["t"] = lds_flag_read(A, 16)
        load(lu); issued_n[0] = n + 1
        if n == 9: nonce_load(A, last)
        m = n + 1 - LAG
        if m >= 2 and seq[m-1][0] != "H": post_upto(m)
    post_upto(NL)
    A(f"s_branch {kname}_P2")

    A = S; last = {}
    A.label(f"{kname}_S")
    common2(A)
    A("s_waitcnt lgkmcnt(0)")
    lb = newlab("n0")
    A(f"s_cmp_lg_u32 s2, 0\ns_cbranch_scc1 {lb}\ns_cmp_lg_u32 s{S_W}, 2\ns_cbranch_scc1 {lb}")
    A(f"s_memrealtime s[{NON}:{NON+1}]\ns_waitcnt lgkmcnt(0)\ns_or_b32 s{NON}, s{NON}, 1")
    A(f"v_mov_b32 {v(vN)}, s{NON}\nv_mov_b32 {v(vN+1)}, s{NON+1}")
    A("s_mov_b64 exec, 1")
    A(f"global_store_dwordx2 {v(vZ)}, {v(vN,2)}, s[{DBG}:{DBG+1}] sc1")
    A("s_mov_b64 exec, -1")
    A.label(lb)
    srd(A, W1, KA+8, 448 * 3584)
    srd(A, X, KA, 2048 * 896)
    lgroup_rest(A)
    A(f"s_getpc_b64 s[{SW}:{SW+1}]")
    A.label(f"{kname}_pc")
    A(f"s_sub_u32 s{SW}, s{SW}, {kname}_pc-{kname}\ns_subb_u32 s{SW+1}, s{SW+1}, 0")
    A(f"s_bfe_u32 s{S_T}, s2, 0x40003\ns_lshl_b32 s{S_T}, s{S_T}, 1\ns_and_b32 s{S_T2}, s{S_W}, 1\ns_add_u32 s{S_T}, s{S_T}, s{S_T2}\ns_lshl_b32 s{S_T}, s{S_T}, 10")
    A(f"v_add_u32 {v(t0)}, s{S_T}, {v(vFR)}")
    A(f"v_min_u32 {v(t0)}, {kname}_end-{kname}-16, {v(t0)}")
    A.vmem(f"global_load_dwordx4 {v(vD,4)}, {v(t0)}, s[{SW}:{SW+1}]")
    A("s_barrier")
    p2_scalars(A)
    vSPa, vSPb = 26, 27
    A(f"v_lshlrev_b32 {v(vSPa)}, 7, {v(vL)}")
    if OPT.get("m1", 1):
        srd(A, X, 100, 2048 * 896) if False else None
        A(f"s_and_b32 s{S_T}, s2, 1\ns_mul_i32 s{S_T}, s{S_T}, {1024*896}\ns_lshr_b32 s{S_T2}, s2, 3\ns_mul_i32 s{S_CB}, s{S_T2}, {224*128}\ns_add_u32 s{S_T}, s{S_T}, s{S_CB}")
        A(f"s_and_b32 s{S_CB}, s{S_W}, 1\ns_mul_i32 s{S_CB}, s{S_CB}, {112*128}\ns_add_u32 s{S_T}, s{S_T}, s{S_CB}")
        A.vmem(f"buffer_load_dword {v(vD)}, {v(vSPa)}, s[{X}:{X+3}], s{S_T} offen")
        A(f"s_add_u32 s{S_T}, s{S_T}, 8192\ns_mov_b32 exec_hi, 0xffff")
        A.vmem(f"buffer_load_dword {v(vD)}, {v(vSPa)}, s[{X}:{X+3}], s{S_T} offen")
        A("s_mov_b32 exec_hi, -1")
        A(f"v_mul_u32_u24 {v(t0)}, 9363, {v(vL)}")
        A(f"v_lshrrev_b32 {v(t0)}, 16, {v(t0)}")
        A(f"v_mul_u32_u24 {v(t0)}, {3584 - 896}, {v(t0)}")
        A(f"v_add_u32 {v(vSPb)}, {v(t0)}, {v(vSPa)}")
        A(f"s_lshl_b32 s{S_T2}, s{S_T2}, 1\ns_and_b32 s{S_CB}, s{S_W}, 1\ns_add_u32 s{S_T2}, s{S_T2}, s{S_CB}\ns_mul_i32 s{S_T}, s{S_T2}, {7*3584}")
        A(f"s_bfe_u32 s{S_CB}, s2, 0x20001\ns_mul_i32 s{S_CB}, s{S_CB}, 896\ns_add_u32 s{S_T}, s{S_T}, s{S_CB}\ns_mov_b32 exec_hi, 0x1ffff")
        A.vmem(f"buffer_load_dword {v(vD)}, {v(vSPb)}, s[{W1}:{W1+3}], s{S_T} offen")
        A("s_mov_b32 exec_hi, -1")
    RGs = 96
    if REPACK:
        A(f"v_bfe_u32 {v(t0)}, {v(vL)}, 2, 1")
        A(f"v_mul_u32_u24 {v(vRS)}, 2688, {v(t0)}")
        A(f"v_mul_u32_u24 {v(t1)}, 56, {v(r8)}")
        A(f"v_add_u32 {v(vRS)}, {v(vRS)}, {v(t1)}")
        A(f"v_lshl_add_u32 {v(vRS)}, {v(l3)}, 4, {v(vRS)}")
        A(f"v_mul_u32_u24 {v(vRD)}, {3*448*64}, {v(r8)}")
        A(f"v_lshl_add_u32 {v(vRD)}, {v(l7)}, 4, {v(vRD)}")
        A(f"s_cmp_ge_u32 s2, 224\ns_cselect_b32 s{S_T}, 0x40000000, 0")
        A(f"v_or_b32 {v(vRS)}, s{S_T}, {v(vRS)}")
        A(f"v_or_b32 {v(vRD)}, s{S_T}, {v(vRD)}")
        A(f"s_mul_i32 s{S_T}, s2, {2*2688}\ns_and_b32 s{S_T2}, s{S_W}, 1\ns_mul_i32 s{S_T2}, s{S_T2}, 1344\ns_add_u32 s{S_T}, s{S_T}, s{S_T2}")
        for k in range(3):
            last["RL"] = A.vmem(f"buffer_load_dwordx4 {v(RGs+4*k,4)}, {v(vRS)}, s[{QKV}:{QKV+3}], s{S_T} offen offset:{448*k}")
        nonce_load(A, last)
        dst = [(jj >> 1)*448*64 + (jj & 1)*8*3*448*64 for jj in range(6)]
        A(f"s_lshl_b32 s{S_CB}, s2, 7\ns_add_u32 s{S_CB}, s{S_CB}, {WS_QR}\ns_and_b32 s{SW+2}, s{S_W}, 1")
        A.wait_vm(last["RL"])
        for k in range(3):
            A(f"s_mul_i32 s{S_T}, s{SW+2}, {dst[3+k]-dst[k]}\ns_add_u32 s{S_T}, s{S_T}, {dst[k]}\ns_add_u32 s{S_T}, s{S_T}, s{S_CB}")
            A.vmem(f"buffer_store_dwordx4 {v(RGs+4*k,4)}, {v(vRD)}, s[{WS}:{WS+3}], s{S_T} offen sc1")
        lb = newlab("nw")
        A(f"s_cmp_lg_u32 s{S_W}, 3\ns_cbranch_scc1 {lb}")
        nonce_fetch(A)
        A.label(lb)
        A.wait_vm_all()
        lds_post(A, 48, 1)
        nonce_check(A, last)
        lb = newlab("rp")
        A(f"s_cmp_lg_u32 s{S_W}, 2\ns_cbranch_scc1 {lb}\ns_cmp_ge_u32 s2, 224\ns_cbranch_scc1 {lb}")
        sv = (A.vm, A.vm_done, A.ds, A.ds_done)
        lds_wait_min(A, 48, 1)
        A(f"s_lshl_b32 s{S_RF}, s2, 3\ns_add_u32 s{S_RF}, s{S_RF}, {WS_FL + 16384}")
        publish(A, S_RF, 0)
        A.vm, A.vm_done, A.ds, A.ds_done = sv
        A.label(lb)
        STL(A, "R pub")
    else:
        A(f"s_lshl_b32 s{S_T}, s2, 1\ns_and_b32 s{S_T2}, s{S_W}, 1\ns_add_u32 s{S_T}, s{S_T}, s{S_T2}\ns_mul_i32 s{S_T}, s{S_T}, 2432")
        if OPT.get("sweep", 1):
            for k in range(3): A.vmem(f"buffer_load_dwordx4 {v(vD,4)}, {v(vFR)}, s[{QKV}:{QKV+3}], s{S_T} offen offset:{1024*k}")
        lb = newlab("nw")
        A(f"s_cmp_lg_u32 s{S_W}, 3\ns_cbranch_scc1 {lb}")
        nonce_fetch(A)
        A.label(lb)
        nonce_check(A, last)
    if OPT.get("sweep", 0):
        A(f"s_lshl_b32 s{S_CB}, s2, 1\ns_and_b32 s{S_T2}, s{S_W}, 1\ns_add_u32 s{S_CB}, s{S_CB}, s{S_T2}\ns_mul_i32 s{S_T}, s{S_CB}, 3200")
        for k in range(4):
            if k == 3: A("s_mov_b64 exec, 0xff")
            A.vmem(f"buffer_load_dwordx4 {v(vD,4)}, {v(vFR)}, s[{W2}:{W2+3}], s{S_T} offen offset:{1024*k}")
        A(f"s_mov_b64 exec, -1\ns_mul_i32 s{S_T}, s{S_CB}, 896\ns_mov_b32 exec_hi, 0xffffff")
        A.vmem(f"buffer_load_dwordx4 {v(vD,4)}, {v(vFR)}, s[{WO}:{WO+3}], s{S_T} offen")
        A("s_mov_b32 exec_hi, -1")
    if OPT.get("l2w", 1):
        lds_wait_min(A, 0, OPT.get("l2at", 14))
        A(f"s_lshr_b32 s{S_T}, s2, 3\ns_lshl_b32 s{S_T}, s{S_T}, 1\ns_and_b32 s{S_T2}, s{S_W}, 1\ns_add_u32 s{S_T}, s{S_T}, s{S_T2}")
        A(f"s_mul_i32 s{S_CB}, s{S_T}, 25088\ns_mul_i32 s{S_T2}, s{S_T}, 6272")
        for k in range(4):
            if k: A(f"s_add_u32 s{S_CB}, s{S_CB}, 8192")
            if k == 3: A("s_mov_b64 exec, 0xf")
            A.vmem(f"buffer_load_dword {v(vD)}, {v(vSPa)}, s[{W2}:{W2+3}], s{S_CB} offen")
        A("s_mov_b32 exec_lo, -1\ns_mov_b32 exec_hi, 0x1ffff")
        A.vmem(f"buffer_load_dword {v(vD)}, {v(vSPa)}, s[{WO}:{WO+3}], s{S_T2} offen")
        A("s_mov_b64 exec, -1")
        STL(A, "l2w iss")
    A.wait_vm_all()

    A = Q; last = {}
    A.label(f"{kname}_P2")
    A(f"s_cmp_ge_u32 s{S_CT}, 7\ns_cbranch_scc1 {kname}_lfin")
    released[0] = -1; relpre.clear()
    NP2 = OPT.get("np2", 7)
    def p2page(i): return p2free[i % NP2][1]
    vPA = 32; vG = 40; vB2 = 48
    WB = 64; RG = 96; NFS = 6
    ACB = RG + 16 * NFS
    def fa(i, j): return RG + 16 * (i % NFS) + 4 * j
    def job_W(i):
        if i < NP2: wait_release(A, p2free[i][0])
        if i < 14: rot_base(A, S_CB, S_R2, i, 14, 32*896, S_W2B)
        else: rot_base(A, S_CB, S_R3, i - 14, 4, 28*896, S_WOB)
        for q in range(4):
            last[("W", i)] = dma(A, S_M4, p2page(i)*PAGE + q*1024, S_CB, 8*q*896, vW2D, W2 if i < 14 else WO)
    def job_F(i):
        if i < 14: rot_base(A, S_CB, S_R2, i, 14, 1024, S_FH)
        else: rot_base(A, S_CB, S_R3, i - 14, 4, 1024, S_FOo)
        for j in range(4):
            if j: A(f"s_add_u32 s{S_CB}, s{S_CB}, 73728")
            last[("F", i)] = A.vmem(f"buffer_load_dwordx4 {v(fa(i,j),4)}, {v(vFR)}, s[{WS}:{WS+3}], s{S_CB} offen sc1")
    NW0 = OPT.get("nw0", 3)
    if OPT.get("wat", 0): wait_release(A, OPT["wat"] - 1)
    for i in range(NW0): job_W(i)
    STL(A, "W0 iss")
    A(f"v_bfe_u32 {v(t0)}, {v(vL)}, 3, 1")
    A(f"v_lshl_add_u32 {v(t0)}, {v(l3)}, 1, {v(t0)}")
    A(f"v_lshlrev_b32 {v(t1)}, 7, {v(r16)}")
    A(f"v_lshl_add_u32 {v(t1)}, {v(t0)}, 4, {v(t1)}")
    S_FLW = S_RF
    A(f"s_lshl_b32 s{S_FLW}, s{S_W}, 6\ns_add_u32 s{S_FLW}, s{S_FLW}, s{S_FLC}")
    spoll_issue(A, S_FLW, 0); spoll_finish(A, S_FLW, 0); STL(A, "poll H ok")
    if OPT.get("prio2", 0) == 2: A("s_setprio 1")
    fi = 0; wi = NW0
    for i in range(NFS - 1):
        job_F(i); fi += 1
    A(f"v_add_u32 {v(vPA)}, s{S_M4}, {v(t1)}")
    A(f"v_xor_b32 {v(vPA+1)}, 16, {v(vPA)}")
    for z in (1, 2):
        for i in range(2): A(f"v_add_u32 {v(vPA+2*z+i)}, {z*65536}, {v(vPA+i)}")
    A(f"v_lshlrev_b32 {v(t1)}, 5, {v(g)}")
    def aw2(buf, t): return WB + 16*buf + 4*t
    rdt = {}
    def reads2(i):
        pg = p2page(i); z = pg // 4; rel = (pg % 4) * PAGE
        out = []
        for t in range(4):
            for hf in range(2):
                def at(t=t, hf=hf):
                    rdt[(i, t)] = A.dsop(f"ds_read_b64_tr_b16 {v(aw2(i&1,t)+2*hf,2)}, {v(vPA+2*z+(t>>1))} offset:{rel + hf*2048 + 8*(t&1)}")
                out.append(at)
        return out
    def small_loads():
        A(f"v_lshlrev_b32 {v(t0)}, 2, {v(c16)}")
        A(f"s_lshl_b32 s{S_T}, s{S_TT}, 8\ns_add_u32 s{S_T}, s{S_T}, {WS_G}")
        for j in range(4):
            A.vmem(f"buffer_load_dword {v(vG+j)}, {v(t0)}, s[{WS}:{WS+3}], s{S_T} offen offset:{64*j} sc1")
        A.vmem(f"buffer_load_dwordx4 {v(vB2+8,4)}, {v(t1)}, s[{B2}:{B2+3}], s{S_CO} offen")
        last["SM"] = A.vmem(f"buffer_load_dwordx4 {v(vB2+12,4)}, {v(t1)}, s[{B2}:{B2+3}], s{S_CO} offen offset:16")
    GX = (S_FLC, 8192 + 32)
    def poll_issue(): spoll_issue(A, S_FLW, 8192, extra=GX)
    def poll_finish():
        spoll_finish(A, S_FLW, 8192, extra=GX); STL(A, "poll O ok")
    A.wait_vm(last[("W", 0)])
    for at in reads2(0): at()
    for i in range(18):
        if fi < 18 and fi - NFS < i:
            if fi == 14: poll_finish(); small_loads()
            job_F(fi); fi += 1
        if wi < 18 and wi - NP2 < i:
            job_W(wi); wi += 1
        if i == OPT.get("pollO", 7): poll_issue()
        rd = []
        if i + 1 < 18:
            while wi <= i + 1:
                job_W(wi); wi += 1
            A.wait_vm(last[("W", i + 1)])
            rd = reads2(i + 1)
        A.wait_vm(last[("F", i)])
        STL(A, f"p2 step {i} ")
        if i == 14:
            A.wait_vm(last["SM"])
            for j in range(4): A(f"v_sub_f32 {v(vG+4+j)}, 1.0, {v(vG+j)}")
            for k in range(7):
                A(f"v_lshlrev_b32 {v(vB2+2*k)}, 16, {v(vB2+8+k)}")
                A(f"v_and_b32 {v(vB2+2*k+1)}, 0xffff0000, {v(vB2+8+k)}")
            A(f"v_lshlrev_b32 {v(vB2+14)}, 16, {v(vB2+15)}")
            A(f"v_and_b32 {v(vB2+15)}, 0xffff0000, {v(vB2+15)}")
            for r in range(0, 16, 2):
                for j in range(4):
                    A(f"v_pk_mul_f32 {v(ACB+16*j+r,2)}, {v(ACB+16*j+r,2)}, {v(vG+4+j-(j&1),2)} op_sel:[0,{j&1}] op_sel_hi:[1,{j&1}]")
            A("s_nop 1")
        if i == 17: break
        for t in range(4):
            A.wait_ds(rdt[(i, t)])
            for j in range(4):
                d = v(ACB + 16*j + 4*t, 4)
                A(f"v_mfma_f32_16x16x32_bf16 {d}, {v(aw2(i&1,t),4)}, {v(fa(i,j),4)}, {'0' if i == 0 else d}")
                if rd: rd.pop(0)()
    assert fi == 18 and wi == 18
    RP = [p2page(k) for k in range(3)]
    assert all(p2page(17) != p for p in RP)
    RV = RG if 17 % NFS >= 4 else RG + 32
    RV = RG
    for k in range(3): A(f"v_add_u32 {v(vPA+k)}, {RP[k]*PAGE}, {v(vFR)}")
    for k in range(3): A(f"v_add_u32 {v(vPA+3+k)}, s{S_M4}, {v(vPA+k)}")
    A.wait_ds_all()
    for w in range(4):
        if w < 3: A(f"s_cmp_lg_u32 s{S_W}, {w}\ns_cbranch_scc1 {kname}_w{w+1}")
        order = [(w + 1) & 3, (w + 2) & 3, (w + 3) & 3, w]
        wr = deque()
        for n, j in enumerate(order):
            for t in range(4):
                d = v(ACB + 16*j + 4*t, 4)
                A(f"v_mfma_f32_16x16x32_bf16 {d}, {v(aw2(1,t),4)}, {v(fa(17,j),4)}, {d}")
                if n >= 2 and wr: A(wr.popleft())
            if n < 3:
                k = (j - w - 1) & 3
                for t in range(4): wr.append(f"ds_write_b128 {v(vPA+3+k)}, {v(ACB+16*j+4*t,4)} offset:{t*1024}")
        A.nop(4)
        while wr: A(wr.popleft())
        A.nop(2)
        for r in range(16): A(f"v_fma_f32 {v(RV+r)}, {v(vG+4+w)}, {v(vB2+r)}, {v(ACB+16*w+r)}")
        A("s_waitcnt lgkmcnt(0)\ns_barrier")
        for k in range(3):
            srcw = (w - k - 1) & 3
            for t in range(4):
                A(f"ds_read_b128 {v(RV+16+16*k+4*t,4)}, {v(vPA+k)} offset:{srcw*4096 + t*1024}")
        if w < 3:
            A(f"s_branch {kname}_wd")
            A.label(f"{kname}_w{w+1}")
    A.label(f"{kname}_wd")
    A(f"v_mul_u32_u24 {v(t0)}, 896, {v(c16)}")
    A(f"v_add_u32 {v(t0)}, {v(t0)}, {v(t1)}")
    A(f"""s_lshl_b32 s{S_T}, s{S_TT}, 6
s_lshl_b32 s{S_T2}, s{S_W}, 4
s_add_u32 s{S_T}, s{S_T}, s{S_T2}
s_mul_i32 s{S_T}, s{S_T}, 896
s_add_u32 s{S_T}, s{S_T}, s{S_CO}""")
    for k in range(3):
        A(f"s_waitcnt lgkmcnt({8-4*k})")
        for r in range(0, 16, 2):
            A(f"v_pk_add_f32 {v(RV+r,2)}, {v(RV+r,2)}, {v(RV+16+16*k+r,2)}")
    for r in range(8):
        A(f"v_cvt_pk_bf16_f32 {v(WB+r)}, {v(RV+2*r)}, {v(RV+2*r+1)}")
    A(f"buffer_store_dwordx4 {v(WB,4)}, {v(t0)}, s[{OUT}:{OUT+3}], s{S_T} offen")
    A(f"buffer_store_dwordx4 {v(WB+4,4)}, {v(t0)}, s[{OUT}:{OUT+3}], s{S_T} offen offset:16")
    STL(A, "end")
    if OPT.get("minT", 0):
        A.label("Lhold")
        A(f"s_memrealtime s[72:73]\ns_waitcnt lgkmcnt(0)\ns_sub_u32 s72, s72, s{NON}\ns_cmp_lt_u32 s72, {OPT['minT']}\ns_cbranch_scc1 Lhold")
    A.label(f"{kname}_lfin")
    STL.dump(A, WS, S_W8, vL, vT)
    A("s_endpgm")

    A = C; last = {}
    A.label(f"{kname}_C")
    ST = lambda what: STC(A, what)
    S_FR, S_FLP, S_GT, S_OS, S_P = 48, 49, 50, 51, 52
    S_HS = 54
    vHA, vXA, vXO, vFRa, vFRb, vGA = 24, 28, 30, 32, 33, 34
    XT = 36
    vQA, vXH = 36, 45
    XR = 52; ACC = 164; WR = 228; NWR = 7
    def ax(ks, tb): return XR + 4 * (2 * ks + tb)
    def axa(ks, jj): return ax(ks, jj) if jj < 2 else XT + 8 * (ks & 1) + 4 * (jj - 2)
    def ach(jj, bb): return ACC + 4 * (4 * jj + bb)
    def acq(tb, t): return ACC + 4 * (6 * tb + t)
    ACC_HL = ACC + 48
    ACG = ACC + 52
    vBIAS = XR + 80; vRAW = XR + 64
    common2(A)
    A(f"v_lshl_add_u32 {v(t0)}, {v(vL)}, 2, {v(vFL)}")
    A(f"v_mov_b32 {v(t1)}, 0")
    A(f"s_mov_b64 vcc, 0x300c")
    A(f"v_cndmask_b32 {v(t1)}, {v(t1)}, -1, vcc")
    A("s_mov_b64 exec, 0x3ffff")
    A(f"ds_write_b32 {v(t0)}, {v(t1)}")
    A("s_mov_b64 exec, -1")
    A("s_waitcnt lgkmcnt(0)")
    A("s_barrier")
    if OPT.get("prio", 1): A("s_setprio 2")
    A(f"v_lshlrev_b32 {v(t1)}, 8, {v(r16)}")
    A(f"v_lshl_add_u32 {v(t1)}, {v(l3)}, 3, {v(t1)}")
    A(f"v_and_b32 {v(t0)}, 7, {v(r16)}")
    A(f"v_lshl_add_u32 {v(vHA)}, {v(t0)}, 5, {v(t1)}")
    A(f"s_and_b32 s{S_T}, s{S_W}, 1\ns_lshl_b32 s{S_T}, s{S_T}, 7")
    A(f"v_xor_b32 {v(vHA)}, s{S_T}, {v(vHA)}")
    for b in range(1, 4): A(f"v_xor_b32 {v(vHA+b)}, {32*b}, {v(vHA)}")
    A(f"v_xor_b32 {v(t0)}, {v(g)}, {v(l7)}")
    A(f"v_lshlrev_b32 {v(t1)}, 7, {v(c16)}")
    A(f"v_lshl_add_u32 {v(t1)}, {v(t0)}, 4, {v(t1)}")
    A(f"s_lshl_b32 s{S_T}, s{S_W}, 12\ns_add_u32 s{S_T2}, s{S_T}, {4*PAGE}")
    A(f"v_add_u32 {v(vXA)}, s{S_T2}, {v(t1)}")
    A(f"v_xor_b32 {v(vXA+1)}, 64, {v(vXA)}")
    A(f"v_xor_b32 {v(vXO)}, 0x1000, {v(vXA)}")
    A(f"v_xor_b32 {v(vXO+1)}, 64, {v(vXO)}")
    A(f"v_lshlrev_b32 {v(vGA)}, 4, {v(g)}")
    A(f"v_add_u32 {v(vGA)}, {L_GATE}, {v(vGA)}")
    A(f"s_and_b32 s{S_T}, s{S_W}, 1\ns_lshl_b32 s{S_T}, s{S_T}, 7\ns_add_u32 s{S_T}, s{S_T}, {L_BIAS}")
    A(f"v_lshlrev_b32 {v(WR)}, 3, {v(g)}")
    A(f"v_add_u32 {v(WR)}, s{S_T}, {v(WR)}")
    A(f"v_and_b32 {v(t0)}, 1, {v(c16)}")
    A(f"v_cmp_eq_u32 s[{MP}:{MP+1}], 1, {v(t0)}")
    A(f"v_lshl_add_u32 {v(t1)}, {v(g)}, 2, {v(t0)}")
    A(f"v_cmp_le_u32 s[{MA}:{MA+1}], {v(t1)}, {v(c16)}")
    A(f"v_add_u32 {v(t1)}, 2, {v(t1)}")
    A(f"v_cmp_le_u32 s[{MB}:{MB+1}], {v(t1)}, {v(c16)}")
    srd(A, WS, KA+22, WS_BYTES)
    A(f"""s_or_b32 s{S_T}, s{S_RB}, s{S_W}
s_cmp_eq_u32 s{S_T}, 0
s_cselect_b32 s{MFIRST}, -1, 0
s_cselect_b32 s{MFIRST+1}, -1, 0
s_lshl_b32 s{S_T}, s{S_RB}, 3
s_lshl_b32 s{S_T2}, s{S_W}, 1
s_add_u32 s{S_T}, s{S_T}, s{S_T2}
s_mul_i32 s{S_FR}, s{S_T}, {72*1024}
s_lshl_b32 s{S_GT}, s{S_T}, 6
s_add_u32 s{S_GT}, s{S_GT}, {WS_G}
s_xor_b32 s{S_T}, s{S_T}, 2
s_mul_i32 s{S_P}, s{S_T}, {72*1024}
s_lshl_b32 s{S_T}, s{S_HW}, 4
s_and_b32 s{S_T2}, s{S_W}, 1
s_lshl_b32 s{S_T2}, s{S_T2}, 11
s_add_u32 s{S_T}, s{S_T}, s{S_T2}
s_add_u32 s{S_HS}, s{S_FR}, s{S_T}
s_add_u32 s{S_HS+1}, s{S_HS}, 73728
s_add_u32 s{S_HS+2}, s{S_P}, s{S_T}
s_add_u32 s{S_HS+3}, s{S_HS+2}, 73728
s_and_b32 s{S_T}, s{S_HC}, 3
s_lshl_b32 s{S_T}, s{S_T}, 1
s_and_b32 s{S_T2}, s{S_W}, 1
s_add_u32 s{S_T}, s{S_T}, s{S_T2}
s_cmp_eq_u32 s{S_T}, 6
s_cselect_b32 s{S_T2}, 0x40000000, 0""")
    A(f"v_or_b32 {v(vFRa)}, s{S_T2}, {v(vFR)}")
    A(f"s_cmp_eq_u32 s{S_T}, 5\ns_cselect_b32 s{S_T2}, 0x40000000, 0")
    A(f"v_or_b32 {v(vFRb)}, s{S_T2}, {v(vFR)}")
    A(f"""s_lshl_b32 s{S_T}, s{S_HC}, 10
s_add_u32 s{S_OS}, s{S_FR}, s{S_T}
s_add_u32 s{S_OS}, s{S_OS}, {56*1024}
s_lshl_b32 s{S_T}, s{S_RB}, 1
s_lshr_b32 s{S_T2}, s{S_W}, 1
s_add_u32 s{S_T}, s{S_T}, s{S_T2}
s_lshl_b32 s{S_T}, s{S_T}, 4
s_add_u32 s{S_T}, s{S_T}, s{S_HC}
s_lshl_b32 s{S_T}, s{S_T}, 1
s_and_b32 s{S_T2}, s{S_W}, 1
s_add_u32 s{S_T}, s{S_T}, s{S_T2}
s_lshl_b32 s{S_T}, s{S_T}, 3
s_add_u32 s{S_FLP}, s{S_T}, {WS_FL}""")
    ST("pro done")
    busy = [False]; cold = []
    def acquire(u):
        lds_wait_min(A, 0, max(SEQ[lu] for lu in NEED[u]) + 1)
        ST(f"acq{u}")
    def acquire_atoms(u):
        val = max(SEQ[lu] for lu in NEED[u]) + 1
        sl, ok = newlab("as"), newlab("ak")
        tk = {}
        def a0(): tk["t"] = lds_flag_read(A, 0); busy[0] = True
        def a1(): A.wait_ds(tk["t"]); A(f"v_min_u32 {v(vFV)}, {v(vFV)}, {v(vFV+1)}\ns_nop 0")
        def a3(): A(f"v_readfirstlane_b32 s{S_T2}, {v(vFV)}\ns_cmp_ge_u32 s{S_T2}, {val}\ns_cbranch_scc0 {sl}"); A.label(ok); ST(f"acq{u}"); busy[0] = False
        cold.append(f"""{sl}:
    s_sleep 1
    ds_read_b128 {v(vFV,4)}, {v(vFL)}
    s_waitcnt lgkmcnt(0)
    v_min_u32 {v(vFV)}, {v(vFV)}, {v(vFV+1)}
    s_add_u32 s{S_SPIN}, s{S_SPIN}, 1
    v_readfirstlane_b32 s{S_T2}, {v(vFV)}
    s_cmp_ge_u32 s{S_T2}, {val}
    s_cbranch_scc1 {ok}
    s_cmp_lt_u32 s{S_SPIN}, 0x200000
    s_cbranch_scc1 {sl}
    s_branch {ok}""")
        return a0, [a1, a3]
    def release(u): lds_post(A, 16, UIDX[u] + 1)
    class Frag:
        def __init__(self, unit, reads, mf): self.unit = unit; self.reads = reads; self.mf = mf
    done = set()
    def run_frags(frags, LA, hooks={}, per_gap=2, late=None):
        n = len(frags); tk = [None]*n
        state = run_frags.seq
        q = deque(); early = {}
        for i in range(n):
            if frags[i].unit not in done and (i == 0 or frags[i-1].unit != frags[i].unit) and i >= 3:
                early[i] = acquire_atoms(frags[i].unit)
        def enqueue(i):
            f = frags[i]
            if i + 3 in early: q.append((None, early[i+3][0]))
            if f.unit not in done:
                done.add(f.unit)
                if i in early:
                    for at in early[i][1]: q.append((None, at))
                else: q.append((None, lambda u=f.unit: acquire(u)))
            rl = f.reads(WR + 4*((state + i) % NWR))
            for k, ins in enumerate(rl):
                def at(ins=ins, i=i): tk[i] = A.dsop(ins)
                q.append((i if k == len(rl) - 1 else None, at))
        enq = 0; emitted = -1
        for i in range(n):
            while enq < min(n, i + LA + 1):
                enqueue(enq); enq += 1
            while emitted < i:
                fi_, at = q.popleft(); at()
                if fi_ is not None: emitted = fi_
            ms = frags[i].mf(WR + 4*((state + i) % NWR))
            if ms: A.wait_ds(tk[i])
            for ins in ms:
                A(ins)
                for _ in range(per_gap):
                    if q:
                        fi_, at = q.popleft(); at()
                        if fi_ is not None: emitted = fi_
            if (i == n - 1 or frags[i+1].unit != frags[i].unit) and frags[i].unit != late:
                if not ms: A.wait_ds(tk[i])
                q.appendleft((None, lambda u=frags[i].unit: release(u)))
            if i in hooks:
                pass
                hooks[i]()
        while q: q.popleft()[1]()
        run_frags.seq = (state + n) % NWR
    run_frags.seq = 0
    def trr(dst, va, off): return f"ds_read_b64_tr_b16 {v(dst,2)}, {v(va)} offset:{off}"
    acquire(("A", 0)); done.add(("A", 0))
    for b in range(4): tkb = A.dsop(f"ds_read_b64 {v(vRAW+2*b,2)}, {v(WR)} offset:{32*b}")
    A.wait_ds(tkb)
    for i in range(8):
        A(f"v_lshlrev_b32 {v(vBIAS+2*i)}, 16, {v(vRAW+i)}")
        A(f"v_and_b32 {v(vBIAS+2*i+1)}, 0xffff0000, {v(vRAW+i)}")
    fr = []
    for ks in range(14):
        c, s2 = ks // 2, ks % 2
        for b in range(4):
            def reads(r, ks=ks, c=c, s2=s2, b=b):
                out = []
                if b == 0:
                    for jj in range(4):
                        out.append(f"ds_read_b128 {v(axa(ks,jj),4)}, {v((vXA if jj < 2 else vXO)+s2)} offset:{(page[('X',c)]-4)*PAGE + (jj&1)*2048}")
                return out + [trr(r + 2*hf, vHA + b, page[("H", c)]*PAGE + (32*s2 + 16*hf)*256) for hf in range(2)]
            def mf(r, ks=ks, b=b):
                return [f"v_mfma_f32_16x16x32_bf16 {v(ach(jj,b),4)}, {v(r,4)}, {v(axa(ks,jj),4)}, {v(ach(jj,b),4) if ks else v(vBIAS+4*b,4)}" for jj in range(4)]
            fr.append(Frag(("A", c), reads, mf))
    run_frags(fr, 4, hooks={32: lambda: nonce_load(A, last)}, late=("A", 6) if OPT.get("lateA6", 1) else None)
    ST("A done")
    for pp in range(2):
        for jj in range(4):
            for bb in (2*pp, 2*pp + 1):
                r = ach(jj, bb)
                for i in range(4): A(f"v_max_f32 {v(r+i)}, 0, {v(r+i)}")
                A(f"v_pk_mul_f32 {v(r,2)}, {v(r,2)}, {v(r,2)}")
                A(f"v_pk_mul_f32 {v(r+2,2)}, {v(r+2,2)}, {v(r+2,2)}")
                dst = ach(jj, 2*pp) + 2 * (bb & 1)
                A(f"v_cvt_pk_bf16_f32 {v(dst)}, {v(r)}, {v(r+1)}")
                A(f"v_cvt_pk_bf16_f32 {v(dst+1)}, {v(r+2)}, {v(r+3)}")
            A.vmem(f"buffer_store_dwordx4 {v(ach(jj,2*pp),4)}, {v(vFRb if pp else vFRa)}, s[{WS}:{WS+3}], s{S_HS+jj} offen offset:{1024*pp} sc1")
    if OPT.get("lateA6", 1): release(("A", 6))
    ST("H epi done")
    A(f"v_bfe_u32 {v(t0)}, {v(vL)}, 4, 1")
    A(f"v_lshlrev_b32 {v(vQA)}, 6, {v(r16)}")
    A(f"v_lshl_add_u32 {v(vQA)}, {v(t0)}, 5, {v(vQA)}")
    A(f"v_lshl_add_u32 {v(vQA)}, {v(l3)}, 3, {v(vQA)}")
    A(f"v_xor_b32 {v(vQA+1)}, 32, {v(vQA)}")
    A(f"""s_and_b32 s{S_T}, s{S_W}, 1
s_lshl_b32 s{S_T}, s{S_T}, 5
s_lshr_b32 s{S_T2}, s{S_W}, 1
s_lshl_b32 s{S_T2}, s{S_T2}, 12""")
    A(f"v_xor_b32 {v(vQA+2)}, s{S_T}, {v(vQA)}")
    A(f"v_add_u32 {v(vQA+2)}, s{S_T2}, {v(vQA+2)}")
    A(f"v_and_b32 {v(vXH)}, 0x7ff, {v(vXA)}")
    A(f"v_xor_b32 {v(vXH+1)}, 64, {v(vXH)}")
    for z in (1, 2):
        for i in range(3): A(f"v_add_u32 {v(vQA+3*z+i)}, {z*65536}, {v(vQA+i)}")
        for i in range(2): A(f"v_add_u32 {v(vXH+2*z+i)}, {z*65536}, {v(vXH+i)}")
    nonce_check(A, last)
    def pubH():
        A.wait_vm_all(); publish(A, S_FLP, 0); ST("H pub")
    fr = []
    for ks in range(14):
        c, s2 = ks // 2, ks % 2; pg = page[("Q", c)]; z = pg // 4; rel = (pg % 4) * PAGE
        hold = {}
        for f in range(9):
            def reads(r, ks=ks, s2=s2, f=f, z=z, rel=rel, hold=hold):
                if f == 6:
                    hold["x"] = r
                    return [f"ds_read_b128 {v(r,4)}, {v(vXH+2*z+s2)} offset:{rel + 12288}"]
                if f == 8: return [f"ds_read_b128 {v(r,4)}, {v(vGA)} offset:{64*ks}"]
                va = vQA + 3*z + (2 if f == 7 else (f & 1)); ro = 4096 if f == 7 else 4096*(f//2)
                return [trr(r + 2*hf, va, rel + ro + (32*s2 + 16*hf)*64) for hf in range(2)]
            def mf(r, ks=ks, f=f, hold=hold):
                if f == 6: return []
                if f == 7:
                    d = v(ACC_HL, 4)
                    return [f"v_mfma_f32_16x16x32_bf16 {d}, {v(r,4)}, {v(hold['x'],4)}, {d if ks else '0'}"]
                out = []
                for tb in range(2):
                    d = v(ACG + 4*tb, 4) if f == 8 else v(acq(tb, f), 4)
                    cc = d if ks else "0"
                    wf, xf = v(r, 4), v(ax(ks, tb), 4)
                    out.append(f"v_mfma_f32_16x16x32_bf16 {d}, {xf}, {wf}, {cc}" if f in (4, 5) else f"v_mfma_f32_16x16x32_bf16 {d}, {wf}, {xf}, {cc}")
                return out
            fr.append(Frag(("Q", c), reads, mf))
    PH = OPT.get("pubH", -1)
    if OPT.get("apub", 0):
        S_DONE = 53
        A(f"s_mov_b32 s{S_DONE}, 0")
        def chk():
            pl, bk = newlab("ap"), newlab("ab")
            A(f"s_getreg_b32 s{S_T}, hwreg(HW_REG_IB_STS)")
            A(f"s_and_b32 s{S_T}, s{S_T}, 0xc0000f")
            A(f"s_or_b32 s{S_T}, s{S_T}, s{S_DONE}")
            A(f"s_cbranch_scc0 {pl}")
            A.label(bk)
            cold.append(f"""{pl}:
    s_waitcnt vmcnt(0)
    v_mov_b32 {v(vN)}, s{NON}
    v_mov_b32 {v(vN+1)}, s{NON+1}
    s_mov_b32 s{S_DONE}, 1
    s_mov_b64 exec, 1
    buffer_store_dwordx2 {v(vN,2)}, {v(vZ)}, s[{WS}:{WS+3}], s{S_FLP} offen sc1
    s_mov_b64 exec, -1
    s_branch {bk}""")
        step = OPT["apub"]
        chk()
        run_frags(fr, NWR - 2, hooks={i: chk for i in range(step, 126, step)})
        lb = newlab("pd")
        A(f"s_cmp_lg_u32 s{S_DONE}, 0\ns_cbranch_scc1 {lb}")
        pubH()
        A.label(lb)
    else:
        if PH < 0: pubH()
        run_frags(fr, NWR - 2, hooks={} if PH < 0 else {PH: pubH})
    ST("B done")
    XCH = 8 * PAGE
    E = XR
    KP, QP, VP, HLP, vXCA = E, E + 12, E + 20, E + 32, E + 34
    SS = E + 40; TT_ = E + 56; PPp = E + 64; OO = E + 72; OP = E + 88
    vG3, vSEL = E + 96, E + 97
    u0, u1, u2 = E + 104, E + 105, E + 106
    tkc = lds_flag_read(A, 16)
    def pk(dst, src):
        A(f"v_cvt_pk_bf16_f32 {v(dst)}, {v(src)}, {v(src+1)}")
        A(f"v_cvt_pk_bf16_f32 {v(dst+1)}, {v(src+2)}, {v(src+3)}")
    A(f"s_lshl_b32 s{S_T}, s{S_W}, 11\ns_add_u32 s{S_T}, s{S_T}, {XCH}")
    A(f"v_add_u32 {v(vXCA)}, s{S_T}, {v(vFR)}")
    A(f"v_add_u32 {v(vXCA+1)}, s{S_T}, {v(vL8)}")
    pk(KP + 8, acq(1, 2)); pk(KP + 10, acq(1, 3))
    pk(VP + 4, acq(1, 4)); pk(VP + 10, acq(1, 5))
    lds_wait_min(A, 16, UIDX[("Q", 0)] + 1, tkc)
    pk(HLP, ACC_HL)
    A.dsop(f"ds_write_b128 {v(vXCA)}, {v(KP+8,4)} offset:2048")
    A.dsop(f"ds_write_b64 {v(vXCA+1)}, {v(VP+4,2)} offset:{2048+1024}")
    A.dsop(f"ds_write_b64 {v(vXCA+1)}, {v(VP+10,2)} offset:{2048+1536}")
    A(f"s_cmp_ge_u32 s{S_W}, 2\ns_cbranch_scc1 {kname}_hv")
    A(f"s_lshl_b32 s{S_T}, s{S_W}, 3\ns_add_u32 s{S_T}, s{S_T}, {XCH}")
    A(f"v_add_u32 {v(vXCA+2)}, s{S_T}, {v(vFR)}")
    A(f"ds_write_b64 {v(vXCA+2)}, {v(HLP,2)}")
    A(f"s_branch {kname}_hd")
    A.label(f"{kname}_hv")
    A(f"s_and_b32 s{S_T}, s{S_W}, 1\ns_lshl_b32 s{S_T}, s{S_T}, 9\ns_add_u32 s{S_T}, s{S_T}, {XCH+1024}")
    A(f"v_bfe_u32 {v(vXCA+2)}, {v(vL)}, 2, 2")
    A(f"v_lshlrev_b32 {v(vXCA+2)}, 7, {v(vXCA+2)}")
    A(f"v_lshl_add_u32 {v(vXCA+2)}, {v(g)}, 5, {v(vXCA+2)}")
    A(f"v_lshl_add_u32 {v(vXCA+2)}, {v(l3)}, 1, {v(vXCA+2)}")
    A(f"v_add_u32 {v(vXCA+2)}, s{S_T}, {v(vXCA+2)}")
    A(f"ds_write_b16 {v(vXCA+2)}, {v(HLP)}")
    A(f"ds_write_b16_d16_hi {v(vXCA+2)}, {v(HLP)} offset:8")
    A(f"ds_write_b16 {v(vXCA+2)}, {v(HLP+1)} offset:16")
    A(f"ds_write_b16_d16_hi {v(vXCA+2)}, {v(HLP+1)} offset:24")
    A.label(f"{kname}_hd")
    lds_post(A, 32, 1)
    A(f"v_cmp_eq_u32 vcc, 3, {v(g)}")
    A(f"v_mov_b32 {v(u0)}, 0x0c0c0100\nv_mov_b32 {v(u1)}, 0x01000c0c\nv_mov_b32 {v(u2)}, 0x0c0c0c0c")
    A(f"v_cndmask_b32 {v(vG3)}, -1, 0, vcc")
    A(f"v_cndmask_b32 {v(u0)}, {v(u0)}, {v(u1)}, s[{MP}:{MP+1}]")
    A(f"v_cndmask_b32 {v(vSEL+0)}, {v(u0)}, {v(u2)}, s[{MA}:{MA+1}]")
    A(f"v_cndmask_b32 {v(vSEL+2)}, {v(u2)}, {v(u0)}, s[{MA}:{MA+1}]")
    A(f"v_mov_b32 {v(u0)}, 0x0c0c0302\nv_mov_b32 {v(u1)}, 0x03020c0c")
    A(f"v_cndmask_b32 {v(u0)}, {v(u0)}, {v(u1)}, s[{MP}:{MP+1}]")
    A(f"v_cndmask_b32 {v(vSEL+1)}, {v(u0)}, {v(u2)}, s[{MB}:{MB+1}]")
    A(f"v_cndmask_b32 {v(vSEL+3)}, {v(u2)}, {v(u0)}, s[{MB}:{MB+1}]")
    for tb in range(2): A(f"v_mul_f32 {v(ACG+4*tb)}, 0xbfb8aa3b, {v(ACG+4*tb)}")
    for tb in range(2): A(f"v_exp_f32 {v(ACG+4*tb)}, {v(ACG+4*tb)}")
    A(f"v_lshrrev_b32 {v(ACG+1)}, 1, {v(vL8)}")
    for tb in range(2): A(f"v_add_f32 {v(ACG+4*tb)}, 1.0, {v(ACG+4*tb)}")
    for tb in range(2): A(f"v_rcp_f32 {v(ACG+4*tb)}, {v(ACG+4*tb)}")
    pk(KP + 4, acq(0, 2)); pk(KP + 6, acq(0, 3))
    pk(VP + 2, acq(0, 4)); pk(VP + 8, acq(0, 5))
    lb = newlab("g")
    A(f"s_cmp_lg_u32 s{S_HC}, 2\ns_cbranch_scc1 {lb}")
    A("s_mov_b64 exec, 0xffff")
    for tb in range(2): A(f"buffer_store_dword {v(ACG+4*tb)}, {v(ACG+1)}, s[{WS}:{WS+3}], s{S_GT} offen offset:{64*tb} sc1")
    A("s_mov_b64 exec, -1")
    A.label(lb)
    for tb in (1, 0):
        pk(QP + 4*tb, acq(tb, 0)); pk(QP + 2 + 4*tb, acq(tb, 1))
        A(f"v_and_b32 {v(QP+2+4*tb)}, {v(vG3)}, {v(QP+2+4*tb)}")
        A(f"v_and_b32 {v(QP+3+4*tb)}, {v(vG3)}, {v(QP+3+4*tb)}")
    A.wait_ds_all()
    lds_wait_min(A, 32, 1)
    A.dsop(f"ds_read_b128 {v(KP,4)}, {v(vXCA)}")
    A.dsop(f"ds_read_b64 {v(VP,2)}, {v(vXCA+1)} offset:1024")
    tkx = A.dsop(f"ds_read_b64 {v(VP+6,2)}, {v(vXCA+1)} offset:1536")
    A(f"s_add_u32 s{S_GT}, s{S_OS}, 73728")
    CSC = "0x3e8b97f6"
    def S_(tb, cur): return SS + 8*tb + 4*cur
    A(f"v_mfma_f32_16x16x32_bf16 {v(S_(1,0),4)}, {v(KP+4,4)}, {v(QP+4,4)}, 0")
    A(f"v_mfma_f32_16x16x32_bf16 {v(S_(1,1),4)}, {v(KP+8,4)}, {v(QP+4,4)}, 0")
    A(f"v_mfma_f32_16x16x32_bf16 {v(S_(0,1),4)}, {v(KP+4,4)}, {v(QP,4)}, 0")
    A.wait_ds(tkx)
    A(f"v_mfma_f32_16x16x32_bf16 {v(S_(0,0),4)}, {v(KP,4)}, {v(QP,4)}, 0")
    A(f"v_mov_b32 {v(u0)}, 0xf149f2ca")
    A.nop(5)
    def both(fn):
        for tb in (1, 0): fn(tb, TT_ + 4*tb, TT_ + 4*tb + 1, TT_ + 4*tb + 2, TT_ + 4*tb + 3)
    both(lambda tb, tA, tB, tC, tD: A(f"v_cndmask_b32 {v(tC)}, {v(S_(tb,1))}, {v(S_(tb,1)+1)}, s[{MP}:{MP+1}]\nv_cndmask_b32 {v(tD)}, {v(S_(tb,1)+2)}, {v(S_(tb,1)+3)}, s[{MP}:{MP+1}]"))
    both(lambda tb, tA, tB, tC, tD: A(f"v_cndmask_b32 {v(tA)}, {v(S_(tb,0))}, {v(S_(tb,0)+1)}, s[{MP}:{MP+1}]\nv_cndmask_b32 {v(tB)}, {v(S_(tb,0)+2)}, {v(S_(tb,0)+3)}, s[{MP}:{MP+1}]"))
    A(f"v_cndmask_b32 {v(TT_)}, {v(TT_)}, {v(u0)}, s[{MFIRST}:{MFIRST+1}]")
    A(f"v_cndmask_b32 {v(TT_+1)}, {v(TT_+1)}, {v(u0)}, s[{MFIRST}:{MFIRST+1}]")
    both(lambda tb, tA, tB, tC, tD: A(f"v_cndmask_b32 {v(tA)}, {v(tA)}, {v(tC)}, s[{MA}:{MA+1}]\nv_cndmask_b32 {v(tB)}, {v(tB)}, {v(tD)}, s[{MB}:{MB+1}]"))
    both(lambda tb, tA, tB, tC, tD: A(f"v_max_f32 {v(tC)}, {v(tA)}, {v(tB)}"))
    def xreduce(op):
        for sw in ("v_permlane16_swap_b32", "v_permlane32_swap_b32"):
            both(lambda tb, tA, tB, tC, tD: A(f"v_mov_b32 {v(tD)}, {v(tC)}"))
            A("s_nop 0")
            both(lambda tb, tA, tB, tC, tD: A(f"{sw} {v(tC)}, {v(tD)}"))
            A("s_nop 0")
            both(lambda tb, tA, tB, tC, tD: A(f"{op} {v(tC)}, {v(tC)}, {v(tD)}"))
    xreduce("v_max_f32")
    both(lambda tb, tA, tB, tC, tD: A(f"v_sub_f32 {v(tA)}, {v(tA)}, {v(tC)}\nv_sub_f32 {v(tB)}, {v(tB)}, {v(tC)}"))
    both(lambda tb, tA, tB, tC, tD: A(f"v_mul_f32 {v(tA)}, {CSC}, {v(tA)}\nv_mul_f32 {v(tB)}, {CSC}, {v(tB)}"))
    both(lambda tb, tA, tB, tC, tD: A(f"v_exp_f32 {v(tA)}, {v(tA)}\nv_exp_f32 {v(tB)}, {v(tB)}"))
    A("s_nop 0")
    both(lambda tb, tA, tB, tC, tD: A(f"v_add_f32 {v(tC)}, {v(tA)}, {v(tB)}"))
    xreduce("v_add_f32")
    both(lambda tb, tA, tB, tC, tD: A(f"v_rcp_f32 {v(tC)}, {v(tC)}"))
    A("s_nop 0")
    both(lambda tb, tA, tB, tC, tD: A(f"v_mul_f32 {v(tC)}, {v(tC)}, {v(ACG+4*tb)}"))
    both(lambda tb, tA, tB, tC, tD: A(f"v_mul_f32 {v(tA)}, {v(tA)}, {v(tC)}\nv_mul_f32 {v(tB)}, {v(tB)}, {v(tC)}"))
    both(lambda tb, tA, tB, tC, tD: A(f"v_cvt_pk_bf16_f32 {v(tA)}, {v(tA)}, {v(tB)}"))
    both(lambda tb, tA, tB, tC, tD: A("\n".join(f"v_perm_b32 {v(PPp+4*tb+i)}, {v(tA)}, {v(tA)}, {v(vSEL+i)}" for i in range(4))))
    A("s_nop 0")
    for tb in (1, 0):
        A(f"v_mfma_f32_16x16x32_bf16 {v(OO+8*tb,4)}, {v(VP+2*tb,4)}, {v(PPp+4*tb,4)}, 0")
        A(f"v_mfma_f32_16x16x32_bf16 {v(OO+8*tb+4,4)}, {v(VP+6+2*tb,4)}, {v(PPp+4*tb,4)}, 0")
    A.nop(6)
    for tb in (1, 0):
        op = OP + 4*tb
        pk(op, OO + 8*tb); pk(op + 2, OO + 8*tb + 4)
        A(f"v_and_b32 {v(op+2)}, {v(vG3)}, {v(op+2)}")
        A(f"v_and_b32 {v(op+3)}, {v(vG3)}, {v(op+3)}")
        A.vmem(f"buffer_store_dwordx4 {v(op,4)}, {v(vFR)}, s[{WS}:{WS+3}], s{S_OS if tb == 0 else S_GT} offen sc1")
    ST("attn done")
    A.wait_vm_all()
    publish(A, S_FLP, 8192)
    ST("O pub")
    STC.dump(A, WS, S_W8, vL, vT)
    A("s_endpgm")
    for cblk in cold: A.raw(cblk)
    A.label(f"{kname}_end")
    A("s_endpgm")
    return P.text() + L.text() + S.text() + Q.text() + C.text(), page, after

def desc(kname, nv, accoff, ns=102):
    return f""".amdhsa_kernel {kname}
  .amdhsa_next_free_vgpr {nv}
  .amdhsa_next_free_sgpr {ns}
  .amdhsa_accum_offset {accoff}
  .amdhsa_group_segment_fixed_size 0
  .amdhsa_kernarg_size 96
  .amdhsa_user_sgpr_count 2
  .amdhsa_user_sgpr_kernarg_segment_ptr 1
  .amdhsa_system_sgpr_workgroup_id_x 1
.end_amdhsa_kernel
"""

if __name__ == "__main__":
    out = sys.argv[1]
    STAMPS = "--stamps" in sys.argv
    for x in sys.argv[2:]:
        if "=" in x:
            k_, v_ = x.split("=", 1); OPT[k_] = v_.split(";") if k_.startswith("sel") else int(v_)
    k = NAME + "_kernel"
    t = f"; @launch grid=(256,1,1) block=(512,1,1) lds=163840\n"
    t += '.amdgcn_target "amdgcn-amd-amdhsa--gfx950"\n.text\n'
    body, page, after = gen(k)
    t += f".globl {k}\n.p2align 8\n.type {k},@function\n" + body
    t += '.section .rodata,"a"\n.p2align 6\n' + desc(k, 256, 256)
    open(out, "w").write(t)
```

```python
import sys
from collections import deque
from asmlib import Asm, v, a, s

NAME = "gated_mix__sliding_local_dilated__dense_activation_squared_relu__prompt"
WS_G = 128 * 72 * 1024
WS_FL = WS_G + 8192
WS_QR = WS_FL + 20480
WS_ST = WS_QR + 16 * 3 * 448 * 64
WS_BYTES = WS_ST + 262144
PAGE = 16384
L_BIAS = 8 * PAGE + 14336
L_GATE = L_BIAS + 256
L_DUM = L_GATE + 896
L_FLG = 8 * PAGE + 15872
STAMPS = False
OPT = {}

def srd(A, d, lo, nbytes):
    A(f"s_mov_b32 s{d}, s{lo}")
    A(f"s_and_b32 s{d+1}, s{lo+1}, 0xffff")
    A(f"s_mov_b32 s{d+2}, {nbytes}")
    A(f"s_mov_b32 s{d+3}, 0x20000")

class Stamper:
    def __init__(self, vreg, tag, pairs):
        self.n = 0; self.v = vreg; self.tag = tag; self.pairs = pairs
    def __call__(self, A, what=""):
        if not STAMPS: return
        sel = OPT.get("sel" + self.tag)
        if sel is not None and what != "start" and not any(what.startswith(x) for x in sel): return
        assert self.n < len(self.pairs), "too many stamps"
        p = self.pairs[self.n]
        A(f"s_memtime s[{p}:{p+1}]")
        print(f"stamp {self.tag} {self.n}: {what}")
        self.n += 1
    def dump(self, A, WS, S_W8, vL, vt):
        if not STAMPS: return
        A("s_mov_b64 exec, -1")
        A(f"v_mov_b32 v{self.v}, 0")
        A("s_waitcnt lgkmcnt(0)")
        A(f"v_writelane_b32 v{self.v}, s100, 62")
        A("s_memrealtime s[100:101]")
        A("s_waitcnt lgkmcnt(0)")
        A(f"v_writelane_b32 v{self.v}, s100, 63")
        for i in range(self.n): A(f"v_writelane_b32 v{self.v}, s{self.pairs[i]}, {i}")
        A(f"s_and_b32 s100, s{S_W8}, 3\ns_cmp_lg_u32 s100, {OPT.get('stw', 0)}\ns_cbranch_scc1 Lnodump{self.tag}")
        A(f"s_lshl_b32 s100, s2, 1\ns_add_u32 s100, s100, {0 if self.tag == 'C' else 1}\ns_lshl_b32 s100, s100, 8\ns_add_u32 s100, s100, {WS_ST}")
        A(f"v_lshlrev_b32 v{vt}, 2, v{vL}")
        A(f"buffer_store_dword v{self.v}, v{vt}, s[{WS}:{WS+3}], s100 offen")
        A.label(f"Lnodump{self.tag}")

UNITS = [("A", c) for c in range(7)] + [("Q", c) for c in range(7)]
UIDX = {u: i for i, u in enumerate(UNITS)}
NEED = {("A", c): [("H", c), ("X", c)] for c in range(7)}
NEED.update({("Q", c): [("Q", c)] for c in range(7)})
def make_plan():
    page = {}; after = {}; seq = []
    for c in range(7):
        page[("H", c)] = c % 4; page[("X", c)] = 4 + c % 4
        after[("H", c)] = after[("X", c)] = -1 if c < 4 else UIDX[("A", c - 4)]
        seq += [("H", c), ("X", c)]
    NWE = OPT.get("nwe", 3)
    free = [(-1, 9)]
    for c in range(3, 7): free += [(UIDX[("A", c)], c % 4), (UIDX[("A", c)], 4 + c % 4)]
    p2 = free[:NWE]; free = free[NWE:]
    for c in range(7):
        lu = ("Q", c)
        free.sort()
        rel, pg = (-1, 8) if c == 0 else free.pop(0)
        page[lu] = pg; after[lu] = rel
        if c: free.append((UIDX[lu], pg))
        seq.append(lu)
    free.sort()
    return page, after, seq, p2 + free

def gen(kname):
    page, after, seq, p2free = make_plan()
    SEQ = {lu: i for i, lu in enumerate(seq)}
    NL = len(seq)
    REPACK = OPT.get("repack", 1)
    S_W8, S_RB, S_HC, S_TT, S_CT = 3, 4, 5, 6, 7
    X, QKV, W1, WS, WO, W2, OUT, B1, GW, B2 = 8, 12, 16, 20, 24, 28, 32, 36, 40, 44
    KA = 48; DBG = 68
    MP, MA, MB, MFIRST, M32, NON = 72, 74, 76, 78, 80, 82
    S_T, S_T2, S_W, S_HW = 84, 85, 86, 87
    SW = 88; S_SPIN = 92; S_CB = 93; S_R1, S_R2, S_R3 = 94, 95, 96
    P = Asm(); C = Asm(); L = Asm(); S = Asm(); Q = Asm()
    vTID, vL, vFR, vST = 0, 1, 2, 3
    vZ, vL8, vN = 4, 5, 6
    vT = 8
    vFL, vFLW, vPV = 16, 17, 18
    vFV = 20
    c16, g, r8, l7, l3, r16, t0, t1 = [vT + i for i in range(8)]
    lab = [0]
    def newlab(t):
        lab[0] += 1; return f"L{t}{lab[0]}"
    STC = Stamper(vST, "C", [98, 8, 10, 12, 14, 16, 18, 24, 26, 28, 30, 32, 34, 36, 38, 40, 42, 44, 46, 60, 62, 64, 66, 88, 90, 94, 96])
    STL = Stamper(vST, "L", [98, 36, 38, 16, 18, 8, 10] if OPT.get("stlate", 0) else [98, 36, 38])

    A = P
    A.label(kname)
    A(f"s_cmp_ge_u32 s2, 256\ns_cbranch_scc1 {kname}_end")
    A(f"s_load_dwordx16 s[{KA}:{KA+15}], s[0:1], 0")
    A(f"s_load_dwordx8 s[{KA+16}:{KA+23}], s[0:1], 64")
    if STAMPS: A("s_memrealtime s[100:101]\ns_memtime s[98:99]"); STC.n = STL.n = 1; print("stamp C 0: start\nstamp L 0: start")
    A(f"v_lshrrev_b32 {v(vT)}, 6, {v(vTID)}")
    A(f"v_and_b32 {v(vL)}, 63, {v(vTID)}")
    A(f"v_readfirstlane_b32 s{S_W8}, {v(vT)}")
    A(f"v_lshlrev_b32 {v(vFR)}, 4, {v(vL)}")
    A(f"v_and_b32 {v(c16)}, 15, {v(vL)}")
    A(f"v_lshrrev_b32 {v(g)}, 4, {v(vL)}")
    A(f"v_lshrrev_b32 {v(r8)}, 3, {v(vL)}")
    A(f"v_and_b32 {v(l7)}, 7, {v(vL)}")
    A(f"""s_and_b32 s{S_W}, s{S_W8}, 3
s_lshr_b32 s{S_T}, s2, 3
s_and_b32 s{S_RB}, s2, 1
s_lshl_b32 s{S_RB}, s{S_RB}, 3
s_and_b32 s{S_T2}, s{S_T}, 7
s_add_u32 s{S_RB}, s{S_RB}, s{S_T2}
s_bfe_u32 s{S_HC}, s2, 0x20001
s_mul_i32 s{S_HW}, s{S_HC}, 896
s_lshl_b32 s{S_HC}, s{S_HC}, 2
s_lshr_b32 s{S_T2}, s{S_T}, 3
s_add_u32 s{S_HC}, s{S_HC}, s{S_T2}
s_lshl_b32 s{S_T}, s{S_T2}, 8
s_cmp_eq_u32 s{S_T2}, 3
s_cselect_b32 s{S_T}, 640, s{S_T}
s_add_u32 s{S_HW}, s{S_HW}, s{S_T}""")
    def common2(A):
        A(f"v_lshlrev_b32 {v(vL8)}, 3, {v(vL)}")
        A(f"v_mov_b32 {v(vZ)}, 0")
        A(f"v_mov_b32 {v(vFL)}, {L_FLG}")
        A(f"v_and_b32 {v(l3)}, 3, {v(vL)}")
        A(f"v_lshrrev_b32 {v(r16)}, 2, {v(vL)}")
        A(f"""s_and_b32 s{S_TT}, s2, 7
s_lshl_b32 s{S_TT}, s{S_TT}, 2
s_bfe_u32 s{S_T2}, s2, 0x20003
s_add_u32 s{S_TT}, s{S_TT}, s{S_T2}
s_lshr_b32 s{S_CT}, s2, 5
s_mov_b32 s{M32}, -1
s_mov_b32 s{M32+1}, 0
s_mov_b32 s{S_SPIN}, 0
s_lshl_b32 s{S_T}, s{S_W}, 2
s_add_u32 s{S_T}, s{S_T}, {L_FLG}""")
        A(f"v_lshlrev_b32 {v(vFLW)}, 2, {v(vL)}")
        A(f"v_add_u32 {v(vFLW)}, {L_DUM}, {v(vFLW)}")
        A(f"v_writelane_b32 {v(vFLW)}, s{S_T}, 0")
    A(f"s_cmp_ge_u32 s{S_W8}, 4\ns_cbranch_scc1 {kname}_C")
    A(f"s_cmp_ge_u32 s{S_W8}, 2\ns_cbranch_scc1 {kname}_S")

    def spin_guard(A, target):
        A(f"s_add_u32 s{S_SPIN}, s{S_SPIN}, 1\ns_cmp_lt_u32 s{S_SPIN}, 0x200000\ns_cbranch_scc1 {target}")
    def lds_post(A, off, val):
        A(f"v_mov_b32 {v(vPV)}, {val}")
        A.dsop(f"ds_max_u32 {v(vFLW)}, {v(vPV)} offset:{off}")
    def lds_flag_read(A, off):
        return A.dsop(f"ds_read_b128 {v(vFV,4)}, {v(vFL)} offset:{off}")
    def lds_wait_min(A, off, val, ticket=None, slow=None):
        lp, ok = newlab("lw"), newlab("lk")
        if ticket is None: ticket = lds_flag_read(A, off)
        A.wait_ds(ticket)
        def check():
            A(f"v_min3_u32 {v(vFV)}, {v(vFV)}, {v(vFV+1)}, {v(vFV+2)}")
            A(f"v_min_u32 {v(vFV)}, {v(vFV)}, {v(vFV+3)}")
            A("s_nop 0")
            A(f"v_readfirstlane_b32 s{S_T2}, {v(vFV)}")
            A(f"s_cmp_ge_u32 s{S_T2}, {val}\ns_cbranch_scc1 {ok}")
        if slow is not None:
            sv = (A.vm, A.vm_done, A.ds, A.ds_done)
            for step in slow():
                check()
                step()
                A(f"ds_read_b128 {v(vFV,4)}, {v(vFL)} offset:{off}\ns_waitcnt lgkmcnt(0)")
            A.vm, A.vm_done, A.ds, A.ds_done = sv
        A.label(lp)
        check()
        A(f"s_sleep 1\nds_read_b128 {v(vFV,4)}, {v(vFL)} offset:{off}\ns_waitcnt lgkmcnt(0)")
        spin_guard(A, lp)
        A.label(ok)
    def nonce_fetch(A):
        lp, ok = newlab("nf"), newlab("ng")
        A.label(lp)
        A(f"global_load_dwordx2 {v(vN,2)}, {v(vZ)}, s[{DBG}:{DBG+1}] sc1\ns_waitcnt vmcnt(0)")
        A(f"v_readfirstlane_b32 s{NON}, {v(vN)}")
        A(f"s_cmp_lg_u32 s{NON}, 0\ns_cbranch_scc1 {ok}")
        A("s_sleep 4")
        spin_guard(A, lp)
        A.label(ok)
        A(f"s_mov_b64 exec, 1\nds_write_b64 {v(vFL)}, {v(vN,2)} offset:64\ns_mov_b64 exec, -1")
    def nonce_load(A, last): pass
    def nonce_check(A, last):
        lp, ok = newlab("nc"), newlab("nk")
        A.label(lp)
        A(f"ds_read_b64 {v(vN,2)}, {v(vFL)} offset:64")
        A.wait_ds_all()
        A(f"v_readfirstlane_b32 s{NON}, {v(vN)}\nv_readfirstlane_b32 s{NON+1}, {v(vN+1)}")
        A(f"s_cmp_lg_u32 s{NON}, 0\ns_cbranch_scc1 {ok}")
        A("s_sleep 2")
        spin_guard(A, lp)
        A.label(ok)
    SP = 64
    WSP = 0
    def spoll_issue(A, sreg, off, n16=True, extra=None):
        A(f"s_add_u32 s{S_T}, s{sreg}, {off}")
        A(f"s_load_dwordx16 s[{SP}:{SP+15}], s[{WSP}:{WSP+1}], s{S_T} glc")
        if extra is not None:
            A(f"s_add_u32 s{S_T}, s{extra[0]}, {extra[1]}")
            A(f"s_load_dwordx4 s[{SW}:{SW+3}], s[{WSP}:{WSP+1}], s{S_T} glc")
    def spoll_finish(A, sreg, off, extra=None):
        lp, ok, rt = newlab("sp"), newlab("sk"), newlab("sr")
        A.label(lp)
        A.wait_ds_all()
        regs_ = [SP + 2*i for i in range(8)] + ([SW, SW + 2] if extra is not None else [])
        for r in regs_:
            A(f"s_cmp_eq_u64 s[{r}:{r+1}], s[{NON}:{NON+1}]\ns_cbranch_scc0 {rt}")
        A(f"s_branch {ok}")
        A.label(rt)
        A(f"s_sleep {OPT.get('psleep', 1)}")
        spoll_issue(A, sreg, off, extra=extra)
        spin_guard(A, lp)
        A("s_waitcnt lgkmcnt(0)")
        A.label(ok)
    def publish(A, sreg, off):
        A(f"v_mov_b32 {v(vN)}, s{NON}\nv_mov_b32 {v(vN+1)}, s{NON+1}")
        A(f"s_add_u32 s{S_T}, s{sreg}, {off}")
        A("s_mov_b64 exec, 1")
        A.vmem(f"buffer_store_dwordx2 {v(vN,2)}, {v(vZ)}, s[{WS}:{WS+3}], s{S_T} offen sc1")
        A("s_mov_b64 exec, -1")
    def rot_base(A, sdst, srot, idx, mod, mult, sadd):
        A(f"s_add_u32 s{sdst}, s{srot}, {idx}")
        A(f"s_sub_u32 s{S_T2}, s{sdst}, {mod}")
        A(f"s_cmp_ge_u32 s{sdst}, {mod}")
        A(f"s_cselect_b32 s{sdst}, s{S_T2}, s{sdst}")
        A(f"s_mul_i32 s{sdst}, s{sdst}, {mult}")
        A(f"s_add_u32 s{sdst}, s{sdst}, s{sadd}")
    def dma(A, m0reg, m0off, sreg, soff, va, sr, flags=""):
        A(f"s_add_u32 m0, s{m0reg}, {m0off}")
        A(f"s_add_u32 s{S_T}, s{sreg}, {soff}")
        return A.vmem(f"buffer_load_dwordx4 {v(va)}, s[{sr}:{sr+3}], s{S_T} offen {flags} lds")
    vD = 32
    def poll(A, tag, sreg, off, mask=None, wide=False):
        lp, ok = newlab("pl"), newlab("pk")
        A(f"s_add_u32 s{S_T}, s{sreg}, {off}")
        if not wide: A(f"s_mov_b64 exec, {mask}")
        A.label(lp)
        if wide:
            A(f"buffer_load_dwordx4 {v(vD+12,4)}, {v(vFR)}, s[{WS}:{WS+3}], s{S_T} offen sc1")
            A(f"buffer_load_dwordx4 {v(vD+16,4)}, {v(vFR)}, s[{WS}:{WS+3}], s{S_T} offen offset:768 sc1")
            A("s_waitcnt vmcnt(0)")
            A(f"v_cmp_ne_u64 vcc, s[{NON}:{NON+1}], {v(vD+12,2)}")
            for i in range(1, 4):
                A(f"v_cmp_ne_u64 s[{SW}:{SW+1}], s[{NON}:{NON+1}], {v(vD+12+2*i,2)}")
                A(f"s_or_b64 vcc, vcc, s[{SW}:{SW+1}]")
            A(f"s_cmp_eq_u64 vcc, 0\ns_cbranch_scc1 {ok}")
        else:
            A(f"buffer_load_dwordx2 {v(vD+12,2)}, {v(vL8)}, s[{WS}:{WS+3}], s{S_T} offen sc1")
            A("s_waitcnt vmcnt(0)")
            A(f"v_cmp_ne_u64 vcc, s[{NON}:{NON+1}], {v(vD+12,2)}")
            A(f"s_cbranch_vccz {ok}")
        A("s_sleep 8")
        spin_guard(A, lp)
        A.label(ok)
        A("s_mov_b64 exec, -1")
        A.vm_done = A.vm
    S_XO, S_HO, S_QO, S_XH, S_M4, S_M8, S_M2, S_FLC, S_FO, S_WOB, S_W2B, S_RF, S_M1, S_CO, S_FH, S_FOo = range(48, 64)
    vXD, vHD0, vHD1, vQD, vW2D, vRS, vRD = 24, 25, 26, 27, 28, 29, 30
    QROW = 64 if REPACK else 2688
    def lgroup_rest(A):
        srd(A, QKV, KA+2, 448 * 2688)
        srd(A, WO, KA+4, 448 * 896)
        srd(A, W2, KA+12, 1792 * 896)
        srd(A, GW, KA+16, 896)
        srd(A, B2, KA+14, 896)
        srd(A, OUT, KA+18, 2048 * 896)
        srd(A, WS, KA+22, WS_BYTES)
        A(f"s_mov_b64 s[{WSP}:{WSP+1}], s[{KA+22}:{KA+23}]")
    def p2_scalars(A):
        A(f"v_mul_u32_u24 {v(t1)}, 896, {v(r8)}")
        A(f"v_and_b32 {v(t0)}, 1, {v(g)}")
        A(f"v_xor_b32 {v(t0)}, {v(t0)}, {v(l7)}")
        A(f"v_lshl_add_u32 {v(vW2D)}, {v(t0)}, 4, {v(t1)}")
        A(f"""s_lshl_b32 s{S_M4}, s{S_W}, 12
s_lshl_b32 s{S_T}, s{S_TT}, 8
s_add_u32 s{S_FLC}, s{S_T}, {WS_FL}
s_mul_i32 s{S_FO}, s{S_TT}, {4*73728}
s_lshl_b32 s{S_CO}, s{S_CT}, 7
s_mul_i32 s{S_WOB}, s{S_W}, {112*896}
s_add_u32 s{S_WOB}, s{S_WOB}, s{S_CO}
s_mul_i32 s{S_W2B}, s{S_W}, {448*896}
s_add_u32 s{S_W2B}, s{S_W2B}, s{S_CO}
s_mul_i32 s{S_T}, s{S_W}, {14*1024}
s_add_u32 s{S_FH}, s{S_FO}, s{S_T}
s_add_u32 s{S_FOo}, s{S_FO}, s{S_M4}
s_add_u32 s{S_FOo}, s{S_FOo}, {56*1024}
s_and_b32 s{S_T}, s{S_TT}, 3
s_mul_i32 s{S_T}, s{S_T}, 7
s_add_u32 s{S_T}, s{S_T}, 1
s_lshr_b32 s{S_T}, s{S_T}, 1
s_lshl_b32 s{S_T2}, s{S_CT}, 1
s_add_u32 s{S_T}, s{S_T}, s{S_T2}
s_sub_u32 s{S_T2}, s{S_T}, 14
s_cmp_ge_u32 s{S_T}, 14
s_cselect_b32 s{S_R2}, s{S_T2}, s{S_T}
s_add_u32 s{S_T}, s{S_TT}, s{S_CT}
s_and_b32 s{S_R3}, s{S_T}, 3""")

    A = L; last = {}
    A(f"v_mul_u32_u24 {v(t1)}, 896, {v(r8)}")
    A(f"v_xor_b32 {v(t0)}, {v(l7)}, {v(r8)}")
    A(f"v_lshl_add_u32 {v(vXD)}, {v(t0)}, 4, {v(t1)}")
    A(f"v_mul_u32_u24 {v(t1)}, 3584, {v(g)}")
    A(f"v_lshlrev_b32 {v(t0)}, 1, {v(g)}")
    A(f"v_xor_b32 {v(t0)}, {v(t0)}, {v(c16)}")
    A(f"v_lshl_add_u32 {v(vHD0)}, {v(t0)}, 4, {v(t1)}")
    A(f"v_xor_b32 {v(vHD1)}, 0x80, {v(vHD0)}")
    A(f"""s_lshl_b32 s{S_T}, s{S_HC}, 1
s_add_u32 s{S_T}, s{S_T}, s{S_RB}
s_mul_i32 s{S_T2}, s{S_T}, 37
s_lshr_b32 s{S_T2}, s{S_T2}, 8
s_mul_i32 s{S_T2}, s{S_T2}, 7
s_sub_u32 s{S_R1}, s{S_T}, s{S_T2}
s_mul_i32 s{SW}, s{S_W}, {32*3584}
s_add_u32 s{SW}, s{SW}, s{S_HW}
s_lshl_b32 s{S_T}, s{S_RB}, 7
s_lshl_b32 s{S_T2}, s{S_W}, 6
s_add_u32 s{S_T2}, s{S_T}, s{S_T2}
s_mul_i32 s{SW+1}, s{S_T2}, 896
s_lshl_b32 s{SW+2}, s{S_W}, 13""")
    if not OPT.get("rot", 1): A(f"s_mov_b32 s{S_R1}, 0")
    A("s_waitcnt lgkmcnt(0)")
    srd(A, W1, KA+8, 448 * 3584)
    srd(A, X, KA, 2048 * 896)
    srd(A, B1, KA+10, 3584)
    regs = {"HO": SW, "XO": SW + 1, "M8": SW + 2}
    def load(lu):
        k, c = lu; pb = page[lu] * PAGE
        if k == "H":
            rot_base(A, S_CB, S_R1, c, 7, 64*3584, regs["HO"])
            for hf in range(2):
                for gi in range(4): t = dma(A, regs["M8"], pb + hf*4096 + gi*1024, S_CB, (8*gi + 4*hf)*3584, vHD1 if gi & 1 else vHD0, W1)
        elif k == "X":
            rot_base(A, S_CB, S_R1, c, 7, 128, regs["XO"])
            for q in range(8): t = dma(A, regs["M8"], pb + q*1024, S_CB, q*8*896, vXD, X)
        elif k == "Q":
            rot_base(A, S_CB, S_R1, c, 7, 4096 if REPACK else 172032, S_QO)
            for p in range(3):
                for hf in range(2):
                    if REPACK: dma(A, S_M2, pb + p*4096 + hf*1024, S_CB, WS_QR + p*448*64 + 4*hf*64, vQD, WS, "sc1")
                    else: dma(A, S_M2, pb + p*4096 + hf*1024, S_CB, 896*p + 4*hf*2688, vQD, QKV)
            rot_base(A, S_CB, S_R1, c, 7, 128, S_XH)
            t = dma(A, S_M1, pb + 12288, S_CB, 0, vXD, X)
        last[lu] = t
    lb = newlab("w0")
    A(f"s_cmp_lg_u32 s{S_W}, 0\ns_cbranch_scc1 {lb}")
    A(f"s_mov_b32 m0, {L_BIAS}\ns_mov_b64 exec, 0xffff")
    A(f"buffer_load_dwordx4 {v(vFR)}, s[{B1}:{B1+3}], s{S_HW} offen lds")
    A("s_mov_b64 exec, -1")
    A.label(lb)
    load(seq[0]); load(seq[1]); STL(A, "X0 iss")
    common2(A)
    A("s_barrier")
    lgroup_rest(A)
    A(f"s_mov_b32 s{S_HO}, s{SW}\ns_mov_b32 s{S_XO}, s{SW+1}\ns_mov_b32 s{S_M8}, s{SW+2}")
    regs.update({"HO": S_HO, "XO": S_XO, "M8": S_M8})
    load(seq[2]); load(seq[3])
    p2_scalars(A)
    A(f"""s_mul_i32 s{S_QO}, s{S_W}, {32*QROW}
s_mul_i32 s{S_T2}, s{S_HC}, {3*448*64 if REPACK else 56}
s_add_u32 s{S_QO}, s{S_QO}, s{S_T2}
s_lshl_b32 s{S_T}, s{S_RB}, 7
s_sub_i32 s{S_T}, s{S_T}, 16
s_max_i32 s{S_T}, s{S_T}, 0
s_lshl_b32 s{S_T2}, s{S_W}, 3
s_add_u32 s{S_T}, s{S_T}, s{S_T2}
s_mul_i32 s{S_XH}, s{S_T}, 896
s_lshl_b32 s{S_M2}, s{S_W}, 11
s_lshl_b32 s{S_M1}, s{S_W}, 10""")
    A(f"v_and_b32 {v(t0)}, 3, {v(r16)}")
    A(f"v_lshl_add_u32 {v(t0)}, {v(g)}, 3, {v(t0)}")
    A(f"v_mul_u32_u24 {v(vQD)}, {QROW}, {v(t0)}")
    A(f"v_and_b32 {v(t0)}, 1, {v(g)}")
    A(f"v_lshlrev_b32 {v(t1)}, 1, {v(t0)}")
    A(f"v_xor_b32 {v(t1)}, {v(t1)}, {v(l3)}")
    A(f"v_lshl_add_u32 {v(vQD)}, {v(t1)}, 4, {v(vQD)}")
    posted = [0]
    def post_upto(n):
        if n <= posted[0]: return
        A.wait_vm(last[seq[n-1]])
        lds_post(A, 0, n)
        posted[0] = n
        STL(A, f"post {seq[n-1]}")
    post_upto(2)
    LAG = OPT.get("lag", 3)
    released = [-1]; issued_n = [4]; relpre = {}
    def wait_release(A, r, slow=None):
        if r > released[0]:
            lds_wait_min(A, 16, r + 1, relpre.pop("t", None), slow=slow)
            released[0] = r
    def slow_post():
        steps = []
        for m in range(posted[0] + 1, issued_n[0] + 1):
            if seq[m-1][0] == "H": continue
            def st(m=m):
                A.wait_vm(last[seq[m-1]])
                lds_post(A, 0, m)
            steps.append(st)
        return steps
    DYN = OPT.get("dyn", 0)
    def post_dyn():
        A(f"s_getreg_b32 s{S_T}, hwreg(HW_REG_IB_STS)")
        A(f"s_lshr_b32 s{S_T2}, s{S_T}, 18\ns_and_b32 s{S_T2}, s{S_T2}, 0x30\ns_and_b32 s{S_T}, s{S_T}, 15\ns_or_b32 s{S_T}, s{S_T}, s{S_T2}")
        A(f"s_sub_i32 s{S_T}, {A.vm}, s{S_T}\ns_max_i32 s{S_T}, s{S_T}, 0\ns_lshr_b32 s{S_T}, s{S_T}, 3")
        A(f"v_mov_b32 {v(vPV)}, s{S_T}")
        A.dsop(f"ds_max_u32 {v(vFLW)}, {v(vPV)}")
    def wait_release_dyn(r):
        if r <= released[0]: return
        lp, ok = newlab("dw"), newlab("dk")
        tk = relpre.pop("t", None)
        if tk is None: tk = lds_flag_read(A, 16)
        A.wait_ds(tk)
        A.label(lp)
        A(f"v_min3_u32 {v(vFV)}, {v(vFV)}, {v(vFV+1)}, {v(vFV+2)}")
        A(f"v_min_u32 {v(vFV)}, {v(vFV)}, {v(vFV+3)}")
        A("s_nop 0")
        A(f"v_readfirstlane_b32 s{S_T2}, {v(vFV)}")
        A(f"s_cmp_ge_u32 s{S_T2}, {r+1}\ns_cbranch_scc1 {ok}")
        sv = (A.ds, A.ds_done)
        post_dyn()
        A.ds, A.ds_done = sv
        A(f"ds_read_b128 {v(vFV,4)}, {v(vFL)} offset:16\ns_waitcnt lgkmcnt(0)")
        spin_guard(A, lp)
        A.label(ok)
        released[0] = r
    for n in range(4, NL):
        lu = seq[n]
        if lu == ("Q", 0):
            if DYN:
                for m in range(n - 4, n + 1, 2): post_upto(m)
            post_upto(n)
            nonce_check(A, last)
            if REPACK:
                A(f"s_mov_b32 s{SW+2}, {WS_FL + 16384}")
                poll(A, "R", SW + 2, 0, wide=True); STL(A, "poll R ok")
            lb = newlab("w0")
            A(f"s_cmp_lg_u32 s{S_W}, 0\ns_cbranch_scc1 {lb}")
            A(f"s_lshl_b32 s{S_T}, s{S_R1}, 7")
            A(f"v_add_u32 {v(t0)}, s{S_T}, {v(vFR)}")
            A(f"v_subrev_u32 {v(t1)}, 896, {v(t0)}")
            A(f"v_min_u32 {v(t0)}, {v(t0)}, {v(t1)}")
            A(f"s_mov_b32 m0, {L_GATE}\ns_mov_b32 exec_hi, 0xffffff")
            A(f"buffer_load_dwordx4 {v(t0)}, s[{GW}:{GW+3}], 0 offen lds")
            A("s_mov_b32 exec_hi, -1")
            A.label(lb)
        if DYN and n < 14: wait_release_dyn(after[lu])
        else: wait_release(A, after[lu], slow_post)
        if n + 1 < NL and after[seq[n+1]] > released[0] and seq[n+1] != ("Q", 0): relpre["t"] = lds_flag_read(A, 16)
        load(lu); issued_n[0] = n + 1
        if DYN and n < 14:
            assert A.vm == 8 * (n + 1)
            post_dyn()
            continue
        m = n + 1 - LAG
        if m >= 2 and seq[m-1][0] != "H": post_upto(m)
    post_upto(NL)
    A(f"s_branch {kname}_P2")

    A = S; last = {}
    A.label(f"{kname}_S")
    common2(A)
    A("s_waitcnt lgkmcnt(0)")
    lb = newlab("n0")
    A(f"s_cmp_lg_u32 s2, 0\ns_cbranch_scc1 {lb}\ns_cmp_lg_u32 s{S_W}, 2\ns_cbranch_scc1 {lb}")
    A(f"s_memrealtime s[{NON}:{NON+1}]\ns_waitcnt lgkmcnt(0)\ns_or_b32 s{NON}, s{NON}, 1")
    A(f"v_mov_b32 {v(vN)}, s{NON}\nv_mov_b32 {v(vN+1)}, s{NON+1}")
    A("s_mov_b64 exec, 1")
    A(f"global_store_dwordx2 {v(vZ)}, {v(vN,2)}, s[{DBG}:{DBG+1}] sc1")
    A("s_mov_b64 exec, -1")
    A.label(lb)
    srd(A, W1, KA+8, 448 * 3584)
    srd(A, X, KA, 2048 * 896)
    lgroup_rest(A)
    A(f"s_getpc_b64 s[{SW}:{SW+1}]")
    A.label(f"{kname}_pc")
    A(f"s_sub_u32 s{SW}, s{SW}, {kname}_pc-{kname}\ns_subb_u32 s{SW+1}, s{SW+1}, 0")
    A(f"s_bfe_u32 s{S_T}, s2, 0x40003\ns_lshl_b32 s{S_T}, s{S_T}, 1\ns_and_b32 s{S_T2}, s{S_W}, 1\ns_add_u32 s{S_T}, s{S_T}, s{S_T2}\ns_lshl_b32 s{S_T}, s{S_T}, 10")
    A(f"v_add_u32 {v(t0)}, s{S_T}, {v(vFR)}")
    A(f"v_min_u32 {v(t0)}, {kname}_end-{kname}-16, {v(t0)}")
    A.vmem(f"global_load_dwordx4 {v(vD,4)}, {v(t0)}, s[{SW}:{SW+1}]")
    A("s_barrier")
    p2_scalars(A)
    vSPa, vSPb = 26, 27
    A(f"v_lshlrev_b32 {v(vSPa)}, 7, {v(vL)}")
    if OPT.get("m1", 1):
        srd(A, X, 100, 2048 * 896) if False else None
        A(f"s_and_b32 s{S_T}, s2, 1\ns_mul_i32 s{S_T}, s{S_T}, {1024*896}\ns_lshr_b32 s{S_T2}, s2, 3\ns_mul_i32 s{S_CB}, s{S_T2}, {224*128}\ns_add_u32 s{S_T}, s{S_T}, s{S_CB}")
        A(f"s_and_b32 s{S_CB}, s{S_W}, 1\ns_mul_i32 s{S_CB}, s{S_CB}, {112*128}\ns_add_u32 s{S_T}, s{S_T}, s{S_CB}")
        A.vmem(f"buffer_load_dword {v(vD)}, {v(vSPa)}, s[{X}:{X+3}], s{S_T} offen")
        A(f"s_add_u32 s{S_T}, s{S_T}, 8192\ns_mov_b32 exec_hi, 0xffff")
        A.vmem(f"buffer_load_dword {v(vD)}, {v(vSPa)}, s[{X}:{X+3}], s{S_T} offen")
        A("s_mov_b32 exec_hi, -1")
        A(f"v_mul_u32_u24 {v(t0)}, 9363, {v(vL)}")
        A(f"v_lshrrev_b32 {v(t0)}, 16, {v(t0)}")
        A(f"v_mul_u32_u24 {v(t0)}, {3584 - 896}, {v(t0)}")
        A(f"v_add_u32 {v(vSPb)}, {v(t0)}, {v(vSPa)}")
        A(f"s_lshl_b32 s{S_T2}, s{S_T2}, 1\ns_and_b32 s{S_CB}, s{S_W}, 1\ns_add_u32 s{S_T2}, s{S_T2}, s{S_CB}\ns_mul_i32 s{S_T}, s{S_T2}, {7*3584}")
        A(f"s_bfe_u32 s{S_CB}, s2, 0x20001\ns_mul_i32 s{S_CB}, s{S_CB}, 896\ns_add_u32 s{S_T}, s{S_T}, s{S_CB}\ns_mov_b32 exec_hi, 0x1ffff")
        A.vmem(f"buffer_load_dword {v(vD)}, {v(vSPb)}, s[{W1}:{W1+3}], s{S_T} offen")
        A("s_mov_b32 exec_hi, -1")
    RGs = 96
    if REPACK:
        A(f"v_bfe_u32 {v(t0)}, {v(vL)}, 2, 1")
        A(f"v_mul_u32_u24 {v(vRS)}, 2688, {v(t0)}")
        A(f"v_mul_u32_u24 {v(t1)}, 56, {v(r8)}")
        A(f"v_add_u32 {v(vRS)}, {v(vRS)}, {v(t1)}")
        A(f"v_lshl_add_u32 {v(vRS)}, {v(l3)}, 4, {v(vRS)}")
        A(f"v_mul_u32_u24 {v(vRD)}, {3*448*64}, {v(r8)}")
        A(f"v_lshl_add_u32 {v(vRD)}, {v(l7)}, 4, {v(vRD)}")
        A(f"s_cmp_ge_u32 s2, 224\ns_cselect_b32 s{S_T}, 0x40000000, 0")
        A(f"v_or_b32 {v(vRS)}, s{S_T}, {v(vRS)}")
        A(f"v_or_b32 {v(vRD)}, s{S_T}, {v(vRD)}")
        A(f"s_mul_i32 s{S_T}, s2, {2*2688}\ns_and_b32 s{S_T2}, s{S_W}, 1\ns_mul_i32 s{S_T2}, s{S_T2}, 1344\ns_add_u32 s{S_T}, s{S_T}, s{S_T2}")
        for k in range(3):
            last["RL"] = A.vmem(f"buffer_load_dwordx4 {v(RGs+4*k,4)}, {v(vRS)}, s[{QKV}:{QKV+3}], s{S_T} offen offset:{448*k}")
        nonce_load(A, last)
        dst = [(jj >> 1)*448*64 + (jj & 1)*8*3*448*64 for jj in range(6)]
        A(f"s_lshl_b32 s{S_CB}, s2, 7\ns_add_u32 s{S_CB}, s{S_CB}, {WS_QR}\ns_and_b32 s{SW+2}, s{S_W}, 1")
        A.wait_vm(last["RL"])
        for k in range(3):
            A(f"s_mul_i32 s{S_T}, s{SW+2}, {dst[3+k]-dst[k]}\ns_add_u32 s{S_T}, s{S_T}, {dst[k]}\ns_add_u32 s{S_T}, s{S_T}, s{S_CB}")
            A.vmem(f"buffer_store_dwordx4 {v(RGs+4*k,4)}, {v(vRD)}, s[{WS}:{WS+3}], s{S_T} offen sc1")
        lb = newlab("nw")
        A(f"s_cmp_lg_u32 s{S_W}, 3\ns_cbranch_scc1 {lb}")
        nonce_fetch(A)
        A.label(lb)
        A.wait_vm_all()
        lds_post(A, 48, 1)
        nonce_check(A, last)
        lb = newlab("rp")
        A(f"s_cmp_lg_u32 s{S_W}, 2\ns_cbranch_scc1 {lb}\ns_cmp_ge_u32 s2, 224\ns_cbranch_scc1 {lb}")
        sv = (A.vm, A.vm_done, A.ds, A.ds_done)
        lds_wait_min(A, 48, 1)
        A(f"s_lshl_b32 s{S_RF}, s2, 3\ns_add_u32 s{S_RF}, s{S_RF}, {WS_FL + 16384}")
        publish(A, S_RF, 0)
        A.vm, A.vm_done, A.ds, A.ds_done = sv
        A.label(lb)
        STL(A, "R pub")
    else:
        A(f"s_lshl_b32 s{S_T}, s2, 1\ns_and_b32 s{S_T2}, s{S_W}, 1\ns_add_u32 s{S_T}, s{S_T}, s{S_T2}\ns_mul_i32 s{S_T}, s{S_T}, 2432")
        if OPT.get("sweep", 1):
            for k in range(3): A.vmem(f"buffer_load_dwordx4 {v(vD,4)}, {v(vFR)}, s[{QKV}:{QKV+3}], s{S_T} offen offset:{1024*k}")
        lb = newlab("nw")
        A(f"s_cmp_lg_u32 s{S_W}, 3\ns_cbranch_scc1 {lb}")
        nonce_fetch(A)
        A.label(lb)
        nonce_check(A, last)
    if OPT.get("sweep", 0):
        A(f"s_lshl_b32 s{S_CB}, s2, 1\ns_and_b32 s{S_T2}, s{S_W}, 1\ns_add_u32 s{S_CB}, s{S_CB}, s{S_T2}\ns_mul_i32 s{S_T}, s{S_CB}, 3200")
        for k in range(4):
            if k == 3: A("s_mov_b64 exec, 0xff")
            A.vmem(f"buffer_load_dwordx4 {v(vD,4)}, {v(vFR)}, s[{W2}:{W2+3}], s{S_T} offen offset:{1024*k}")
        A(f"s_mov_b64 exec, -1\ns_mul_i32 s{S_T}, s{S_CB}, 896\ns_mov_b32 exec_hi, 0xffffff")
        A.vmem(f"buffer_load_dwordx4 {v(vD,4)}, {v(vFR)}, s[{WO}:{WO+3}], s{S_T} offen")
        A("s_mov_b32 exec_hi, -1")
    if OPT.get("l2w", 1):
        if OPT.get("l2c", 0): lds_wait_min(A, 16, OPT["l2c"])
        else: lds_wait_min(A, 0, OPT.get("l2at", 14))
        A(f"s_lshr_b32 s{S_T}, s2, 3\ns_lshl_b32 s{S_T}, s{S_T}, 1\ns_and_b32 s{S_T2}, s{S_W}, 1\ns_add_u32 s{S_T}, s{S_T}, s{S_T2}")
        A(f"s_mul_i32 s{S_CB}, s{S_T}, 25088\ns_mul_i32 s{S_T2}, s{S_T}, 6272")
        for k in range(4):
            if k: A(f"s_add_u32 s{S_CB}, s{S_CB}, 8192")
            if k == 3: A("s_mov_b64 exec, 0xf")
            A.vmem(f"buffer_load_dword {v(vD)}, {v(vSPa)}, s[{W2}:{W2+3}], s{S_CB} offen")
        A("s_mov_b32 exec_lo, -1\ns_mov_b32 exec_hi, 0x1ffff")
        A.vmem(f"buffer_load_dword {v(vD)}, {v(vSPa)}, s[{WO}:{WO+3}], s{S_T2} offen")
        A("s_mov_b64 exec, -1")
        STL(A, "l2w iss")
    A.wait_vm_all()

    A = Q; last = {}
    A.label(f"{kname}_P2")
    A(f"s_cmp_ge_u32 s{S_CT}, 7\ns_cbranch_scc1 {kname}_lfin")
    released[0] = -1; relpre.clear()
    NP2 = OPT.get("np2", 7)
    def p2page(i): return p2free[i % NP2][1]
    vPA = 32; vG = 40; vB2 = 48
    WB = 64; RG = 96; NFS = 6
    ACB = RG + 16 * NFS
    def fa(i, j): return RG + 16 * (i % NFS) + 4 * j
    def job_W(i):
        if i < NP2: wait_release(A, p2free[i][0])
        if i < 14: rot_base(A, S_CB, S_R2, i, 14, 32*896, S_W2B)
        else: rot_base(A, S_CB, S_R3, i - 14, 4, 28*896, S_WOB)
        for q in range(4):
            last[("W", i)] = dma(A, S_M4, p2page(i)*PAGE + q*1024, S_CB, 8*q*896, vW2D, W2 if i < 14 else WO)
    def job_F(i):
        if i < 14: rot_base(A, S_CB, S_R2, i, 14, 1024, S_FH)
        else: rot_base(A, S_CB, S_R3, i - 14, 4, 1024, S_FOo)
        for j in range(4):
            if j: A(f"s_add_u32 s{S_CB}, s{S_CB}, 73728")
            last[("F", i)] = A.vmem(f"buffer_load_dwordx4 {v(fa(i,j),4)}, {v(vFR)}, s[{WS}:{WS+3}], s{S_CB} offen sc1")
    NW0 = OPT.get("nw0", 3)
    if OPT.get("wat", 0): wait_release(A, OPT["wat"] - 1)
    for i in range(NW0): job_W(i)
    STL(A, "W0 iss")
    A(f"v_bfe_u32 {v(t0)}, {v(vL)}, 3, 1")
    A(f"v_lshl_add_u32 {v(t0)}, {v(l3)}, 1, {v(t0)}")
    A(f"v_lshlrev_b32 {v(t1)}, 7, {v(r16)}")
    A(f"v_lshl_add_u32 {v(t1)}, {v(t0)}, 4, {v(t1)}")
    S_FLW = S_RF
    A(f"s_lshl_b32 s{S_FLW}, s{S_W}, 6\ns_add_u32 s{S_FLW}, s{S_FLW}, s{S_FLC}")
    spoll_issue(A, S_FLW, 0); spoll_finish(A, S_FLW, 0); STL(A, "poll H ok")
    if OPT.get("prio2", 0) == 2: A("s_setprio 1")
    fi = 0; wi = NW0
    for i in range(NFS - 1):
        job_F(i); fi += 1
    A(f"v_add_u32 {v(vPA)}, s{S_M4}, {v(t1)}")
    A(f"v_xor_b32 {v(vPA+1)}, 16, {v(vPA)}")
    for z in (1, 2):
        for i in range(2): A(f"v_add_u32 {v(vPA+2*z+i)}, {z*65536}, {v(vPA+i)}")
    A(f"v_lshlrev_b32 {v(t1)}, 5, {v(g)}")
    def aw2(buf, t): return WB + 16*buf + 4*t
    rdt = {}
    def reads2(i):
        pg = p2page(i); z = pg // 4; rel = (pg % 4) * PAGE
        out = []
        for t in range(4):
            for hf in range(2):
                def at(t=t, hf=hf):
                    rdt[(i, t)] = A.dsop(f"ds_read_b64_tr_b16 {v(aw2(i&1,t)+2*hf,2)}, {v(vPA+2*z+(t>>1))} offset:{rel + hf*2048 + 8*(t&1)}")
                out.append(at)
        return out
    def small_loads():
        A(f"v_lshlrev_b32 {v(t0)}, 2, {v(c16)}")
        A(f"s_lshl_b32 s{S_T}, s{S_TT}, 8\ns_add_u32 s{S_T}, s{S_T}, {WS_G}")
        for j in range(4):
            A.vmem(f"buffer_load_dword {v(vG+j)}, {v(t0)}, s[{WS}:{WS+3}], s{S_T} offen offset:{64*j} sc1")
        A.vmem(f"buffer_load_dwordx4 {v(vB2+8,4)}, {v(t1)}, s[{B2}:{B2+3}], s{S_CO} offen")
        last["SM"] = A.vmem(f"buffer_load_dwordx4 {v(vB2+12,4)}, {v(t1)}, s[{B2}:{B2+3}], s{S_CO} offen offset:16")
    GX = (S_FLC, 8192 + 32)
    def poll_issue(): spoll_issue(A, S_FLW, 8192, extra=GX)
    def poll_finish():
        spoll_finish(A, S_FLW, 8192, extra=GX); STL(A, "poll O ok")
    A.wait_vm(last[("W", 0)])
    for at in reads2(0): at()
    for i in range(18):
        if fi < 18 and fi - NFS < i:
            if fi == 14: poll_finish(); small_loads()
            job_F(fi); fi += 1
        if wi < 18 and wi - NP2 < i:
            job_W(wi); wi += 1
        if i == OPT.get("pollO", 7): poll_issue()
        rd = []
        if i + 1 < 18:
            while wi <= i + 1:
                job_W(wi); wi += 1
            A.wait_vm(last[("W", i + 1)])
            rd = reads2(i + 1)
        A.wait_vm(last[("F", i)])
        STL(A, f"p2 step {i} ")
        if i == 14:
            A.wait_vm(last["SM"])
            for j in range(4): A(f"v_sub_f32 {v(vG+4+j)}, 1.0, {v(vG+j)}")
            for k in range(7):
                A(f"v_lshlrev_b32 {v(vB2+2*k)}, 16, {v(vB2+8+k)}")
                A(f"v_and_b32 {v(vB2+2*k+1)}, 0xffff0000, {v(vB2+8+k)}")
            A(f"v_lshlrev_b32 {v(vB2+14)}, 16, {v(vB2+15)}")
            A(f"v_and_b32 {v(vB2+15)}, 0xffff0000, {v(vB2+15)}")
            for r in range(0, 16, 2):
                for j in range(4):
                    A(f"v_pk_mul_f32 {v(ACB+16*j+r,2)}, {v(ACB+16*j+r,2)}, {v(vG+4+j-(j&1),2)} op_sel:[0,{j&1}] op_sel_hi:[1,{j&1}]")
            A("s_nop 1")
        if i == 17: break
        for t in range(4):
            A.wait_ds(rdt[(i, t)])
            for j in range(4):
                d = v(ACB + 16*j + 4*t, 4)
                A(f"v_mfma_f32_16x16x32_bf16 {d}, {v(aw2(i&1,t),4)}, {v(fa(i,j),4)}, {'0' if i == 0 else d}")
                if rd: rd.pop(0)()
    assert fi == 18 and wi == 18
    RP = [p2page(k) for k in range(3)]
    assert all(p2page(17) != p for p in RP)
    RV = RG if 17 % NFS >= 4 else RG + 32
    RV = RG
    for k in range(3): A(f"v_add_u32 {v(vPA+k)}, {RP[k]*PAGE}, {v(vFR)}")
    for k in range(3): A(f"v_add_u32 {v(vPA+3+k)}, s{S_M4}, {v(vPA+k)}")
    A.wait_ds_all()
    for w in range(4):
        if w < 3: A(f"s_cmp_lg_u32 s{S_W}, {w}\ns_cbranch_scc1 {kname}_w{w+1}")
        order = [(w + 1) & 3, (w + 2) & 3, (w + 3) & 3, w]
        wr = deque()
        for n, j in enumerate(order):
            for t in range(4):
                d = v(ACB + 16*j + 4*t, 4)
                A(f"v_mfma_f32_16x16x32_bf16 {d}, {v(aw2(1,t),4)}, {v(fa(17,j),4)}, {d}")
                if n >= 2 and wr: A(wr.popleft())
            if n < 3:
                k = (j - w - 1) & 3
                for t in range(4): wr.append(f"ds_write_b128 {v(vPA+3+k)}, {v(ACB+16*j+4*t,4)} offset:{t*1024}")
        A.nop(4)
        while wr: A(wr.popleft())
        A.nop(2)
        for r in range(16): A(f"v_fma_f32 {v(RV+r)}, {v(vG+4+w)}, {v(vB2+r)}, {v(ACB+16*w+r)}")
        A("s_waitcnt lgkmcnt(0)\ns_barrier")
        for k in range(3):
            srcw = (w - k - 1) & 3
            for t in range(4):
                A(f"ds_read_b128 {v(RV+16+16*k+4*t,4)}, {v(vPA+k)} offset:{srcw*4096 + t*1024}")
        if w < 3:
            A(f"s_branch {kname}_wd")
            A.label(f"{kname}_w{w+1}")
    A.label(f"{kname}_wd")
    A(f"v_mul_u32_u24 {v(t0)}, 896, {v(c16)}")
    A(f"v_add_u32 {v(t0)}, {v(t0)}, {v(t1)}")
    A(f"""s_lshl_b32 s{S_T}, s{S_TT}, 6
s_lshl_b32 s{S_T2}, s{S_W}, 4
s_add_u32 s{S_T}, s{S_T}, s{S_T2}
s_mul_i32 s{S_T}, s{S_T}, 896
s_add_u32 s{S_T}, s{S_T}, s{S_CO}""")
    for k in range(3):
        A(f"s_waitcnt lgkmcnt({8-4*k})")
        for r in range(0, 16, 2):
            A(f"v_pk_add_f32 {v(RV+r,2)}, {v(RV+r,2)}, {v(RV+16+16*k+r,2)}")
    for r in range(8):
        A(f"v_cvt_pk_bf16_f32 {v(WB+r)}, {v(RV+2*r)}, {v(RV+2*r+1)}")
    A(f"buffer_store_dwordx4 {v(WB,4)}, {v(t0)}, s[{OUT}:{OUT+3}], s{S_T} offen")
    A(f"buffer_store_dwordx4 {v(WB+4,4)}, {v(t0)}, s[{OUT}:{OUT+3}], s{S_T} offen offset:16")
    STL(A, "end")
    if OPT.get("minT", 0):
        A.label("Lhold")
        A(f"s_memrealtime s[72:73]\ns_waitcnt lgkmcnt(0)\ns_sub_u32 s72, s72, s{NON}\ns_cmp_lt_u32 s72, {OPT['minT']}\ns_cbranch_scc1 Lhold")
    A.label(f"{kname}_lfin")
    STL.dump(A, WS, S_W8, vL, vT)
    A("s_endpgm")

    A = C; last = {}
    A.label(f"{kname}_C")
    ST = lambda what: STC(A, what)
    S_FR, S_FLP, S_GT, S_OS, S_P = 48, 49, 50, 51, 52
    S_HS = 54
    vHA, vXA, vXO, vFRa, vFRb, vGA = 24, 28, 30, 32, 33, 34
    XT = 36
    vQA, vXH = 36, 45
    XR = 52; ACC = 164; WR = 228; NWR = 7
    def ax(ks, tb): return XR + 4 * (2 * ks + tb)
    def axa(ks, jj): return ax(ks, jj) if jj < 2 else XT + 8 * (ks & 1) + 4 * (jj - 2)
    def ach(jj, bb): return ACC + 4 * (4 * jj + bb)
    def acq(tb, t): return ACC + 4 * (6 * tb + t)
    ACC_HL = ACC + 48
    ACG = ACC + 52
    vBIAS = XR + 80; vRAW = XR + 64
    common2(A)
    A(f"v_lshl_add_u32 {v(t0)}, {v(vL)}, 2, {v(vFL)}")
    A(f"v_mov_b32 {v(t1)}, 0")
    A(f"s_mov_b64 vcc, 0x300c")
    A(f"v_cndmask_b32 {v(t1)}, {v(t1)}, -1, vcc")
    A("s_mov_b64 exec, 0x3ffff")
    A(f"ds_write_b32 {v(t0)}, {v(t1)}")
    A("s_mov_b64 exec, -1")
    A("s_waitcnt lgkmcnt(0)")
    A("s_barrier")
    if OPT.get("prio", 1): A("s_setprio 2")
    A(f"v_lshlrev_b32 {v(t1)}, 8, {v(r16)}")
    A(f"v_lshl_add_u32 {v(t1)}, {v(l3)}, 3, {v(t1)}")
    A(f"v_and_b32 {v(t0)}, 7, {v(r16)}")
    A(f"v_lshl_add_u32 {v(vHA)}, {v(t0)}, 5, {v(t1)}")
    A(f"s_and_b32 s{S_T}, s{S_W}, 1\ns_lshl_b32 s{S_T}, s{S_T}, 7")
    A(f"v_xor_b32 {v(vHA)}, s{S_T}, {v(vHA)}")
    for b in range(1, 4): A(f"v_xor_b32 {v(vHA+b)}, {32*b}, {v(vHA)}")
    A(f"v_xor_b32 {v(t0)}, {v(g)}, {v(l7)}")
    A(f"v_lshlrev_b32 {v(t1)}, 7, {v(c16)}")
    A(f"v_lshl_add_u32 {v(t1)}, {v(t0)}, 4, {v(t1)}")
    A(f"s_lshl_b32 s{S_T}, s{S_W}, 12\ns_add_u32 s{S_T2}, s{S_T}, {4*PAGE}")
    A(f"v_add_u32 {v(vXA)}, s{S_T2}, {v(t1)}")
    A(f"v_xor_b32 {v(vXA+1)}, 64, {v(vXA)}")
    A(f"v_xor_b32 {v(vXO)}, 0x1000, {v(vXA)}")
    A(f"v_xor_b32 {v(vXO+1)}, 64, {v(vXO)}")
    A(f"v_lshlrev_b32 {v(vGA)}, 4, {v(g)}")
    A(f"v_add_u32 {v(vGA)}, {L_GATE}, {v(vGA)}")
    A(f"s_and_b32 s{S_T}, s{S_W}, 1\ns_lshl_b32 s{S_T}, s{S_T}, 7\ns_add_u32 s{S_T}, s{S_T}, {L_BIAS}")
    A(f"v_lshlrev_b32 {v(WR)}, 3, {v(g)}")
    A(f"v_add_u32 {v(WR)}, s{S_T}, {v(WR)}")
    A(f"v_and_b32 {v(t0)}, 1, {v(c16)}")
    A(f"v_cmp_eq_u32 s[{MP}:{MP+1}], 1, {v(t0)}")
    A(f"v_lshl_add_u32 {v(t1)}, {v(g)}, 2, {v(t0)}")
    A(f"v_cmp_le_u32 s[{MA}:{MA+1}], {v(t1)}, {v(c16)}")
    A(f"v_add_u32 {v(t1)}, 2, {v(t1)}")
    A(f"v_cmp_le_u32 s[{MB}:{MB+1}], {v(t1)}, {v(c16)}")
    srd(A, WS, KA+22, WS_BYTES)
    A(f"""s_or_b32 s{S_T}, s{S_RB}, s{S_W}
s_cmp_eq_u32 s{S_T}, 0
s_cselect_b32 s{MFIRST}, -1, 0
s_cselect_b32 s{MFIRST+1}, -1, 0
s_lshl_b32 s{S_T}, s{S_RB}, 3
s_lshl_b32 s{S_T2}, s{S_W}, 1
s_add_u32 s{S_T}, s{S_T}, s{S_T2}
s_mul_i32 s{S_FR}, s{S_T}, {72*1024}
s_lshl_b32 s{S_GT}, s{S_T}, 6
s_add_u32 s{S_GT}, s{S_GT}, {WS_G}
s_xor_b32 s{S_T}, s{S_T}, 2
s_mul_i32 s{S_P}, s{S_T}, {72*1024}
s_lshl_b32 s{S_T}, s{S_HW}, 4
s_and_b32 s{S_T2}, s{S_W}, 1
s_lshl_b32 s{S_T2}, s{S_T2}, 11
s_add_u32 s{S_T}, s{S_T}, s{S_T2}
s_add_u32 s{S_HS}, s{S_FR}, s{S_T}
s_add_u32 s{S_HS+1}, s{S_HS}, 73728
s_add_u32 s{S_HS+2}, s{S_P}, s{S_T}
s_add_u32 s{S_HS+3}, s{S_HS+2}, 73728
s_and_b32 s{S_T}, s{S_HC}, 3
s_lshl_b32 s{S_T}, s{S_T}, 1
s_and_b32 s{S_T2}, s{S_W}, 1
s_add_u32 s{S_T}, s{S_T}, s{S_T2}
s_cmp_eq_u32 s{S_T}, 6
s_cselect_b32 s{S_T2}, 0x40000000, 0""")
    A(f"v_or_b32 {v(vFRa)}, s{S_T2}, {v(vFR)}")
    A(f"s_cmp_eq_u32 s{S_T}, 5\ns_cselect_b32 s{S_T2}, 0x40000000, 0")
    A(f"v_or_b32 {v(vFRb)}, s{S_T2}, {v(vFR)}")
    A(f"""s_lshl_b32 s{S_T}, s{S_HC}, 10
s_add_u32 s{S_OS}, s{S_FR}, s{S_T}
s_add_u32 s{S_OS}, s{S_OS}, {56*1024}
s_lshl_b32 s{S_T}, s{S_RB}, 1
s_lshr_b32 s{S_T2}, s{S_W}, 1
s_add_u32 s{S_T}, s{S_T}, s{S_T2}
s_lshl_b32 s{S_T}, s{S_T}, 4
s_add_u32 s{S_T}, s{S_T}, s{S_HC}
s_lshl_b32 s{S_T}, s{S_T}, 1
s_and_b32 s{S_T2}, s{S_W}, 1
s_add_u32 s{S_T}, s{S_T}, s{S_T2}
s_lshl_b32 s{S_T}, s{S_T}, 3
s_add_u32 s{S_FLP}, s{S_T}, {WS_FL}""")
    ST("pro done")
    busy = [False]; cold = []
    def acquire(u):
        lds_wait_min(A, 0, max(SEQ[lu] for lu in NEED[u]) + 1)
        ST(f"acq{u}")
    def acquire_atoms(u):
        val = max(SEQ[lu] for lu in NEED[u]) + 1
        sl, ok = newlab("as"), newlab("ak")
        tk = {}
        def a0(): tk["t"] = lds_flag_read(A, 0); busy[0] = True
        def a1(): A.wait_ds(tk["t"]); A(f"v_min_u32 {v(vFV)}, {v(vFV)}, {v(vFV+1)}\ns_nop 0")
        def a3(): A(f"v_readfirstlane_b32 s{S_T2}, {v(vFV)}\ns_cmp_ge_u32 s{S_T2}, {val}\ns_cbranch_scc0 {sl}"); A.label(ok); ST(f"acq{u}"); busy[0] = False
        cold.append(f"""{sl}:
    s_sleep 1
    ds_read_b128 {v(vFV,4)}, {v(vFL)}
    s_waitcnt lgkmcnt(0)
    v_min_u32 {v(vFV)}, {v(vFV)}, {v(vFV+1)}
    s_add_u32 s{S_SPIN}, s{S_SPIN}, 1
    v_readfirstlane_b32 s{S_T2}, {v(vFV)}
    s_cmp_ge_u32 s{S_T2}, {val}
    s_cbranch_scc1 {ok}
    s_cmp_lt_u32 s{S_SPIN}, 0x200000
    s_cbranch_scc1 {sl}
    s_branch {ok}""")
        return a0, [a1, a3]
    def release(u): lds_post(A, 16, UIDX[u] + 1)
    class Frag:
        def __init__(self, unit, reads, mf): self.unit = unit; self.reads = reads; self.mf = mf
    done = set()
    def run_frags(frags, LA, hooks={}, per_gap=2, late=None):
        n = len(frags); tk = [None]*n
        state = run_frags.seq
        q = deque(); early = {}
        for i in range(n):
            if frags[i].unit not in done and (i == 0 or frags[i-1].unit != frags[i].unit) and i >= 3:
                early[i] = acquire_atoms(frags[i].unit)
        def enqueue(i):
            f = frags[i]
            if i + 3 in early: q.append((None, early[i+3][0]))
            if f.unit not in done:
                done.add(f.unit)
                if i in early:
                    for at in early[i][1]: q.append((None, at))
                else: q.append((None, lambda u=f.unit: acquire(u)))
            rl = f.reads(WR + 4*((state + i) % NWR))
            for k, ins in enumerate(rl):
                def at(ins=ins, i=i): tk[i] = A.dsop(ins)
                q.append((i if k == len(rl) - 1 else None, at))
        enq = 0; emitted = -1
        for i in range(n):
            while enq < min(n, i + LA + 1):
                enqueue(enq); enq += 1
            while emitted < i:
                fi_, at = q.popleft(); at()
                if fi_ is not None: emitted = fi_
            ms = frags[i].mf(WR + 4*((state + i) % NWR))
            if ms: A.wait_ds(tk[i])
            for ins in ms:
                A(ins)
                for _ in range(per_gap):
                    if q:
                        fi_, at = q.popleft(); at()
                        if fi_ is not None: emitted = fi_
            if (i == n - 1 or frags[i+1].unit != frags[i].unit) and frags[i].unit != late:
                if not ms: A.wait_ds(tk[i])
                q.appendleft((None, lambda u=frags[i].unit: release(u)))
            if i in hooks:
                pass
                hooks[i]()
        while q: q.popleft()[1]()
        run_frags.seq = (state + n) % NWR
    run_frags.seq = 0
    def trr(dst, va, off): return f"ds_read_b64_tr_b16 {v(dst,2)}, {v(va)} offset:{off}"
    acquire(("A", 0)); done.add(("A", 0))
    for b in range(4): tkb = A.dsop(f"ds_read_b64 {v(vRAW+2*b,2)}, {v(WR)} offset:{32*b}")
    A.wait_ds(tkb)
    for i in range(8):
        A(f"v_lshlrev_b32 {v(vBIAS+2*i)}, 16, {v(vRAW+i)}")
        A(f"v_and_b32 {v(vBIAS+2*i+1)}, 0xffff0000, {v(vRAW+i)}")
    fr = []
    for ks in range(14):
        c, s2 = ks // 2, ks % 2
        for b in range(4):
            def reads(r, ks=ks, c=c, s2=s2, b=b):
                out = []
                if b == 0:
                    for jj in range(4):
                        out.append(f"ds_read_b128 {v(axa(ks,jj),4)}, {v((vXA if jj < 2 else vXO)+s2)} offset:{(page[('X',c)]-4)*PAGE + (jj&1)*2048}")
                return out + [trr(r + 2*hf, vHA + b, page[("H", c)]*PAGE + (32*s2 + 16*hf)*256) for hf in range(2)]
            def mf(r, ks=ks, b=b):
                return [f"v_mfma_f32_16x16x32_bf16 {v(ach(jj,b),4)}, {v(r,4)}, {v(axa(ks,jj),4)}, {v(ach(jj,b),4) if ks else v(vBIAS+4*b,4)}" for jj in range(4)]
            fr.append(Frag(("A", c), reads, mf))
    run_frags(fr, 4, hooks={32: lambda: nonce_load(A, last)}, late=("A", 6) if OPT.get("lateA6", 1) else None)
    ST("A done")
    for pp in range(2):
        for jj in range(4):
            for bb in (2*pp, 2*pp + 1):
                r = ach(jj, bb)
                for i in range(4): A(f"v_max_f32 {v(r+i)}, 0, {v(r+i)}")
                A(f"v_pk_mul_f32 {v(r,2)}, {v(r,2)}, {v(r,2)}")
                A(f"v_pk_mul_f32 {v(r+2,2)}, {v(r+2,2)}, {v(r+2,2)}")
                dst = ach(jj, 2*pp) + 2 * (bb & 1)
                A(f"v_cvt_pk_bf16_f32 {v(dst)}, {v(r)}, {v(r+1)}")
                A(f"v_cvt_pk_bf16_f32 {v(dst+1)}, {v(r+2)}, {v(r+3)}")
            A.vmem(f"buffer_store_dwordx4 {v(ach(jj,2*pp),4)}, {v(vFRb if pp else vFRa)}, s[{WS}:{WS+3}], s{S_HS+jj} offen offset:{1024*pp} sc1")
    if OPT.get("lateA6", 1): release(("A", 6))
    ST("H epi done")
    A(f"v_bfe_u32 {v(t0)}, {v(vL)}, 4, 1")
    A(f"v_lshlrev_b32 {v(vQA)}, 6, {v(r16)}")
    A(f"v_lshl_add_u32 {v(vQA)}, {v(t0)}, 5, {v(vQA)}")
    A(f"v_lshl_add_u32 {v(vQA)}, {v(l3)}, 3, {v(vQA)}")
    A(f"v_xor_b32 {v(vQA+1)}, 32, {v(vQA)}")
    A(f"""s_and_b32 s{S_T}, s{S_W}, 1
s_lshl_b32 s{S_T}, s{S_T}, 5
s_lshr_b32 s{S_T2}, s{S_W}, 1
s_lshl_b32 s{S_T2}, s{S_T2}, 12""")
    A(f"v_xor_b32 {v(vQA+2)}, s{S_T}, {v(vQA)}")
    A(f"v_add_u32 {v(vQA+2)}, s{S_T2}, {v(vQA+2)}")
    A(f"v_and_b32 {v(vXH)}, 0x7ff, {v(vXA)}")
    A(f"v_xor_b32 {v(vXH+1)}, 64, {v(vXH)}")
    for z in (1, 2):
        for i in range(3): A(f"v_add_u32 {v(vQA+3*z+i)}, {z*65536}, {v(vQA+i)}")
        for i in range(2): A(f"v_add_u32 {v(vXH+2*z+i)}, {z*65536}, {v(vXH+i)}")
    nonce_check(A, last)
    def pubH():
        A.wait_vm_all(); publish(A, S_FLP, 0); ST("H pub")
    fr = []
    for ks in range(14):
        c, s2 = ks // 2, ks % 2; pg = page[("Q", c)]; z = pg // 4; rel = (pg % 4) * PAGE
        hold = {}
        for f in range(9):
            def reads(r, ks=ks, s2=s2, f=f, z=z, rel=rel, hold=hold):
                if f == 6:
                    hold["x"] = r
                    return [f"ds_read_b128 {v(r,4)}, {v(vXH+2*z+s2)} offset:{rel + 12288}"]
                if f == 8: return [f"ds_read_b128 {v(r,4)}, {v(vGA)} offset:{64*ks}"]
                va = vQA + 3*z + (2 if f == 7 else (f & 1)); ro = 4096 if f == 7 else 4096*(f//2)
                return [trr(r + 2*hf, va, rel + ro + (32*s2 + 16*hf)*64) for hf in range(2)]
            def mf(r, ks=ks, f=f, hold=hold):
                if f == 6: return []
                if f == 7:
                    d = v(ACC_HL, 4)
                    return [f"v_mfma_f32_16x16x32_bf16 {d}, {v(r,4)}, {v(hold['x'],4)}, {d if ks else '0'}"]
                out = []
                for tb in range(2):
                    d = v(ACG + 4*tb, 4) if f == 8 else v(acq(tb, f), 4)
                    cc = d if ks else "0"
                    wf, xf = v(r, 4), v(ax(ks, tb), 4)
                    out.append(f"v_mfma_f32_16x16x32_bf16 {d}, {xf}, {wf}, {cc}" if f in (4, 5) else f"v_mfma_f32_16x16x32_bf16 {d}, {wf}, {xf}, {cc}")
                return out
            fr.append(Frag(("Q", c), reads, mf))
    PH = OPT.get("pubH", -1)
    if OPT.get("apub", 0):
        S_DONE = 53
        A(f"s_mov_b32 s{S_DONE}, 0")
        def chk():
            pl, bk = newlab("ap"), newlab("ab")
            A(f"s_getreg_b32 s{S_T}, hwreg(HW_REG_IB_STS)")
            A(f"s_and_b32 s{S_T}, s{S_T}, 0xc0000f")
            A(f"s_or_b32 s{S_T}, s{S_T}, s{S_DONE}")
            A(f"s_cbranch_scc0 {pl}")
            A.label(bk)
            cold.append(f"""{pl}:
    s_waitcnt vmcnt(0)
    v_mov_b32 {v(vN)}, s{NON}
    v_mov_b32 {v(vN+1)}, s{NON+1}
    s_mov_b32 s{S_DONE}, 1
    s_mov_b64 exec, 1
    buffer_store_dwordx2 {v(vN,2)}, {v(vZ)}, s[{WS}:{WS+3}], s{S_FLP} offen sc1
    s_mov_b64 exec, -1
    s_branch {bk}""")
        step = OPT["apub"]
        chk()
        run_frags(fr, NWR - 2, hooks={i: chk for i in range(step, 126, step)})
        lb = newlab("pd")
        A(f"s_cmp_lg_u32 s{S_DONE}, 0\ns_cbranch_scc1 {lb}")
        pubH()
        A.label(lb)
    else:
        if PH < 0: pubH()
        run_frags(fr, NWR - 2, hooks={} if PH < 0 else {PH: pubH})
    ST("B done")
    XCH = 8 * PAGE
    E = XR
    KP, QP, VP, HLP, vXCA = E, E + 12, E + 20, E + 32, E + 34
    SS = E + 40; TT_ = E + 56; PPp = E + 64; OO = E + 72; OP = E + 88
    vG3, vSEL = E + 96, E + 97
    u0, u1, u2 = E + 104, E + 105, E + 106
    tkc = lds_flag_read(A, 16)
    def pk(dst, src):
        A(f"v_cvt_pk_bf16_f32 {v(dst)}, {v(src)}, {v(src+1)}")
        A(f"v_cvt_pk_bf16_f32 {v(dst+1)}, {v(src+2)}, {v(src+3)}")
    A(f"s_lshl_b32 s{S_T}, s{S_W}, 11\ns_add_u32 s{S_T}, s{S_T}, {XCH}")
    A(f"v_add_u32 {v(vXCA)}, s{S_T}, {v(vFR)}")
    A(f"v_add_u32 {v(vXCA+1)}, s{S_T}, {v(vL8)}")
    pk(KP + 8, acq(1, 2)); pk(KP + 10, acq(1, 3))
    pk(VP + 4, acq(1, 4)); pk(VP + 10, acq(1, 5))
    lds_wait_min(A, 16, UIDX[("Q", 0)] + 1, tkc)
    pk(HLP, ACC_HL)
    A.dsop(f"ds_write_b128 {v(vXCA)}, {v(KP+8,4)} offset:2048")
    A.dsop(f"ds_write_b64 {v(vXCA+1)}, {v(VP+4,2)} offset:{2048+1024}")
    A.dsop(f"ds_write_b64 {v(vXCA+1)}, {v(VP+10,2)} offset:{2048+1536}")
    A(f"s_cmp_ge_u32 s{S_W}, 2\ns_cbranch_scc1 {kname}_hv")
    A(f"s_lshl_b32 s{S_T}, s{S_W}, 3\ns_add_u32 s{S_T}, s{S_T}, {XCH}")
    A(f"v_add_u32 {v(vXCA+2)}, s{S_T}, {v(vFR)}")
    A(f"ds_write_b64 {v(vXCA+2)}, {v(HLP,2)}")
    A(f"s_branch {kname}_hd")
    A.label(f"{kname}_hv")
    A(f"s_and_b32 s{S_T}, s{S_W}, 1\ns_lshl_b32 s{S_T}, s{S_T}, 9\ns_add_u32 s{S_T}, s{S_T}, {XCH+1024}")
    A(f"v_bfe_u32 {v(vXCA+2)}, {v(vL)}, 2, 2")
    A(f"v_lshlrev_b32 {v(vXCA+2)}, 7, {v(vXCA+2)}")
    A(f"v_lshl_add_u32 {v(vXCA+2)}, {v(g)}, 5, {v(vXCA+2)}")
    A(f"v_lshl_add_u32 {v(vXCA+2)}, {v(l3)}, 1, {v(vXCA+2)}")
    A(f"v_add_u32 {v(vXCA+2)}, s{S_T}, {v(vXCA+2)}")
    A(f"ds_write_b16 {v(vXCA+2)}, {v(HLP)}")
    A(f"ds_write_b16_d16_hi {v(vXCA+2)}, {v(HLP)} offset:8")
    A(f"ds_write_b16 {v(vXCA+2)}, {v(HLP+1)} offset:16")
    A(f"ds_write_b16_d16_hi {v(vXCA+2)}, {v(HLP+1)} offset:24")
    A.label(f"{kname}_hd")
    lds_post(A, 32, 1)
    A(f"v_cmp_eq_u32 vcc, 3, {v(g)}")
    A(f"v_mov_b32 {v(u0)}, 0x0c0c0100\nv_mov_b32 {v(u1)}, 0x01000c0c\nv_mov_b32 {v(u2)}, 0x0c0c0c0c")
    A(f"v_cndmask_b32 {v(vG3)}, -1, 0, vcc")
    A(f"v_cndmask_b32 {v(u0)}, {v(u0)}, {v(u1)}, s[{MP}:{MP+1}]")
    A(f"v_cndmask_b32 {v(vSEL+0)}, {v(u0)}, {v(u2)}, s[{MA}:{MA+1}]")
    A(f"v_cndmask_b32 {v(vSEL+2)}, {v(u2)}, {v(u0)}, s[{MA}:{MA+1}]")
    A(f"v_mov_b32 {v(u0)}, 0x0c0c0302\nv_mov_b32 {v(u1)}, 0x03020c0c")
    A(f"v_cndmask_b32 {v(u0)}, {v(u0)}, {v(u1)}, s[{MP}:{MP+1}]")
    A(f"v_cndmask_b32 {v(vSEL+1)}, {v(u0)}, {v(u2)}, s[{MB}:{MB+1}]")
    A(f"v_cndmask_b32 {v(vSEL+3)}, {v(u2)}, {v(u0)}, s[{MB}:{MB+1}]")
    for tb in range(2): A(f"v_mul_f32 {v(ACG+4*tb)}, 0xbfb8aa3b, {v(ACG+4*tb)}")
    for tb in range(2): A(f"v_exp_f32 {v(ACG+4*tb)}, {v(ACG+4*tb)}")
    A(f"v_lshrrev_b32 {v(ACG+1)}, 1, {v(vL8)}")
    for tb in range(2): A(f"v_add_f32 {v(ACG+4*tb)}, 1.0, {v(ACG+4*tb)}")
    for tb in range(2): A(f"v_rcp_f32 {v(ACG+4*tb)}, {v(ACG+4*tb)}")
    pk(KP + 4, acq(0, 2)); pk(KP + 6, acq(0, 3))
    pk(VP + 2, acq(0, 4)); pk(VP + 8, acq(0, 5))
    lb = newlab("g")
    A(f"s_cmp_lg_u32 s{S_HC}, 2\ns_cbranch_scc1 {lb}")
    A("s_mov_b64 exec, 0xffff")
    for tb in range(2): A(f"buffer_store_dword {v(ACG+4*tb)}, {v(ACG+1)}, s[{WS}:{WS+3}], s{S_GT} offen offset:{64*tb} sc1")
    A("s_mov_b64 exec, -1")
    A.label(lb)
    for tb in (1, 0):
        pk(QP + 4*tb, acq(tb, 0)); pk(QP + 2 + 4*tb, acq(tb, 1))
        A(f"v_and_b32 {v(QP+2+4*tb)}, {v(vG3)}, {v(QP+2+4*tb)}")
        A(f"v_and_b32 {v(QP+3+4*tb)}, {v(vG3)}, {v(QP+3+4*tb)}")
    A.wait_ds_all()
    lds_wait_min(A, 32, 1)
    A.dsop(f"ds_read_b128 {v(KP,4)}, {v(vXCA)}")
    A.dsop(f"ds_read_b64 {v(VP,2)}, {v(vXCA+1)} offset:1024")
    tkx = A.dsop(f"ds_read_b64 {v(VP+6,2)}, {v(vXCA+1)} offset:1536")
    A(f"s_add_u32 s{S_GT}, s{S_OS}, 73728")
    CSC = "0x3e8b97f6"
    def S_(tb, cur): return SS + 8*tb + 4*cur
    A(f"v_mfma_f32_16x16x32_bf16 {v(S_(1,0),4)}, {v(KP+4,4)}, {v(QP+4,4)}, 0")
    A(f"v_mfma_f32_16x16x32_bf16 {v(S_(1,1),4)}, {v(KP+8,4)}, {v(QP+4,4)}, 0")
    A(f"v_mfma_f32_16x16x32_bf16 {v(S_(0,1),4)}, {v(KP+4,4)}, {v(QP,4)}, 0")
    A.wait_ds(tkx)
    A(f"v_mfma_f32_16x16x32_bf16 {v(S_(0,0),4)}, {v(KP,4)}, {v(QP,4)}, 0")
    A(f"v_mov_b32 {v(u0)}, 0xf149f2ca")
    A.nop(5)
    def both(fn):
        for tb in (1, 0): fn(tb, TT_ + 4*tb, TT_ + 4*tb + 1, TT_ + 4*tb + 2, TT_ + 4*tb + 3)
    both(lambda tb, tA, tB, tC, tD: A(f"v_cndmask_b32 {v(tC)}, {v(S_(tb,1))}, {v(S_(tb,1)+1)}, s[{MP}:{MP+1}]\nv_cndmask_b32 {v(tD)}, {v(S_(tb,1)+2)}, {v(S_(tb,1)+3)}, s[{MP}:{MP+1}]"))
    both(lambda tb, tA, tB, tC, tD: A(f"v_cndmask_b32 {v(tA)}, {v(S_(tb,0))}, {v(S_(tb,0)+1)}, s[{MP}:{MP+1}]\nv_cndmask_b32 {v(tB)}, {v(S_(tb,0)+2)}, {v(S_(tb,0)+3)}, s[{MP}:{MP+1}]"))
    A(f"v_cndmask_b32 {v(TT_)}, {v(TT_)}, {v(u0)}, s[{MFIRST}:{MFIRST+1}]")
    A(f"v_cndmask_b32 {v(TT_+1)}, {v(TT_+1)}, {v(u0)}, s[{MFIRST}:{MFIRST+1}]")
    both(lambda tb, tA, tB, tC, tD: A(f"v_cndmask_b32 {v(tA)}, {v(tA)}, {v(tC)}, s[{MA}:{MA+1}]\nv_cndmask_b32 {v(tB)}, {v(tB)}, {v(tD)}, s[{MB}:{MB+1}]"))
    both(lambda tb, tA, tB, tC, tD: A(f"v_max_f32 {v(tC)}, {v(tA)}, {v(tB)}"))
    def xreduce(op):
        for sw in ("v_permlane16_swap_b32", "v_permlane32_swap_b32"):
            both(lambda tb, tA, tB, tC, tD: A(f"v_mov_b32 {v(tD)}, {v(tC)}"))
            A("s_nop 0")
            both(lambda tb, tA, tB, tC, tD: A(f"{sw} {v(tC)}, {v(tD)}"))
            A("s_nop 0")
            both(lambda tb, tA, tB, tC, tD: A(f"{op} {v(tC)}, {v(tC)}, {v(tD)}"))
    xreduce("v_max_f32")
    both(lambda tb, tA, tB, tC, tD: A(f"v_sub_f32 {v(tA)}, {v(tA)}, {v(tC)}\nv_sub_f32 {v(tB)}, {v(tB)}, {v(tC)}"))
    both(lambda tb, tA, tB, tC, tD: A(f"v_mul_f32 {v(tA)}, {CSC}, {v(tA)}\nv_mul_f32 {v(tB)}, {CSC}, {v(tB)}"))
    both(lambda tb, tA, tB, tC, tD: A(f"v_exp_f32 {v(tA)}, {v(tA)}\nv_exp_f32 {v(tB)}, {v(tB)}"))
    A("s_nop 0")
    both(lambda tb, tA, tB, tC, tD: A(f"v_add_f32 {v(tC)}, {v(tA)}, {v(tB)}"))
    xreduce("v_add_f32")
    both(lambda tb, tA, tB, tC, tD: A(f"v_rcp_f32 {v(tC)}, {v(tC)}"))
    A("s_nop 0")
    both(lambda tb, tA, tB, tC, tD: A(f"v_mul_f32 {v(tC)}, {v(tC)}, {v(ACG+4*tb)}"))
    both(lambda tb, tA, tB, tC, tD: A(f"v_mul_f32 {v(tA)}, {v(tA)}, {v(tC)}\nv_mul_f32 {v(tB)}, {v(tB)}, {v(tC)}"))
    both(lambda tb, tA, tB, tC, tD: A(f"v_cvt_pk_bf16_f32 {v(tA)}, {v(tA)}, {v(tB)}"))
    both(lambda tb, tA, tB, tC, tD: A("\n".join(f"v_perm_b32 {v(PPp+4*tb+i)}, {v(tA)}, {v(tA)}, {v(vSEL+i)}" for i in range(4))))
    A("s_nop 0")
    for tb in (1, 0):
        A(f"v_mfma_f32_16x16x32_bf16 {v(OO+8*tb,4)}, {v(VP+2*tb,4)}, {v(PPp+4*tb,4)}, 0")
        A(f"v_mfma_f32_16x16x32_bf16 {v(OO+8*tb+4,4)}, {v(VP+6+2*tb,4)}, {v(PPp+4*tb,4)}, 0")
    A.nop(6)
    for tb in (1, 0):
        op = OP + 4*tb
        pk(op, OO + 8*tb); pk(op + 2, OO + 8*tb + 4)
        A(f"v_and_b32 {v(op+2)}, {v(vG3)}, {v(op+2)}")
        A(f"v_and_b32 {v(op+3)}, {v(vG3)}, {v(op+3)}")
        A.vmem(f"buffer_store_dwordx4 {v(op,4)}, {v(vFR)}, s[{WS}:{WS+3}], s{S_OS if tb == 0 else S_GT} offen sc1")
    ST("attn done")
    A.wait_vm_all()
    publish(A, S_FLP, 8192)
    ST("O pub")
    STC.dump(A, WS, S_W8, vL, vT)
    A("s_endpgm")
    for cblk in cold: A.raw(cblk)
    A.label(f"{kname}_end")
    A("s_endpgm")
    return P.text() + L.text() + S.text() + Q.text() + C.text(), page, after

def desc(kname, nv, accoff, ns=102):
    return f""".amdhsa_kernel {kname}
  .amdhsa_next_free_vgpr {nv}
  .amdhsa_next_free_sgpr {ns}
  .amdhsa_accum_offset {accoff}
  .amdhsa_group_segment_fixed_size 0
  .amdhsa_kernarg_size 96
  .amdhsa_user_sgpr_count 2
  .amdhsa_user_sgpr_kernarg_segment_ptr 1
  .amdhsa_system_sgpr_workgroup_id_x 1
.end_amdhsa_kernel
"""

if __name__ == "__main__":
    out = sys.argv[1]
    STAMPS = "--stamps" in sys.argv
    for x in sys.argv[2:]:
        if "=" in x:
            k_, v_ = x.split("=", 1); OPT[k_] = v_.split(";") if k_.startswith("sel") else int(v_)
    k = NAME + "_kernel"
    t = f"; @launch grid=(256,1,1) block=(512,1,1) lds=163840\n"
    t += '.amdgcn_target "amdgcn-amd-amdhsa--gfx950"\n.text\n'
    body, page, after = gen(k)
    t += f".globl {k}\n.p2align 8\n.type {k},@function\n" + body
    t += '.section .rodata,"a"\n.p2align 6\n' + desc(k, 256, 256)
    open(out, "w").write(t)
```

```python
import sys
from collections import deque
from asmlib import Asm, v, a, s

NAME = "gated_mix__sliding_local_dilated__dense_activation_squared_relu__prompt"
WS_G = 128 * 72 * 1024
WS_FL = WS_G + 8192
WS_QR = WS_FL + 20480
WS_ST = WS_QR + 16 * 3 * 448 * 64
WS_BYTES = WS_ST + 262144
PAGE = 16384
L_BIAS = 8 * PAGE + 14336
L_GATE = L_BIAS + 256
L_DUM = L_GATE + 896
L_FLG = 8 * PAGE + 15872
STAMPS = False
OPT = {}

def srd(A, d, lo, nbytes):
    A(f"s_mov_b32 s{d}, s{lo}")
    A(f"s_and_b32 s{d+1}, s{lo+1}, 0xffff")
    A(f"s_mov_b32 s{d+2}, {nbytes}")
    A(f"s_mov_b32 s{d+3}, 0x20000")

class Stamper:
    def __init__(self, vreg, tag, pairs):
        self.n = 0; self.v = vreg; self.tag = tag; self.pairs = pairs
    def __call__(self, A, what=""):
        if not STAMPS: return
        sel = OPT.get("sel" + self.tag)
        if sel is not None and what != "start" and not any(what.startswith(x) for x in sel): return
        assert self.n < len(self.pairs), "too many stamps"
        p = self.pairs[self.n]
        A(f"s_memtime s[{p}:{p+1}]")
        print(f"stamp {self.tag} {self.n}: {what}")
        self.n += 1
    def dump(self, A, WS, S_W8, vL, vt):
        if not STAMPS: return
        A("s_mov_b64 exec, -1")
        A(f"v_mov_b32 v{self.v}, 0")
        A("s_waitcnt lgkmcnt(0)")
        A(f"v_writelane_b32 v{self.v}, s100, 62")
        A("s_memrealtime s[100:101]")
        A("s_waitcnt lgkmcnt(0)")
        A(f"v_writelane_b32 v{self.v}, s100, 63")
        for i in range(self.n): A(f"v_writelane_b32 v{self.v}, s{self.pairs[i]}, {i}")
        A(f"s_and_b32 s100, s{S_W8}, 3\ns_cmp_lg_u32 s100, {OPT.get('stw', 0)}\ns_cbranch_scc1 Lnodump{self.tag}")
        A(f"s_lshl_b32 s100, s2, 1\ns_add_u32 s100, s100, {0 if self.tag == 'C' else 1}\ns_lshl_b32 s100, s100, 8\ns_add_u32 s100, s100, {WS_ST}")
        A(f"v_lshlrev_b32 v{vt}, 2, v{vL}")
        A(f"buffer_store_dword v{self.v}, v{vt}, s[{WS}:{WS+3}], s100 offen")
        A.label(f"Lnodump{self.tag}")

UNITS = [("A", c) for c in range(7)] + [("Q", c) for c in range(7)]
UIDX = {u: i for i, u in enumerate(UNITS)}
NEED = {("A", c): [("H", c), ("X", c)] for c in range(7)}
NEED.update({("Q", c): [("Q", c)] for c in range(7)})
def make_plan():
    page = {}; after = {}; seq = []
    for c in range(7):
        page[("H", c)] = c % 4; page[("X", c)] = 4 + c % 4
        after[("H", c)] = after[("X", c)] = -1 if c < 4 else UIDX[("A", c - 4)]
        seq += [("H", c), ("X", c)]
    NWE = OPT.get("nwe", 3)
    free = [(-1, 9)]
    for c in range(3, 7): free += [(UIDX[("A", c)], c % 4), (UIDX[("A", c)], 4 + c % 4)]
    p2 = free[:NWE]; free = free[NWE:]
    for c in range(7):
        lu = ("Q", c)
        free.sort()
        rel, pg = (-1, 8) if c == 0 else free.pop(0)
        page[lu] = pg; after[lu] = rel
        if c: free.append((UIDX[lu], pg))
        seq.append(lu)
    free.sort()
    return page, after, seq, p2 + free

def gen(kname):
    page, after, seq, p2free = make_plan()
    SEQ = {lu: i for i, lu in enumerate(seq)}
    NL = len(seq)
    REPACK = OPT.get("repack", 1)
    S_W8, S_RB, S_HC, S_TT, S_CT = 3, 4, 5, 6, 7
    X, QKV, W1, WS, WO, W2, OUT, B1, GW, B2 = 8, 12, 16, 20, 24, 28, 32, 36, 40, 44
    KA = 48; DBG = 68
    MP, MA, MB, MFIRST, M32, NON = 72, 74, 76, 78, 80, 82
    S_T, S_T2, S_W, S_HW = 84, 85, 86, 87
    SW = 88; S_SPIN = 92; S_CB = 93; S_R1, S_R2, S_R3 = 94, 95, 96
    P = Asm(); C = Asm(); L = Asm(); S = Asm(); Q = Asm()
    vTID, vL, vFR, vST = 0, 1, 2, 3
    vZ, vL8, vN = 4, 5, 6
    vT = 8
    vFL, vFLW, vPV = 16, 17, 18
    vFV = 20
    c16, g, r8, l7, l3, r16, t0, t1 = [vT + i for i in range(8)]
    lab = [0]
    def newlab(t):
        lab[0] += 1; return f"L{t}{lab[0]}"
    STC = Stamper(vST, "C", [98, 8, 10, 12, 14, 16, 18, 24, 26, 28, 30, 32, 34, 36, 38, 40, 42, 44, 46, 60, 62, 64, 66, 88, 90, 94, 96])
    STL = Stamper(vST, "L", [98, 36, 38, 16, 18, 8, 10] if OPT.get("stlate", 0) else [98, 36, 38])

    A = P
    A.label(kname)
    A(f"s_cmp_ge_u32 s2, 256\ns_cbranch_scc1 {kname}_end")
    A(f"s_load_dwordx16 s[{KA}:{KA+15}], s[0:1], 0")
    A(f"s_load_dwordx8 s[{KA+16}:{KA+23}], s[0:1], 64")
    if STAMPS: A("s_memrealtime s[100:101]\ns_memtime s[98:99]"); STC.n = STL.n = 1; print("stamp C 0: start\nstamp L 0: start")
    A(f"v_lshrrev_b32 {v(vT)}, 6, {v(vTID)}")
    A(f"v_and_b32 {v(vL)}, 63, {v(vTID)}")
    A(f"v_readfirstlane_b32 s{S_W8}, {v(vT)}")
    A(f"v_lshlrev_b32 {v(vFR)}, 4, {v(vL)}")
    A(f"v_and_b32 {v(c16)}, 15, {v(vL)}")
    A(f"v_lshrrev_b32 {v(g)}, 4, {v(vL)}")
    A(f"v_lshrrev_b32 {v(r8)}, 3, {v(vL)}")
    A(f"v_and_b32 {v(l7)}, 7, {v(vL)}")
    A(f"""s_and_b32 s{S_W}, s{S_W8}, 3
s_lshr_b32 s{S_T}, s2, 3
s_and_b32 s{S_RB}, s2, 1
s_lshl_b32 s{S_RB}, s{S_RB}, 3
s_and_b32 s{S_T2}, s{S_T}, 7
s_add_u32 s{S_RB}, s{S_RB}, s{S_T2}
s_bfe_u32 s{S_HC}, s2, 0x20001
s_mul_i32 s{S_HW}, s{S_HC}, 896
s_lshl_b32 s{S_HC}, s{S_HC}, 2
s_lshr_b32 s{S_T2}, s{S_T}, 3
s_add_u32 s{S_HC}, s{S_HC}, s{S_T2}
s_lshl_b32 s{S_T}, s{S_T2}, 8
s_cmp_eq_u32 s{S_T2}, 3
s_cselect_b32 s{S_T}, 640, s{S_T}
s_add_u32 s{S_HW}, s{S_HW}, s{S_T}""")
    def common2(A):
        A(f"v_lshlrev_b32 {v(vL8)}, 3, {v(vL)}")
        A(f"v_mov_b32 {v(vZ)}, 0")
        A(f"v_mov_b32 {v(vFL)}, {L_FLG}")
        A(f"v_and_b32 {v(l3)}, 3, {v(vL)}")
        A(f"v_lshrrev_b32 {v(r16)}, 2, {v(vL)}")
        A(f"""s_and_b32 s{S_TT}, s2, 7
s_lshl_b32 s{S_TT}, s{S_TT}, 2
s_bfe_u32 s{S_T2}, s2, 0x20003
s_add_u32 s{S_TT}, s{S_TT}, s{S_T2}
s_lshr_b32 s{S_CT}, s2, 5
s_mov_b32 s{M32}, -1
s_mov_b32 s{M32+1}, 0
s_mov_b32 s{S_SPIN}, 0
s_lshl_b32 s{S_T}, s{S_W}, 2
s_add_u32 s{S_T}, s{S_T}, {L_FLG}""")
        A(f"v_lshlrev_b32 {v(vFLW)}, 2, {v(vL)}")
        A(f"v_add_u32 {v(vFLW)}, {L_DUM}, {v(vFLW)}")
        A(f"v_writelane_b32 {v(vFLW)}, s{S_T}, 0")
    A(f"s_cmp_ge_u32 s{S_W8}, 4\ns_cbranch_scc1 {kname}_C")
    A(f"s_cmp_ge_u32 s{S_W8}, 2\ns_cbranch_scc1 {kname}_S")

    def spin_guard(A, target):
        A(f"s_add_u32 s{S_SPIN}, s{S_SPIN}, 1\ns_cmp_lt_u32 s{S_SPIN}, 0x200000\ns_cbranch_scc1 {target}")
    def lds_post(A, off, val):
        A(f"v_mov_b32 {v(vPV)}, {val}")
        A.dsop(f"ds_max_u32 {v(vFLW)}, {v(vPV)} offset:{off}")
    def lds_flag_read(A, off):
        return A.dsop(f"ds_read_b128 {v(vFV,4)}, {v(vFL)} offset:{off}")
    def lds_wait_min(A, off, val, ticket=None, slow=None):
        lp, ok = newlab("lw"), newlab("lk")
        if ticket is None: ticket = lds_flag_read(A, off)
        A.wait_ds(ticket)
        def check():
            A(f"v_min3_u32 {v(vFV)}, {v(vFV)}, {v(vFV+1)}, {v(vFV+2)}")
            A(f"v_min_u32 {v(vFV)}, {v(vFV)}, {v(vFV+3)}")
            A("s_nop 0")
            A(f"v_readfirstlane_b32 s{S_T2}, {v(vFV)}")
            A(f"s_cmp_ge_u32 s{S_T2}, {val}\ns_cbranch_scc1 {ok}")
        if slow is not None:
            sv = (A.vm, A.vm_done, A.ds, A.ds_done)
            for step in slow():
                check()
                step()
                A(f"ds_read_b128 {v(vFV,4)}, {v(vFL)} offset:{off}\ns_waitcnt lgkmcnt(0)")
            A.vm, A.vm_done, A.ds, A.ds_done = sv
        A.label(lp)
        check()
        A(f"s_sleep 1\nds_read_b128 {v(vFV,4)}, {v(vFL)} offset:{off}\ns_waitcnt lgkmcnt(0)")
        spin_guard(A, lp)
        A.label(ok)
    def nonce_fetch(A):
        lp, ok = newlab("nf"), newlab("ng")
        A.label(lp)
        A(f"global_load_dwordx2 {v(vN,2)}, {v(vZ)}, s[{DBG}:{DBG+1}] sc1\ns_waitcnt vmcnt(0)")
        A(f"v_readfirstlane_b32 s{NON}, {v(vN)}")
        A(f"s_cmp_lg_u32 s{NON}, 0\ns_cbranch_scc1 {ok}")
        A("s_sleep 4")
        spin_guard(A, lp)
        A.label(ok)
        A(f"s_mov_b64 exec, 1\nds_write_b64 {v(vFL)}, {v(vN,2)} offset:64\ns_mov_b64 exec, -1")
    def nonce_load(A, last): pass
    def nonce_check(A, last):
        lp, ok = newlab("nc"), newlab("nk")
        A.label(lp)
        A(f"ds_read_b64 {v(vN,2)}, {v(vFL)} offset:64")
        A.wait_ds_all()
        A(f"v_readfirstlane_b32 s{NON}, {v(vN)}\nv_readfirstlane_b32 s{NON+1}, {v(vN+1)}")
        A(f"s_cmp_lg_u32 s{NON}, 0\ns_cbranch_scc1 {ok}")
        A("s_sleep 2")
        spin_guard(A, lp)
        A.label(ok)
    SP = 64
    WSP = 0
    def spoll_issue(A, sreg, off, n16=True, extra=None):
        A(f"s_add_u32 s{S_T}, s{sreg}, {off}")
        A(f"s_load_dwordx16 s[{SP}:{SP+15}], s[{WSP}:{WSP+1}], s{S_T} glc")
        if extra is not None:
            A(f"s_add_u32 s{S_T}, s{extra[0]}, {extra[1]}")
            A(f"s_load_dwordx4 s[{SW}:{SW+3}], s[{WSP}:{WSP+1}], s{S_T} glc")
    def spoll_finish(A, sreg, off, extra=None):
        lp, ok, rt = newlab("sp"), newlab("sk"), newlab("sr")
        A.label(lp)
        A.wait_ds_all()
        regs_ = [SP + 2*i for i in range(8)] + ([SW, SW + 2] if extra is not None else [])
        for r in regs_:
            A(f"s_cmp_eq_u64 s[{r}:{r+1}], s[{NON}:{NON+1}]\ns_cbranch_scc0 {rt}")
        A(f"s_branch {ok}")
        A.label(rt)
        A(f"s_sleep {OPT.get('psleep', 1)}")
        spoll_issue(A, sreg, off, extra=extra)
        spin_guard(A, lp)
        A("s_waitcnt lgkmcnt(0)")
        A.label(ok)
    def publish(A, sreg, off):
        A(f"v_mov_b32 {v(vN)}, s{NON}\nv_mov_b32 {v(vN+1)}, s{NON+1}")
        A(f"s_add_u32 s{S_T}, s{sreg}, {off}")
        A("s_mov_b64 exec, 1")
        A.vmem(f"buffer_store_dwordx2 {v(vN,2)}, {v(vZ)}, s[{WS}:{WS+3}], s{S_T} offen sc1")
        A("s_mov_b64 exec, -1")
    def rot_base(A, sdst, srot, idx, mod, mult, sadd):
        A(f"s_add_u32 s{sdst}, s{srot}, {idx}")
        A(f"s_sub_u32 s{S_T2}, s{sdst}, {mod}")
        A(f"s_cmp_ge_u32 s{sdst}, {mod}")
        A(f"s_cselect_b32 s{sdst}, s{S_T2}, s{sdst}")
        A(f"s_mul_i32 s{sdst}, s{sdst}, {mult}")
        A(f"s_add_u32 s{sdst}, s{sdst}, s{sadd}")
    def dma(A, m0reg, m0off, sreg, soff, va, sr, flags=""):
        A(f"s_add_u32 m0, s{m0reg}, {m0off}")
        A(f"s_add_u32 s{S_T}, s{sreg}, {soff}")
        return A.vmem(f"buffer_load_dwordx4 {v(va)}, s[{sr}:{sr+3}], s{S_T} offen {flags} lds")
    vD = 32
    def poll(A, tag, sreg, off, mask=None, wide=False):
        lp, ok = newlab("pl"), newlab("pk")
        A(f"s_add_u32 s{S_T}, s{sreg}, {off}")
        if not wide: A(f"s_mov_b64 exec, {mask}")
        A.label(lp)
        if wide:
            A(f"buffer_load_dwordx4 {v(vD+12,4)}, {v(vFR)}, s[{WS}:{WS+3}], s{S_T} offen sc1")
            A(f"buffer_load_dwordx4 {v(vD+16,4)}, {v(vFR)}, s[{WS}:{WS+3}], s{S_T} offen offset:768 sc1")
            A("s_waitcnt vmcnt(0)")
            A(f"v_cmp_ne_u64 vcc, s[{NON}:{NON+1}], {v(vD+12,2)}")
            for i in range(1, 4):
                A(f"v_cmp_ne_u64 s[{SW}:{SW+1}], s[{NON}:{NON+1}], {v(vD+12+2*i,2)}")
                A(f"s_or_b64 vcc, vcc, s[{SW}:{SW+1}]")
            A(f"s_cmp_eq_u64 vcc, 0\ns_cbranch_scc1 {ok}")
        else:
            A(f"buffer_load_dwordx2 {v(vD+12,2)}, {v(vL8)}, s[{WS}:{WS+3}], s{S_T} offen sc1")
            A("s_waitcnt vmcnt(0)")
            A(f"v_cmp_ne_u64 vcc, s[{NON}:{NON+1}], {v(vD+12,2)}")
            A(f"s_cbranch_vccz {ok}")
        A("s_sleep 8")
        spin_guard(A, lp)
        A.label(ok)
        A("s_mov_b64 exec, -1")
        A.vm_done = A.vm
    S_XO, S_HO, S_QO, S_XH, S_M4, S_M8, S_M2, S_FLC, S_FO, S_WOB, S_W2B, S_RF, S_M1, S_CO, S_FH, S_FOo = range(48, 64)
    vXD, vHD0, vHD1, vQD, vW2D, vRS, vRD = 24, 25, 26, 27, 28, 29, 30
    QROW = 64 if REPACK else 2688
    def lgroup_rest(A):
        srd(A, QKV, KA+2, 448 * 2688)
        srd(A, WO, KA+4, 448 * 896)
        srd(A, W2, KA+12, 1792 * 896)
        srd(A, GW, KA+16, 896)
        srd(A, B2, KA+14, 896)
        srd(A, OUT, KA+18, 2048 * 896)
        srd(A, WS, KA+22, WS_BYTES)
        A(f"s_mov_b64 s[{WSP}:{WSP+1}], s[{KA+22}:{KA+23}]")
    def p2_scalars(A):
        A(f"v_mul_u32_u24 {v(t1)}, 896, {v(r8)}")
        A(f"v_and_b32 {v(t0)}, 1, {v(g)}")
        A(f"v_xor_b32 {v(t0)}, {v(t0)}, {v(l7)}")
        A(f"v_lshl_add_u32 {v(vW2D)}, {v(t0)}, 4, {v(t1)}")
        A(f"""s_lshl_b32 s{S_M4}, s{S_W}, 12
s_lshl_b32 s{S_T}, s{S_TT}, 8
s_add_u32 s{S_FLC}, s{S_T}, {WS_FL}
s_mul_i32 s{S_FO}, s{S_TT}, {4*73728}
s_lshl_b32 s{S_CO}, s{S_CT}, 7
s_mul_i32 s{S_WOB}, s{S_W}, {112*896}
s_add_u32 s{S_WOB}, s{S_WOB}, s{S_CO}
s_mul_i32 s{S_W2B}, s{S_W}, {448*896}
s_add_u32 s{S_W2B}, s{S_W2B}, s{S_CO}
s_mul_i32 s{S_T}, s{S_W}, {14*1024}
s_add_u32 s{S_FH}, s{S_FO}, s{S_T}
s_add_u32 s{S_FOo}, s{S_FO}, s{S_M4}
s_add_u32 s{S_FOo}, s{S_FOo}, {56*1024}
s_and_b32 s{S_T}, s{S_TT}, 3
s_mul_i32 s{S_T}, s{S_T}, 7
s_add_u32 s{S_T}, s{S_T}, 1
s_lshr_b32 s{S_T}, s{S_T}, 1
s_lshl_b32 s{S_T2}, s{S_CT}, 1
s_add_u32 s{S_T}, s{S_T}, s{S_T2}
s_sub_u32 s{S_T2}, s{S_T}, 14
s_cmp_ge_u32 s{S_T}, 14
s_cselect_b32 s{S_R2}, s{S_T2}, s{S_T}
s_add_u32 s{S_T}, s{S_TT}, s{S_CT}
s_and_b32 s{S_R3}, s{S_T}, 3""")

    A = L; last = {}
    A(f"v_mul_u32_u24 {v(t1)}, 896, {v(r8)}")
    A(f"v_xor_b32 {v(t0)}, {v(l7)}, {v(r8)}")
    A(f"v_lshl_add_u32 {v(vXD)}, {v(t0)}, 4, {v(t1)}")
    A(f"v_mul_u32_u24 {v(t1)}, 3584, {v(g)}")
    A(f"v_lshlrev_b32 {v(t0)}, 1, {v(g)}")
    A(f"v_xor_b32 {v(t0)}, {v(t0)}, {v(c16)}")
    A(f"v_lshl_add_u32 {v(vHD0)}, {v(t0)}, 4, {v(t1)}")
    A(f"v_xor_b32 {v(vHD1)}, 0x80, {v(vHD0)}")
    A(f"""s_lshl_b32 s{S_T}, s{S_HC}, 1
s_add_u32 s{S_T}, s{S_T}, s{S_RB}
s_mul_i32 s{S_T2}, s{S_T}, 37
s_lshr_b32 s{S_T2}, s{S_T2}, 8
s_mul_i32 s{S_T2}, s{S_T2}, 7
s_sub_u32 s{S_R1}, s{S_T}, s{S_T2}
s_mul_i32 s{SW}, s{S_W}, {32*3584}
s_add_u32 s{SW}, s{SW}, s{S_HW}
s_lshl_b32 s{S_T}, s{S_RB}, 7
s_lshl_b32 s{S_T2}, s{S_W}, 6
s_add_u32 s{S_T2}, s{S_T}, s{S_T2}
s_mul_i32 s{SW+1}, s{S_T2}, 896
s_lshl_b32 s{SW+2}, s{S_W}, 13""")
    if not OPT.get("rot", 1): A(f"s_mov_b32 s{S_R1}, 0")
    A("s_waitcnt lgkmcnt(0)")
    srd(A, W1, KA+8, 448 * 3584)
    srd(A, X, KA, 2048 * 896)
    srd(A, B1, KA+10, 3584)
    regs = {"HO": SW, "XO": SW + 1, "M8": SW + 2}
    def load(lu):
        k, c = lu; pb = page[lu] * PAGE
        if k == "H":
            rot_base(A, S_CB, S_R1, c, 7, 64*3584, regs["HO"])
            for hf in range(2):
                for gi in range(4): t = dma(A, regs["M8"], pb + hf*4096 + gi*1024, S_CB, (8*gi + 4*hf)*3584, vHD1 if gi & 1 else vHD0, W1)
        elif k == "X":
            rot_base(A, S_CB, S_R1, c, 7, 128, regs["XO"])
            for q in range(8): t = dma(A, regs["M8"], pb + q*1024, S_CB, q*8*896, vXD, X)
        elif k == "Q":
            rot_base(A, S_CB, S_R1, c, 7, 4096 if REPACK else 172032, S_QO)
            for p in range(3):
                for hf in range(2):
                    if REPACK: dma(A, S_M2, pb + p*4096 + hf*1024, S_CB, WS_QR + p*448*64 + 4*hf*64, vQD, WS, "sc1")
                    else: dma(A, S_M2, pb + p*4096 + hf*1024, S_CB, 896*p + 4*hf*2688, vQD, QKV)
            rot_base(A, S_CB, S_R1, c, 7, 128, S_XH)
            t = dma(A, S_M1, pb + 12288, S_CB, 0, vXD, X)
        last[lu] = t
    lb = newlab("w0")
    A(f"s_cmp_lg_u32 s{S_W}, 0\ns_cbranch_scc1 {lb}")
    A(f"s_mov_b32 m0, {L_BIAS}\ns_mov_b64 exec, 0xffff")
    A(f"buffer_load_dwordx4 {v(vFR)}, s[{B1}:{B1+3}], s{S_HW} offen lds")
    A("s_mov_b64 exec, -1")
    A.label(lb)
    load(seq[0]); load(seq[1]); STL(A, "X0 iss")
    common2(A)
    A("s_barrier")
    lgroup_rest(A)
    A(f"s_mov_b32 s{S_HO}, s{SW}\ns_mov_b32 s{S_XO}, s{SW+1}\ns_mov_b32 s{S_M8}, s{SW+2}")
    regs.update({"HO": S_HO, "XO": S_XO, "M8": S_M8})
    load(seq[2]); load(seq[3])
    p2_scalars(A)
    A(f"""s_mul_i32 s{S_QO}, s{S_W}, {32*QROW}
s_mul_i32 s{S_T2}, s{S_HC}, {3*448*64 if REPACK else 56}
s_add_u32 s{S_QO}, s{S_QO}, s{S_T2}
s_lshl_b32 s{S_T}, s{S_RB}, 7
s_sub_i32 s{S_T}, s{S_T}, 16
s_max_i32 s{S_T}, s{S_T}, 0
s_lshl_b32 s{S_T2}, s{S_W}, 3
s_add_u32 s{S_T}, s{S_T}, s{S_T2}
s_mul_i32 s{S_XH}, s{S_T}, 896
s_lshl_b32 s{S_M2}, s{S_W}, 11
s_lshl_b32 s{S_M1}, s{S_W}, 10""")
    A(f"v_and_b32 {v(t0)}, 3, {v(r16)}")
    A(f"v_lshl_add_u32 {v(t0)}, {v(g)}, 3, {v(t0)}")
    A(f"v_mul_u32_u24 {v(vQD)}, {QROW}, {v(t0)}")
    A(f"v_and_b32 {v(t0)}, 1, {v(g)}")
    A(f"v_lshlrev_b32 {v(t1)}, 1, {v(t0)}")
    A(f"v_xor_b32 {v(t1)}, {v(t1)}, {v(l3)}")
    A(f"v_lshl_add_u32 {v(vQD)}, {v(t1)}, 4, {v(vQD)}")
    posted = [0]
    def post_upto(n):
        if n <= posted[0]: return
        A.wait_vm(last[seq[n-1]])
        lds_post(A, 0, n)
        posted[0] = n
        STL(A, f"post {seq[n-1]}")
    post_upto(2)
    LAG = OPT.get("lag", 3)
    released = [-1]; issued_n = [4]; relpre = {}
    def wait_release(A, r, slow=None):
        if r > released[0]:
            lds_wait_min(A, 16, r + 1, relpre.pop("t", None), slow=slow)
            released[0] = r
    def slow_post():
        steps = []
        for m in range(posted[0] + 1, issued_n[0] + 1):
            if seq[m-1][0] == "H": continue
            def st(m=m):
                A.wait_vm(last[seq[m-1]])
                lds_post(A, 0, m)
            steps.append(st)
        return steps
    DYN = OPT.get("dyn", 0)
    def post_dyn():
        A(f"s_getreg_b32 s{S_T}, hwreg(HW_REG_IB_STS)")
        A(f"s_lshr_b32 s{S_T2}, s{S_T}, 18\ns_and_b32 s{S_T2}, s{S_T2}, 0x30\ns_and_b32 s{S_T}, s{S_T}, 15\ns_or_b32 s{S_T}, s{S_T}, s{S_T2}")
        A(f"s_sub_i32 s{S_T}, {A.vm}, s{S_T}\ns_max_i32 s{S_T}, s{S_T}, 0\ns_lshr_b32 s{S_T}, s{S_T}, 3")
        A(f"v_mov_b32 {v(vPV)}, s{S_T}")
        A.dsop(f"ds_max_u32 {v(vFLW)}, {v(vPV)}")
    def wait_release_dyn(r):
        if r <= released[0]: return
        lp, ok = newlab("dw"), newlab("dk")
        tk = relpre.pop("t", None)
        if tk is None: tk = lds_flag_read(A, 16)
        A.wait_ds(tk)
        A.label(lp)
        A(f"v_min3_u32 {v(vFV)}, {v(vFV)}, {v(vFV+1)}, {v(vFV+2)}")
        A(f"v_min_u32 {v(vFV)}, {v(vFV)}, {v(vFV+3)}")
        A("s_nop 0")
        A(f"v_readfirstlane_b32 s{S_T2}, {v(vFV)}")
        A(f"s_cmp_ge_u32 s{S_T2}, {r+1}\ns_cbranch_scc1 {ok}")
        sv = (A.ds, A.ds_done)
        post_dyn()
        A.ds, A.ds_done = sv
        A(f"ds_read_b128 {v(vFV,4)}, {v(vFL)} offset:16\ns_waitcnt lgkmcnt(0)")
        spin_guard(A, lp)
        A.label(ok)
        released[0] = r
    for n in range(4, NL):
        lu = seq[n]
        if lu == ("Q", 0):
            if DYN:
                for m in range(n - 4, n + 1, 2): post_upto(m)
            post_upto(n)
            nonce_check(A, last)
            if REPACK:
                A(f"s_mov_b32 s{SW+2}, {WS_FL + 16384}")
                poll(A, "R", SW + 2, 0, wide=True); STL(A, "poll R ok")
            lb = newlab("w0")
            A(f"s_cmp_lg_u32 s{S_W}, 0\ns_cbranch_scc1 {lb}")
            A(f"s_lshl_b32 s{S_T}, s{S_R1}, 7")
            A(f"v_add_u32 {v(t0)}, s{S_T}, {v(vFR)}")
            A(f"v_subrev_u32 {v(t1)}, 896, {v(t0)}")
            A(f"v_min_u32 {v(t0)}, {v(t0)}, {v(t1)}")
            A(f"s_mov_b32 m0, {L_GATE}\ns_mov_b32 exec_hi, 0xffffff")
            A(f"buffer_load_dwordx4 {v(t0)}, s[{GW}:{GW+3}], 0 offen lds")
            A("s_mov_b32 exec_hi, -1")
            A.label(lb)
        if DYN and n < 14: wait_release_dyn(after[lu])
        else: wait_release(A, after[lu], slow_post)
        if n + 1 < NL and after[seq[n+1]] > released[0] and seq[n+1] != ("Q", 0): relpre["t"] = lds_flag_read(A, 16)
        load(lu); issued_n[0] = n + 1
        if DYN and n < 14:
            assert A.vm == 8 * (n + 1)
            post_dyn()
            continue
        m = n + 1 - LAG
        if m >= 2 and seq[m-1][0] != "H": post_upto(m)
    post_upto(NL)
    A(f"s_branch {kname}_P2")

    A = S; last = {}
    A.label(f"{kname}_S")
    common2(A)
    A("s_waitcnt lgkmcnt(0)")
    lb = newlab("n0")
    A(f"s_cmp_lg_u32 s2, 0\ns_cbranch_scc1 {lb}\ns_cmp_lg_u32 s{S_W}, 2\ns_cbranch_scc1 {lb}")
    A(f"s_memrealtime s[{NON}:{NON+1}]\ns_waitcnt lgkmcnt(0)\ns_or_b32 s{NON}, s{NON}, 1")
    A(f"v_mov_b32 {v(vN)}, s{NON}\nv_mov_b32 {v(vN+1)}, s{NON+1}")
    A("s_mov_b64 exec, 1")
    A(f"global_store_dwordx2 {v(vZ)}, {v(vN,2)}, s[{DBG}:{DBG+1}] sc1")
    A("s_mov_b64 exec, -1")
    A.label(lb)
    srd(A, W1, KA+8, 448 * 3584)
    srd(A, X, KA, 2048 * 896)
    lgroup_rest(A)
    A(f"s_getpc_b64 s[{SW}:{SW+1}]")
    A.label(f"{kname}_pc")
    A(f"s_sub_u32 s{SW}, s{SW}, {kname}_pc-{kname}\ns_subb_u32 s{SW+1}, s{SW+1}, 0")
    A(f"s_bfe_u32 s{S_T}, s2, 0x40003\ns_lshl_b32 s{S_T}, s{S_T}, 1\ns_and_b32 s{S_T2}, s{S_W}, 1\ns_add_u32 s{S_T}, s{S_T}, s{S_T2}\ns_lshl_b32 s{S_T}, s{S_T}, 10")
    A(f"v_add_u32 {v(t0)}, s{S_T}, {v(vFR)}")
    A(f"v_min_u32 {v(t0)}, {kname}_end-{kname}-16, {v(t0)}")
    A.vmem(f"global_load_dwordx4 {v(vD,4)}, {v(t0)}, s[{SW}:{SW+1}]")
    A("s_barrier")
    p2_scalars(A)
    vSPa, vSPb = 26, 27
    A(f"v_lshlrev_b32 {v(vSPa)}, 7, {v(vL)}")
    if OPT.get("m1", 1):
        srd(A, X, 100, 2048 * 896) if False else None
        A(f"s_and_b32 s{S_T}, s2, 1\ns_mul_i32 s{S_T}, s{S_T}, {1024*896}\ns_lshr_b32 s{S_T2}, s2, 3\ns_mul_i32 s{S_CB}, s{S_T2}, {224*128}\ns_add_u32 s{S_T}, s{S_T}, s{S_CB}")
        A(f"s_and_b32 s{S_CB}, s{S_W}, 1\ns_mul_i32 s{S_CB}, s{S_CB}, {112*128}\ns_add_u32 s{S_T}, s{S_T}, s{S_CB}")
        A.vmem(f"buffer_load_dword {v(vD)}, {v(vSPa)}, s[{X}:{X+3}], s{S_T} offen")
        A(f"s_add_u32 s{S_T}, s{S_T}, 8192\ns_mov_b32 exec_hi, 0xffff")
        A.vmem(f"buffer_load_dword {v(vD)}, {v(vSPa)}, s[{X}:{X+3}], s{S_T} offen")
        A("s_mov_b32 exec_hi, -1")
        A(f"v_mul_u32_u24 {v(t0)}, 9363, {v(vL)}")
        A(f"v_lshrrev_b32 {v(t0)}, 16, {v(t0)}")
        A(f"v_mul_u32_u24 {v(t0)}, {3584 - 896}, {v(t0)}")
        A(f"v_add_u32 {v(vSPb)}, {v(t0)}, {v(vSPa)}")
        A(f"s_lshl_b32 s{S_T2}, s{S_T2}, 1\ns_and_b32 s{S_CB}, s{S_W}, 1\ns_add_u32 s{S_T2}, s{S_T2}, s{S_CB}\ns_mul_i32 s{S_T}, s{S_T2}, {7*3584}")
        A(f"s_bfe_u32 s{S_CB}, s2, 0x20001\ns_mul_i32 s{S_CB}, s{S_CB}, 896\ns_add_u32 s{S_T}, s{S_T}, s{S_CB}\ns_mov_b32 exec_hi, 0x1ffff")
        A.vmem(f"buffer_load_dword {v(vD)}, {v(vSPb)}, s[{W1}:{W1+3}], s{S_T} offen")
        A("s_mov_b32 exec_hi, -1")
    RGs = 96
    if REPACK:
        A(f"v_bfe_u32 {v(t0)}, {v(vL)}, 2, 1")
        A(f"v_mul_u32_u24 {v(vRS)}, 2688, {v(t0)}")
        A(f"v_mul_u32_u24 {v(t1)}, 56, {v(r8)}")
        A(f"v_add_u32 {v(vRS)}, {v(vRS)}, {v(t1)}")
        A(f"v_lshl_add_u32 {v(vRS)}, {v(l3)}, 4, {v(vRS)}")
        A(f"v_mul_u32_u24 {v(vRD)}, {3*448*64}, {v(r8)}")
        A(f"v_lshl_add_u32 {v(vRD)}, {v(l7)}, 4, {v(vRD)}")
        A(f"s_cmp_ge_u32 s2, 224\ns_cselect_b32 s{S_T}, 0x40000000, 0")
        A(f"v_or_b32 {v(vRS)}, s{S_T}, {v(vRS)}")
        A(f"v_or_b32 {v(vRD)}, s{S_T}, {v(vRD)}")
        A(f"s_mul_i32 s{S_T}, s2, {2*2688}\ns_and_b32 s{S_T2}, s{S_W}, 1\ns_mul_i32 s{S_T2}, s{S_T2}, 1344\ns_add_u32 s{S_T}, s{S_T}, s{S_T2}")
        for k in range(3):
            last["RL"] = A.vmem(f"buffer_load_dwordx4 {v(RGs+4*k,4)}, {v(vRS)}, s[{QKV}:{QKV+3}], s{S_T} offen offset:{448*k}")
        nonce_load(A, last)
        dst = [(jj >> 1)*448*64 + (jj & 1)*8*3*448*64 for jj in range(6)]
        A(f"s_lshl_b32 s{S_CB}, s2, 7\ns_add_u32 s{S_CB}, s{S_CB}, {WS_QR}\ns_and_b32 s{SW+2}, s{S_W}, 1")
        A.wait_vm(last["RL"])
        for k in range(3):
            A(f"s_mul_i32 s{S_T}, s{SW+2}, {dst[3+k]-dst[k]}\ns_add_u32 s{S_T}, s{S_T}, {dst[k]}\ns_add_u32 s{S_T}, s{S_T}, s{S_CB}")
            A.vmem(f"buffer_store_dwordx4 {v(RGs+4*k,4)}, {v(vRD)}, s[{WS}:{WS+3}], s{S_T} offen sc1")
        lb = newlab("nw")
        A(f"s_cmp_lg_u32 s{S_W}, 3\ns_cbranch_scc1 {lb}")
        nonce_fetch(A)
        A.label(lb)
        A.wait_vm_all()
        lds_post(A, 48, 1)
        nonce_check(A, last)
        lb = newlab("rp")
        A(f"s_cmp_lg_u32 s{S_W}, 2\ns_cbranch_scc1 {lb}\ns_cmp_ge_u32 s2, 224\ns_cbranch_scc1 {lb}")
        sv = (A.vm, A.vm_done, A.ds, A.ds_done)
        lds_wait_min(A, 48, 1)
        A(f"s_lshl_b32 s{S_RF}, s2, 3\ns_add_u32 s{S_RF}, s{S_RF}, {WS_FL + 16384}")
        publish(A, S_RF, 0)
        A.vm, A.vm_done, A.ds, A.ds_done = sv
        A.label(lb)
        STL(A, "R pub")
    else:
        A(f"s_lshl_b32 s{S_T}, s2, 1\ns_and_b32 s{S_T2}, s{S_W}, 1\ns_add_u32 s{S_T}, s{S_T}, s{S_T2}\ns_mul_i32 s{S_T}, s{S_T}, 2432")
        if OPT.get("sweep", 1):
            for k in range(3): A.vmem(f"buffer_load_dwordx4 {v(vD,4)}, {v(vFR)}, s[{QKV}:{QKV+3}], s{S_T} offen offset:{1024*k}")
        lb = newlab("nw")
        A(f"s_cmp_lg_u32 s{S_W}, 3\ns_cbranch_scc1 {lb}")
        nonce_fetch(A)
        A.label(lb)
        nonce_check(A, last)
    if OPT.get("sweep", 0):
        if OPT.get("swp", 0): lds_wait_min(A, 0, OPT["swp"])
        A(f"s_lshl_b32 s{S_CB}, s2, 1\ns_and_b32 s{S_T2}, s{S_W}, 1\ns_add_u32 s{S_CB}, s{S_CB}, s{S_T2}\ns_mul_i32 s{S_T}, s{S_CB}, 3200")
        if OPT["sweep"] == 2:
            A("s_mov_b64 exec, 0x1ffffff")
            A.vmem(f"buffer_load_dword {v(vD)}, {v(vSPa)}, s[{W2}:{W2+3}], s{S_T} offen")
            A(f"s_mul_i32 s{S_T}, s{S_CB}, 896\ns_mov_b64 exec, 0x7f")
            A.vmem(f"buffer_load_dword {v(vD)}, {v(vSPa)}, s[{WO}:{WO+3}], s{S_T} offen")
            A("s_mov_b64 exec, -1")
        else:
            for k in range(4):
                if k == 3: A("s_mov_b64 exec, 0xff")
                A.vmem(f"buffer_load_dwordx4 {v(vD,4)}, {v(vFR)}, s[{W2}:{W2+3}], s{S_T} offen offset:{1024*k}")
            A(f"s_mov_b64 exec, -1\ns_mul_i32 s{S_T}, s{S_CB}, 896\ns_mov_b32 exec_hi, 0xffffff")
            A.vmem(f"buffer_load_dwordx4 {v(vD,4)}, {v(vFR)}, s[{WO}:{WO+3}], s{S_T} offen")
            A("s_mov_b32 exec_hi, -1")
    if OPT.get("l2w", 1):
        if OPT.get("l2c", 0): lds_wait_min(A, 16, OPT["l2c"])
        else: lds_wait_min(A, 0, OPT.get("l2at", 14))
        A(f"s_lshr_b32 s{S_T}, s2, 3\ns_lshl_b32 s{S_T}, s{S_T}, 1\ns_and_b32 s{S_T2}, s{S_W}, 1\ns_add_u32 s{S_T}, s{S_T}, s{S_T2}")
        A(f"s_mul_i32 s{S_CB}, s{S_T}, 25088\ns_mul_i32 s{S_T2}, s{S_T}, 6272")
        for k in range(4):
            if k: A(f"s_add_u32 s{S_CB}, s{S_CB}, 8192")
            if k == 3: A("s_mov_b64 exec, 0xf")
            A.vmem(f"buffer_load_dword {v(vD)}, {v(vSPa)}, s[{W2}:{W2+3}], s{S_CB} offen")
        A("s_mov_b32 exec_lo, -1\ns_mov_b32 exec_hi, 0x1ffff")
        A.vmem(f"buffer_load_dword {v(vD)}, {v(vSPa)}, s[{WO}:{WO+3}], s{S_T2} offen")
        A("s_mov_b64 exec, -1")
        STL(A, "l2w iss")
    A.wait_vm_all()

    A = Q; last = {}
    A.label(f"{kname}_P2")
    A(f"s_cmp_ge_u32 s{S_CT}, 7\ns_cbranch_scc1 {kname}_lfin")
    released[0] = -1; relpre.clear()
    NP2 = OPT.get("np2", 7)
    def p2page(i): return p2free[i % NP2][1]
    vPA = 32; vG = 40; vB2 = 48
    WB = 64; RG = 96; NFS = 6
    ACB = RG + 16 * NFS
    def fa(i, j): return RG + 16 * (i % NFS) + 4 * j
    def job_W(i):
        if i < NP2: wait_release(A, p2free[i][0])
        if i < 14: rot_base(A, S_CB, S_R2, i, 14, 32*896, S_W2B)
        else: rot_base(A, S_CB, S_R3, i - 14, 4, 28*896, S_WOB)
        for q in range(4):
            last[("W", i)] = dma(A, S_M4, p2page(i)*PAGE + q*1024, S_CB, 8*q*896, vW2D, W2 if i < 14 else WO)
    def job_F(i):
        if i < 14: rot_base(A, S_CB, S_R2, i, 14, 1024, S_FH)
        else: rot_base(A, S_CB, S_R3, i - 14, 4, 1024, S_FOo)
        for j in range(4):
            if j: A(f"s_add_u32 s{S_CB}, s{S_CB}, 73728")
            last[("F", i)] = A.vmem(f"buffer_load_dwordx4 {v(fa(i,j),4)}, {v(vFR)}, s[{WS}:{WS+3}], s{S_CB} offen sc1")
    NW0 = OPT.get("nw0", 3)
    if OPT.get("wat", 0): wait_release(A, OPT["wat"] - 1)
    for i in range(NW0): job_W(i)
    STL(A, "W0 iss")
    A(f"v_bfe_u32 {v(t0)}, {v(vL)}, 3, 1")
    A(f"v_lshl_add_u32 {v(t0)}, {v(l3)}, 1, {v(t0)}")
    A(f"v_lshlrev_b32 {v(t1)}, 7, {v(r16)}")
    A(f"v_lshl_add_u32 {v(t1)}, {v(t0)}, 4, {v(t1)}")
    S_FLW = S_RF
    A(f"s_lshl_b32 s{S_FLW}, s{S_W}, 6\ns_add_u32 s{S_FLW}, s{S_FLW}, s{S_FLC}")
    spoll_issue(A, S_FLW, 0); spoll_finish(A, S_FLW, 0); STL(A, "poll H ok")
    if OPT.get("prio2", 0) == 2: A("s_setprio 1")
    fi = 0; wi = NW0
    for i in range(NFS - 1):
        job_F(i); fi += 1
    A(f"v_add_u32 {v(vPA)}, s{S_M4}, {v(t1)}")
    A(f"v_xor_b32 {v(vPA+1)}, 16, {v(vPA)}")
    for z in (1, 2):
        for i in range(2): A(f"v_add_u32 {v(vPA+2*z+i)}, {z*65536}, {v(vPA+i)}")
    A(f"v_lshlrev_b32 {v(t1)}, 5, {v(g)}")
    def aw2(buf, t): return WB + 16*buf + 4*t
    rdt = {}
    def reads2(i):
        pg = p2page(i); z = pg // 4; rel = (pg % 4) * PAGE
        out = []
        for t in range(4):
            for hf in range(2):
                def at(t=t, hf=hf):
                    rdt[(i, t)] = A.dsop(f"ds_read_b64_tr_b16 {v(aw2(i&1,t)+2*hf,2)}, {v(vPA+2*z+(t>>1))} offset:{rel + hf*2048 + 8*(t&1)}")
                out.append(at)
        return out
    def small_loads():
        A(f"v_lshlrev_b32 {v(t0)}, 2, {v(c16)}")
        A(f"s_lshl_b32 s{S_T}, s{S_TT}, 8\ns_add_u32 s{S_T}, s{S_T}, {WS_G}")
        for j in range(4):
            A.vmem(f"buffer_load_dword {v(vG+j)}, {v(t0)}, s[{WS}:{WS+3}], s{S_T} offen offset:{64*j} sc1")
        A.vmem(f"buffer_load_dwordx4 {v(vB2+8,4)}, {v(t1)}, s[{B2}:{B2+3}], s{S_CO} offen")
        last["SM"] = A.vmem(f"buffer_load_dwordx4 {v(vB2+12,4)}, {v(t1)}, s[{B2}:{B2+3}], s{S_CO} offen offset:16")
    GX = (S_FLC, 8192 + 32)
    def poll_issue(): spoll_issue(A, S_FLW, 8192, extra=GX)
    def poll_finish():
        spoll_finish(A, S_FLW, 8192, extra=GX); STL(A, "poll O ok")
    A.wait_vm(last[("W", 0)])
    for at in reads2(0): at()
    for i in range(18):
        if fi < 18 and fi - NFS < i:
            if fi == 14: poll_finish(); small_loads()
            job_F(fi); fi += 1
        if wi < 18 and wi - NP2 < i:
            job_W(wi); wi += 1
        if i == OPT.get("pollO", 7): poll_issue()
        rd = []
        if i + 1 < 18:
            while wi <= i + 1:
                job_W(wi); wi += 1
            A.wait_vm(last[("W", i + 1)])
            rd = reads2(i + 1)
        A.wait_vm(last[("F", i)])
        STL(A, f"p2 step {i} ")
        if i == 14:
            A.wait_vm(last["SM"])
            for j in range(4): A(f"v_sub_f32 {v(vG+4+j)}, 1.0, {v(vG+j)}")
            for k in range(7):
                A(f"v_lshlrev_b32 {v(vB2+2*k)}, 16, {v(vB2+8+k)}")
                A(f"v_and_b32 {v(vB2+2*k+1)}, 0xffff0000, {v(vB2+8+k)}")
            A(f"v_lshlrev_b32 {v(vB2+14)}, 16, {v(vB2+15)}")
            A(f"v_and_b32 {v(vB2+15)}, 0xffff0000, {v(vB2+15)}")
            for r in range(0, 16, 2):
                for j in range(4):
                    A(f"v_pk_mul_f32 {v(ACB+16*j+r,2)}, {v(ACB+16*j+r,2)}, {v(vG+4+j-(j&1),2)} op_sel:[0,{j&1}] op_sel_hi:[1,{j&1}]")
            A("s_nop 1")
        if i == 17: break
        for t in range(4):
            A.wait_ds(rdt[(i, t)])
            for j in range(4):
                d = v(ACB + 16*j + 4*t, 4)
                A(f"v_mfma_f32_16x16x32_bf16 {d}, {v(aw2(i&1,t),4)}, {v(fa(i,j),4)}, {'0' if i == 0 else d}")
                if rd: rd.pop(0)()
    assert fi == 18 and wi == 18
    RP = [p2page(k) for k in range(3)]
    assert all(p2page(17) != p for p in RP)
    RV = RG if 17 % NFS >= 4 else RG + 32
    RV = RG
    for k in range(3): A(f"v_add_u32 {v(vPA+k)}, {RP[k]*PAGE}, {v(vFR)}")
    for k in range(3): A(f"v_add_u32 {v(vPA+3+k)}, s{S_M4}, {v(vPA+k)}")
    A.wait_ds_all()
    for w in range(4):
        if w < 3: A(f"s_cmp_lg_u32 s{S_W}, {w}\ns_cbranch_scc1 {kname}_w{w+1}")
        order = [(w + 1) & 3, (w + 2) & 3, (w + 3) & 3, w]
        wr = deque()
        for n, j in enumerate(order):
            for t in range(4):
                d = v(ACB + 16*j + 4*t, 4)
                A(f"v_mfma_f32_16x16x32_bf16 {d}, {v(aw2(1,t),4)}, {v(fa(17,j),4)}, {d}")
                if n >= 2 and wr: A(wr.popleft())
            if n < 3:
                k = (j - w - 1) & 3
                for t in range(4): wr.append(f"ds_write_b128 {v(vPA+3+k)}, {v(ACB+16*j+4*t,4)} offset:{t*1024}")
        A.nop(4)
        while wr: A(wr.popleft())
        A.nop(2)
        for r in range(16): A(f"v_fma_f32 {v(RV+r)}, {v(vG+4+w)}, {v(vB2+r)}, {v(ACB+16*w+r)}")
        A("s_waitcnt lgkmcnt(0)\ns_barrier")
        for k in range(3):
            srcw = (w - k - 1) & 3
            for t in range(4):
                A(f"ds_read_b128 {v(RV+16+16*k+4*t,4)}, {v(vPA+k)} offset:{srcw*4096 + t*1024}")
        if w < 3:
            A(f"s_branch {kname}_wd")
            A.label(f"{kname}_w{w+1}")
    A.label(f"{kname}_wd")
    A(f"v_mul_u32_u24 {v(t0)}, 896, {v(c16)}")
    A(f"v_add_u32 {v(t0)}, {v(t0)}, {v(t1)}")
    A(f"""s_lshl_b32 s{S_T}, s{S_TT}, 6
s_lshl_b32 s{S_T2}, s{S_W}, 4
s_add_u32 s{S_T}, s{S_T}, s{S_T2}
s_mul_i32 s{S_T}, s{S_T}, 896
s_add_u32 s{S_T}, s{S_T}, s{S_CO}""")
    for k in range(3):
        A(f"s_waitcnt lgkmcnt({8-4*k})")
        for r in range(0, 16, 2):
            A(f"v_pk_add_f32 {v(RV+r,2)}, {v(RV+r,2)}, {v(RV+16+16*k+r,2)}")
    for r in range(8):
        A(f"v_cvt_pk_bf16_f32 {v(WB+r)}, {v(RV+2*r)}, {v(RV+2*r+1)}")
    A(f"buffer_store_dwordx4 {v(WB,4)}, {v(t0)}, s[{OUT}:{OUT+3}], s{S_T} offen")
    A(f"buffer_store_dwordx4 {v(WB+4,4)}, {v(t0)}, s[{OUT}:{OUT+3}], s{S_T} offen offset:16")
    STL(A, "end")
    if OPT.get("minT", 0):
        A.label("Lhold")
        A(f"s_memrealtime s[72:73]\ns_waitcnt lgkmcnt(0)\ns_sub_u32 s72, s72, s{NON}\ns_cmp_lt_u32 s72, {OPT['minT']}\ns_cbranch_scc1 Lhold")
    A.label(f"{kname}_lfin")
    STL.dump(A, WS, S_W8, vL, vT)
    A("s_endpgm")

    A = C; last = {}
    A.label(f"{kname}_C")
    ST = lambda what: STC(A, what)
    S_FR, S_FLP, S_GT, S_OS, S_P = 48, 49, 50, 51, 52
    S_HS = 54
    vHA, vXA, vXO, vFRa, vFRb, vGA = 24, 28, 30, 32, 33, 34
    XT = 36
    vQA, vXH = 36, 45
    XR = 52; ACC = 164; WR = 228; NWR = 7
    def ax(ks, tb): return XR + 4 * (2 * ks + tb)
    def axa(ks, jj): return ax(ks, jj) if jj < 2 else XT + 8 * (ks & 1) + 4 * (jj - 2)
    def ach(jj, bb): return ACC + 4 * (4 * jj + bb)
    def acq(tb, t): return ACC + 4 * (6 * tb + t)
    ACC_HL = ACC + 48
    ACG = ACC + 52
    vBIAS = XR + 80; vRAW = XR + 64
    common2(A)
    A(f"v_lshl_add_u32 {v(t0)}, {v(vL)}, 2, {v(vFL)}")
    A(f"v_mov_b32 {v(t1)}, 0")
    A(f"s_mov_b64 vcc, 0x300c")
    A(f"v_cndmask_b32 {v(t1)}, {v(t1)}, -1, vcc")
    A("s_mov_b64 exec, 0x3ffff")
    A(f"ds_write_b32 {v(t0)}, {v(t1)}")
    A("s_mov_b64 exec, -1")
    A("s_waitcnt lgkmcnt(0)")
    A("s_barrier")
    if OPT.get("prio", 1): A("s_setprio 2")
    A(f"v_lshlrev_b32 {v(t1)}, 8, {v(r16)}")
    A(f"v_lshl_add_u32 {v(t1)}, {v(l3)}, 3, {v(t1)}")
    A(f"v_and_b32 {v(t0)}, 7, {v(r16)}")
    A(f"v_lshl_add_u32 {v(vHA)}, {v(t0)}, 5, {v(t1)}")
    A(f"s_and_b32 s{S_T}, s{S_W}, 1\ns_lshl_b32 s{S_T}, s{S_T}, 7")
    A(f"v_xor_b32 {v(vHA)}, s{S_T}, {v(vHA)}")
    for b in range(1, 4): A(f"v_xor_b32 {v(vHA+b)}, {32*b}, {v(vHA)}")
    A(f"v_xor_b32 {v(t0)}, {v(g)}, {v(l7)}")
    A(f"v_lshlrev_b32 {v(t1)}, 7, {v(c16)}")
    A(f"v_lshl_add_u32 {v(t1)}, {v(t0)}, 4, {v(t1)}")
    A(f"s_lshl_b32 s{S_T}, s{S_W}, 12\ns_add_u32 s{S_T2}, s{S_T}, {4*PAGE}")
    A(f"v_add_u32 {v(vXA)}, s{S_T2}, {v(t1)}")
    A(f"v_xor_b32 {v(vXA+1)}, 64, {v(vXA)}")
    A(f"v_xor_b32 {v(vXO)}, 0x1000, {v(vXA)}")
    A(f"v_xor_b32 {v(vXO+1)}, 64, {v(vXO)}")
    A(f"v_lshlrev_b32 {v(vGA)}, 4, {v(g)}")
    A(f"v_add_u32 {v(vGA)}, {L_GATE}, {v(vGA)}")
    A(f"s_and_b32 s{S_T}, s{S_W}, 1\ns_lshl_b32 s{S_T}, s{S_T}, 7\ns_add_u32 s{S_T}, s{S_T}, {L_BIAS}")
    A(f"v_lshlrev_b32 {v(WR)}, 3, {v(g)}")
    A(f"v_add_u32 {v(WR)}, s{S_T}, {v(WR)}")
    A(f"v_and_b32 {v(t0)}, 1, {v(c16)}")
    A(f"v_cmp_eq_u32 s[{MP}:{MP+1}], 1, {v(t0)}")
    A(f"v_lshl_add_u32 {v(t1)}, {v(g)}, 2, {v(t0)}")
    A(f"v_cmp_le_u32 s[{MA}:{MA+1}], {v(t1)}, {v(c16)}")
    A(f"v_add_u32 {v(t1)}, 2, {v(t1)}")
    A(f"v_cmp_le_u32 s[{MB}:{MB+1}], {v(t1)}, {v(c16)}")
    srd(A, WS, KA+22, WS_BYTES)
    A(f"""s_or_b32 s{S_T}, s{S_RB}, s{S_W}
s_cmp_eq_u32 s{S_T}, 0
s_cselect_b32 s{MFIRST}, -1, 0
s_cselect_b32 s{MFIRST+1}, -1, 0
s_lshl_b32 s{S_T}, s{S_RB}, 3
s_lshl_b32 s{S_T2}, s{S_W}, 1
s_add_u32 s{S_T}, s{S_T}, s{S_T2}
s_mul_i32 s{S_FR}, s{S_T}, {72*1024}
s_lshl_b32 s{S_GT}, s{S_T}, 6
s_add_u32 s{S_GT}, s{S_GT}, {WS_G}
s_xor_b32 s{S_T}, s{S_T}, 2
s_mul_i32 s{S_P}, s{S_T}, {72*1024}
s_lshl_b32 s{S_T}, s{S_HW}, 4
s_and_b32 s{S_T2}, s{S_W}, 1
s_lshl_b32 s{S_T2}, s{S_T2}, 11
s_add_u32 s{S_T}, s{S_T}, s{S_T2}
s_add_u32 s{S_HS}, s{S_FR}, s{S_T}
s_add_u32 s{S_HS+1}, s{S_HS}, 73728
s_add_u32 s{S_HS+2}, s{S_P}, s{S_T}
s_add_u32 s{S_HS+3}, s{S_HS+2}, 73728
s_and_b32 s{S_T}, s{S_HC}, 3
s_lshl_b32 s{S_T}, s{S_T}, 1
s_and_b32 s{S_T2}, s{S_W}, 1
s_add_u32 s{S_T}, s{S_T}, s{S_T2}
s_cmp_eq_u32 s{S_T}, 6
s_cselect_b32 s{S_T2}, 0x40000000, 0""")
    A(f"v_or_b32 {v(vFRa)}, s{S_T2}, {v(vFR)}")
    A(f"s_cmp_eq_u32 s{S_T}, 5\ns_cselect_b32 s{S_T2}, 0x40000000, 0")
    A(f"v_or_b32 {v(vFRb)}, s{S_T2}, {v(vFR)}")
    A(f"""s_lshl_b32 s{S_T}, s{S_HC}, 10
s_add_u32 s{S_OS}, s{S_FR}, s{S_T}
s_add_u32 s{S_OS}, s{S_OS}, {56*1024}
s_lshl_b32 s{S_T}, s{S_RB}, 1
s_lshr_b32 s{S_T2}, s{S_W}, 1
s_add_u32 s{S_T}, s{S_T}, s{S_T2}
s_lshl_b32 s{S_T}, s{S_T}, 4
s_add_u32 s{S_T}, s{S_T}, s{S_HC}
s_lshl_b32 s{S_T}, s{S_T}, 1
s_and_b32 s{S_T2}, s{S_W}, 1
s_add_u32 s{S_T}, s{S_T}, s{S_T2}
s_lshl_b32 s{S_T}, s{S_T}, 3
s_add_u32 s{S_FLP}, s{S_T}, {WS_FL}""")
    ST("pro done")
    busy = [False]; cold = []
    def acquire(u):
        lds_wait_min(A, 0, max(SEQ[lu] for lu in NEED[u]) + 1)
        ST(f"acq{u}")
    def acquire_atoms(u):
        val = max(SEQ[lu] for lu in NEED[u]) + 1
        sl, ok = newlab("as"), newlab("ak")
        tk = {}
        def a0(): tk["t"] = lds_flag_read(A, 0); busy[0] = True
        def a1(): A.wait_ds(tk["t"]); A(f"v_min_u32 {v(vFV)}, {v(vFV)}, {v(vFV+1)}\ns_nop 0")
        def a3(): A(f"v_readfirstlane_b32 s{S_T2}, {v(vFV)}\ns_cmp_ge_u32 s{S_T2}, {val}\ns_cbranch_scc0 {sl}"); A.label(ok); ST(f"acq{u}"); busy[0] = False
        cold.append(f"""{sl}:
    s_sleep 1
    ds_read_b128 {v(vFV,4)}, {v(vFL)}
    s_waitcnt lgkmcnt(0)
    v_min_u32 {v(vFV)}, {v(vFV)}, {v(vFV+1)}
    s_add_u32 s{S_SPIN}, s{S_SPIN}, 1
    v_readfirstlane_b32 s{S_T2}, {v(vFV)}
    s_cmp_ge_u32 s{S_T2}, {val}
    s_cbranch_scc1 {ok}
    s_cmp_lt_u32 s{S_SPIN}, 0x200000
    s_cbranch_scc1 {sl}
    s_branch {ok}""")
        return a0, [a1, a3]
    def release(u): lds_post(A, 16, UIDX[u] + 1)
    class Frag:
        def __init__(self, unit, reads, mf): self.unit = unit; self.reads = reads; self.mf = mf
    done = set()
    def run_frags(frags, LA, hooks={}, per_gap=2, late=None):
        n = len(frags); tk = [None]*n
        state = run_frags.seq
        q = deque(); early = {}
        for i in range(n):
            if frags[i].unit not in done and (i == 0 or frags[i-1].unit != frags[i].unit) and i >= 3:
                early[i] = acquire_atoms(frags[i].unit)
        def enqueue(i):
            f = frags[i]
            if i + 3 in early: q.append((None, early[i+3][0]))
            if f.unit not in done:
                done.add(f.unit)
                if i in early:
                    for at in early[i][1]: q.append((None, at))
                else: q.append((None, lambda u=f.unit: acquire(u)))
            rl = f.reads(WR + 4*((state + i) % NWR))
            for k, ins in enumerate(rl):
                def at(ins=ins, i=i): tk[i] = A.dsop(ins)
                q.append((i if k == len(rl) - 1 else None, at))
        enq = 0; emitted = -1
        for i in range(n):
            while enq < min(n, i + LA + 1):
                enqueue(enq); enq += 1
            while emitted < i:
                fi_, at = q.popleft(); at()
                if fi_ is not None: emitted = fi_
            ms = frags[i].mf(WR + 4*((state + i) % NWR))
            if ms: A.wait_ds(tk[i])
            for ins in ms:
                A(ins)
                for _ in range(per_gap):
                    if q:
                        fi_, at = q.popleft(); at()
                        if fi_ is not None: emitted = fi_
            if (i == n - 1 or frags[i+1].unit != frags[i].unit) and frags[i].unit != late:
                if not ms: A.wait_ds(tk[i])
                q.appendleft((None, lambda u=frags[i].unit: release(u)))
            if i in hooks:
                pass
                hooks[i]()
        while q: q.popleft()[1]()
        run_frags.seq = (state + n) % NWR
    run_frags.seq = 0
    def trr(dst, va, off): return f"ds_read_b64_tr_b16 {v(dst,2)}, {v(va)} offset:{off}"
    acquire(("A", 0)); done.add(("A", 0))
    for b in range(4): tkb = A.dsop(f"ds_read_b64 {v(vRAW+2*b,2)}, {v(WR)} offset:{32*b}")
    A.wait_ds(tkb)
    for i in range(8):
        A(f"v_lshlrev_b32 {v(vBIAS+2*i)}, 16, {v(vRAW+i)}")
        A(f"v_and_b32 {v(vBIAS+2*i+1)}, 0xffff0000, {v(vRAW+i)}")
    fr = []
    for ks in range(14):
        c, s2 = ks // 2, ks % 2
        for b in range(4):
            def reads(r, ks=ks, c=c, s2=s2, b=b):
                out = []
                if b == 0:
                    for jj in range(4):
                        out.append(f"ds_read_b128 {v(axa(ks,jj),4)}, {v((vXA if jj < 2 else vXO)+s2)} offset:{(page[('X',c)]-4)*PAGE + (jj&1)*2048}")
                return out + [trr(r + 2*hf, vHA + b, page[("H", c)]*PAGE + (32*s2 + 16*hf)*256) for hf in range(2)]
            def mf(r, ks=ks, b=b):
                return [f"v_mfma_f32_16x16x32_bf16 {v(ach(jj,b),4)}, {v(r,4)}, {v(axa(ks,jj),4)}, {v(ach(jj,b),4) if ks else v(vBIAS+4*b,4)}" for jj in range(4)]
            fr.append(Frag(("A", c), reads, mf))
    run_frags(fr, 4, hooks={32: lambda: nonce_load(A, last)}, late=("A", 6) if OPT.get("lateA6", 1) else None)
    ST("A done")
    for pp in range(2):
        for jj in range(4):
            for bb in (2*pp, 2*pp + 1):
                r = ach(jj, bb)
                for i in range(4): A(f"v_max_f32 {v(r+i)}, 0, {v(r+i)}")
                A(f"v_pk_mul_f32 {v(r,2)}, {v(r,2)}, {v(r,2)}")
                A(f"v_pk_mul_f32 {v(r+2,2)}, {v(r+2,2)}, {v(r+2,2)}")
                dst = ach(jj, 2*pp) + 2 * (bb & 1)
                A(f"v_cvt_pk_bf16_f32 {v(dst)}, {v(r)}, {v(r+1)}")
                A(f"v_cvt_pk_bf16_f32 {v(dst+1)}, {v(r+2)}, {v(r+3)}")
            A.vmem(f"buffer_store_dwordx4 {v(ach(jj,2*pp),4)}, {v(vFRb if pp else vFRa)}, s[{WS}:{WS+3}], s{S_HS+jj} offen offset:{1024*pp} sc1")
    if OPT.get("lateA6", 1): release(("A", 6))
    ST("H epi done")
    A(f"v_bfe_u32 {v(t0)}, {v(vL)}, 4, 1")
    A(f"v_lshlrev_b32 {v(vQA)}, 6, {v(r16)}")
    A(f"v_lshl_add_u32 {v(vQA)}, {v(t0)}, 5, {v(vQA)}")
    A(f"v_lshl_add_u32 {v(vQA)}, {v(l3)}, 3, {v(vQA)}")
    A(f"v_xor_b32 {v(vQA+1)}, 32, {v(vQA)}")
    A(f"""s_and_b32 s{S_T}, s{S_W}, 1
s_lshl_b32 s{S_T}, s{S_T}, 5
s_lshr_b32 s{S_T2}, s{S_W}, 1
s_lshl_b32 s{S_T2}, s{S_T2}, 12""")
    A(f"v_xor_b32 {v(vQA+2)}, s{S_T}, {v(vQA)}")
    A(f"v_add_u32 {v(vQA+2)}, s{S_T2}, {v(vQA+2)}")
    A(f"v_and_b32 {v(vXH)}, 0x7ff, {v(vXA)}")
    A(f"v_xor_b32 {v(vXH+1)}, 64, {v(vXH)}")
    for z in (1, 2):
        for i in range(3): A(f"v_add_u32 {v(vQA+3*z+i)}, {z*65536}, {v(vQA+i)}")
        for i in range(2): A(f"v_add_u32 {v(vXH+2*z+i)}, {z*65536}, {v(vXH+i)}")
    nonce_check(A, last)
    def pubH():
        A.wait_vm_all(); publish(A, S_FLP, 0); ST("H pub")
    fr = []
    for ks in range(14):
        c, s2 = ks // 2, ks % 2; pg = page[("Q", c)]; z = pg // 4; rel = (pg % 4) * PAGE
        hold = {}
        for f in range(9):
            def reads(r, ks=ks, s2=s2, f=f, z=z, rel=rel, hold=hold):
                if f == 6:
                    hold["x"] = r
                    return [f"ds_read_b128 {v(r,4)}, {v(vXH+2*z+s2)} offset:{rel + 12288}"]
                if f == 8: return [f"ds_read_b128 {v(r,4)}, {v(vGA)} offset:{64*ks}"]
                va = vQA + 3*z + (2 if f == 7 else (f & 1)); ro = 4096 if f == 7 else 4096*(f//2)
                return [trr(r + 2*hf, va, rel + ro + (32*s2 + 16*hf)*64) for hf in range(2)]
            def mf(r, ks=ks, f=f, hold=hold):
                if f == 6: return []
                if f == 7:
                    d = v(ACC_HL, 4)
                    return [f"v_mfma_f32_16x16x32_bf16 {d}, {v(r,4)}, {v(hold['x'],4)}, {d if ks else '0'}"]
                out = []
                for tb in range(2):
                    d = v(ACG + 4*tb, 4) if f == 8 else v(acq(tb, f), 4)
                    cc = d if ks else "0"
                    wf, xf = v(r, 4), v(ax(ks, tb), 4)
                    out.append(f"v_mfma_f32_16x16x32_bf16 {d}, {xf}, {wf}, {cc}" if f in (4, 5) else f"v_mfma_f32_16x16x32_bf16 {d}, {wf}, {xf}, {cc}")
                return out
            fr.append(Frag(("Q", c), reads, mf))
    PH = OPT.get("pubH", -1)
    if OPT.get("apub", 0):
        S_DONE = 53
        A(f"s_mov_b32 s{S_DONE}, 0")
        def chk():
            pl, bk = newlab("ap"), newlab("ab")
            A(f"s_getreg_b32 s{S_T}, hwreg(HW_REG_IB_STS)")
            A(f"s_and_b32 s{S_T}, s{S_T}, 0xc0000f")
            A(f"s_or_b32 s{S_T}, s{S_T}, s{S_DONE}")
            A(f"s_cbranch_scc0 {pl}")
            A.label(bk)
            cold.append(f"""{pl}:
    s_waitcnt vmcnt(0)
    v_mov_b32 {v(vN)}, s{NON}
    v_mov_b32 {v(vN+1)}, s{NON+1}
    s_mov_b32 s{S_DONE}, 1
    s_mov_b64 exec, 1
    buffer_store_dwordx2 {v(vN,2)}, {v(vZ)}, s[{WS}:{WS+3}], s{S_FLP} offen sc1
    s_mov_b64 exec, -1
    s_branch {bk}""")
        step = OPT["apub"]
        chk()
        run_frags(fr, NWR - 2, hooks={i: chk for i in range(step, 126, step)})
        lb = newlab("pd")
        A(f"s_cmp_lg_u32 s{S_DONE}, 0\ns_cbranch_scc1 {lb}")
        pubH()
        A.label(lb)
    else:
        if PH < 0: pubH()
        run_frags(fr, NWR - 2, hooks={} if PH < 0 else {PH: pubH})
    ST("B done")
    XCH = 8 * PAGE
    E = XR
    KP, QP, VP, HLP, vXCA = E, E + 12, E + 20, E + 32, E + 34
    SS = E + 40; TT_ = E + 56; PPp = E + 64; OO = E + 72; OP = E + 88
    vG3, vSEL = E + 96, E + 97
    u0, u1, u2 = E + 104, E + 105, E + 106
    tkc = lds_flag_read(A, 16)
    def pk(dst, src):
        A(f"v_cvt_pk_bf16_f32 {v(dst)}, {v(src)}, {v(src+1)}")
        A(f"v_cvt_pk_bf16_f32 {v(dst+1)}, {v(src+2)}, {v(src+3)}")
    A(f"s_lshl_b32 s{S_T}, s{S_W}, 11\ns_add_u32 s{S_T}, s{S_T}, {XCH}")
    A(f"v_add_u32 {v(vXCA)}, s{S_T}, {v(vFR)}")
    A(f"v_add_u32 {v(vXCA+1)}, s{S_T}, {v(vL8)}")
    pk(KP + 8, acq(1, 2)); pk(KP + 10, acq(1, 3))
    pk(VP + 4, acq(1, 4)); pk(VP + 10, acq(1, 5))
    lds_wait_min(A, 16, UIDX[("Q", 0)] + 1, tkc)
    pk(HLP, ACC_HL)
    A.dsop(f"ds_write_b128 {v(vXCA)}, {v(KP+8,4)} offset:2048")
    A.dsop(f"ds_write_b64 {v(vXCA+1)}, {v(VP+4,2)} offset:{2048+1024}")
    A.dsop(f"ds_write_b64 {v(vXCA+1)}, {v(VP+10,2)} offset:{2048+1536}")
    A(f"s_cmp_ge_u32 s{S_W}, 2\ns_cbranch_scc1 {kname}_hv")
    A(f"s_lshl_b32 s{S_T}, s{S_W}, 3\ns_add_u32 s{S_T}, s{S_T}, {XCH}")
    A(f"v_add_u32 {v(vXCA+2)}, s{S_T}, {v(vFR)}")
    A(f"ds_write_b64 {v(vXCA+2)}, {v(HLP,2)}")
    A(f"s_branch {kname}_hd")
    A.label(f"{kname}_hv")
    A(f"s_and_b32 s{S_T}, s{S_W}, 1\ns_lshl_b32 s{S_T}, s{S_T}, 9\ns_add_u32 s{S_T}, s{S_T}, {XCH+1024}")
    A(f"v_bfe_u32 {v(vXCA+2)}, {v(vL)}, 2, 2")
    A(f"v_lshlrev_b32 {v(vXCA+2)}, 7, {v(vXCA+2)}")
    A(f"v_lshl_add_u32 {v(vXCA+2)}, {v(g)}, 5, {v(vXCA+2)}")
    A(f"v_lshl_add_u32 {v(vXCA+2)}, {v(l3)}, 1, {v(vXCA+2)}")
    A(f"v_add_u32 {v(vXCA+2)}, s{S_T}, {v(vXCA+2)}")
    A(f"ds_write_b16 {v(vXCA+2)}, {v(HLP)}")
    A(f"ds_write_b16_d16_hi {v(vXCA+2)}, {v(HLP)} offset:8")
    A(f"ds_write_b16 {v(vXCA+2)}, {v(HLP+1)} offset:16")
    A(f"ds_write_b16_d16_hi {v(vXCA+2)}, {v(HLP+1)} offset:24")
    A.label(f"{kname}_hd")
    lds_post(A, 32, 1)
    A(f"v_cmp_eq_u32 vcc, 3, {v(g)}")
    A(f"v_mov_b32 {v(u0)}, 0x0c0c0100\nv_mov_b32 {v(u1)}, 0x01000c0c\nv_mov_b32 {v(u2)}, 0x0c0c0c0c")
    A(f"v_cndmask_b32 {v(vG3)}, -1, 0, vcc")
    A(f"v_cndmask_b32 {v(u0)}, {v(u0)}, {v(u1)}, s[{MP}:{MP+1}]")
    A(f"v_cndmask_b32 {v(vSEL+0)}, {v(u0)}, {v(u2)}, s[{MA}:{MA+1}]")
    A(f"v_cndmask_b32 {v(vSEL+2)}, {v(u2)}, {v(u0)}, s[{MA}:{MA+1}]")
    A(f"v_mov_b32 {v(u0)}, 0x0c0c0302\nv_mov_b32 {v(u1)}, 0x03020c0c")
    A(f"v_cndmask_b32 {v(u0)}, {v(u0)}, {v(u1)}, s[{MP}:{MP+1}]")
    A(f"v_cndmask_b32 {v(vSEL+1)}, {v(u0)}, {v(u2)}, s[{MB}:{MB+1}]")
    A(f"v_cndmask_b32 {v(vSEL+3)}, {v(u2)}, {v(u0)}, s[{MB}:{MB+1}]")
    for tb in range(2): A(f"v_mul_f32 {v(ACG+4*tb)}, 0xbfb8aa3b, {v(ACG+4*tb)}")
    for tb in range(2): A(f"v_exp_f32 {v(ACG+4*tb)}, {v(ACG+4*tb)}")
    A(f"v_lshrrev_b32 {v(ACG+1)}, 1, {v(vL8)}")
    for tb in range(2): A(f"v_add_f32 {v(ACG+4*tb)}, 1.0, {v(ACG+4*tb)}")
    for tb in range(2): A(f"v_rcp_f32 {v(ACG+4*tb)}, {v(ACG+4*tb)}")
    pk(KP + 4, acq(0, 2)); pk(KP + 6, acq(0, 3))
    pk(VP + 2, acq(0, 4)); pk(VP + 8, acq(0, 5))
    lb = newlab("g")
    A(f"s_cmp_lg_u32 s{S_HC}, 2\ns_cbranch_scc1 {lb}")
    A("s_mov_b64 exec, 0xffff")
    for tb in range(2): A(f"buffer_store_dword {v(ACG+4*tb)}, {v(ACG+1)}, s[{WS}:{WS+3}], s{S_GT} offen offset:{64*tb} sc1")
    A("s_mov_b64 exec, -1")
    A.label(lb)
    for tb in (1, 0):
        pk(QP + 4*tb, acq(tb, 0)); pk(QP + 2 + 4*tb, acq(tb, 1))
        A(f"v_and_b32 {v(QP+2+4*tb)}, {v(vG3)}, {v(QP+2+4*tb)}")
        A(f"v_and_b32 {v(QP+3+4*tb)}, {v(vG3)}, {v(QP+3+4*tb)}")
    A.wait_ds_all()
    lds_wait_min(A, 32, 1)
    A.dsop(f"ds_read_b128 {v(KP,4)}, {v(vXCA)}")
    A.dsop(f"ds_read_b64 {v(VP,2)}, {v(vXCA+1)} offset:1024")
    tkx = A.dsop(f"ds_read_b64 {v(VP+6,2)}, {v(vXCA+1)} offset:1536")
    A(f"s_add_u32 s{S_GT}, s{S_OS}, 73728")
    CSC = "0x3e8b97f6"
    def S_(tb, cur): return SS + 8*tb + 4*cur
    A(f"v_mfma_f32_16x16x32_bf16 {v(S_(1,0),4)}, {v(KP+4,4)}, {v(QP+4,4)}, 0")
    A(f"v_mfma_f32_16x16x32_bf16 {v(S_(1,1),4)}, {v(KP+8,4)}, {v(QP+4,4)}, 0")
    A(f"v_mfma_f32_16x16x32_bf16 {v(S_(0,1),4)}, {v(KP+4,4)}, {v(QP,4)}, 0")
    A.wait_ds(tkx)
    A(f"v_mfma_f32_16x16x32_bf16 {v(S_(0,0),4)}, {v(KP,4)}, {v(QP,4)}, 0")
    A(f"v_mov_b32 {v(u0)}, 0xf149f2ca")
    A.nop(5)
    def both(fn):
        for tb in (1, 0): fn(tb, TT_ + 4*tb, TT_ + 4*tb + 1, TT_ + 4*tb + 2, TT_ + 4*tb + 3)
    both(lambda tb, tA, tB, tC, tD: A(f"v_cndmask_b32 {v(tC)}, {v(S_(tb,1))}, {v(S_(tb,1)+1)}, s[{MP}:{MP+1}]\nv_cndmask_b32 {v(tD)}, {v(S_(tb,1)+2)}, {v(S_(tb,1)+3)}, s[{MP}:{MP+1}]"))
    both(lambda tb, tA, tB, tC, tD: A(f"v_cndmask_b32 {v(tA)}, {v(S_(tb,0))}, {v(S_(tb,0)+1)}, s[{MP}:{MP+1}]\nv_cndmask_b32 {v(tB)}, {v(S_(tb,0)+2)}, {v(S_(tb,0)+3)}, s[{MP}:{MP+1}]"))
    A(f"v_cndmask_b32 {v(TT_)}, {v(TT_)}, {v(u0)}, s[{MFIRST}:{MFIRST+1}]")
    A(f"v_cndmask_b32 {v(TT_+1)}, {v(TT_+1)}, {v(u0)}, s[{MFIRST}:{MFIRST+1}]")
    both(lambda tb, tA, tB, tC, tD: A(f"v_cndmask_b32 {v(tA)}, {v(tA)}, {v(tC)}, s[{MA}:{MA+1}]\nv_cndmask_b32 {v(tB)}, {v(tB)}, {v(tD)}, s[{MB}:{MB+1}]"))
    both(lambda tb, tA, tB, tC, tD: A(f"v_max_f32 {v(tC)}, {v(tA)}, {v(tB)}"))
    def xreduce(op):
        for sw in ("v_permlane16_swap_b32", "v_permlane32_swap_b32"):
            both(lambda tb, tA, tB, tC, tD: A(f"v_mov_b32 {v(tD)}, {v(tC)}"))
            A("s_nop 0")
            both(lambda tb, tA, tB, tC, tD: A(f"{sw} {v(tC)}, {v(tD)}"))
            A("s_nop 0")
            both(lambda tb, tA, tB, tC, tD: A(f"{op} {v(tC)}, {v(tC)}, {v(tD)}"))
    xreduce("v_max_f32")
    both(lambda tb, tA, tB, tC, tD: A(f"v_sub_f32 {v(tA)}, {v(tA)}, {v(tC)}\nv_sub_f32 {v(tB)}, {v(tB)}, {v(tC)}"))
    both(lambda tb, tA, tB, tC, tD: A(f"v_mul_f32 {v(tA)}, {CSC}, {v(tA)}\nv_mul_f32 {v(tB)}, {CSC}, {v(tB)}"))
    both(lambda tb, tA, tB, tC, tD: A(f"v_exp_f32 {v(tA)}, {v(tA)}\nv_exp_f32 {v(tB)}, {v(tB)}"))
    A("s_nop 0")
    both(lambda tb, tA, tB, tC, tD: A(f"v_add_f32 {v(tC)}, {v(tA)}, {v(tB)}"))
    xreduce("v_add_f32")
    both(lambda tb, tA, tB, tC, tD: A(f"v_rcp_f32 {v(tC)}, {v(tC)}"))
    A("s_nop 0")
    both(lambda tb, tA, tB, tC, tD: A(f"v_mul_f32 {v(tC)}, {v(tC)}, {v(ACG+4*tb)}"))
    both(lambda tb, tA, tB, tC, tD: A(f"v_mul_f32 {v(tA)}, {v(tA)}, {v(tC)}\nv_mul_f32 {v(tB)}, {v(tB)}, {v(tC)}"))
    both(lambda tb, tA, tB, tC, tD: A(f"v_cvt_pk_bf16_f32 {v(tA)}, {v(tA)}, {v(tB)}"))
    both(lambda tb, tA, tB, tC, tD: A("\n".join(f"v_perm_b32 {v(PPp+4*tb+i)}, {v(tA)}, {v(tA)}, {v(vSEL+i)}" for i in range(4))))
    A("s_nop 0")
    for tb in (1, 0):
        A(f"v_mfma_f32_16x16x32_bf16 {v(OO+8*tb,4)}, {v(VP+2*tb,4)}, {v(PPp+4*tb,4)}, 0")
        A(f"v_mfma_f32_16x16x32_bf16 {v(OO+8*tb+4,4)}, {v(VP+6+2*tb,4)}, {v(PPp+4*tb,4)}, 0")
    A.nop(6)
    for tb in (1, 0):
        op = OP + 4*tb
        pk(op, OO + 8*tb); pk(op + 2, OO + 8*tb + 4)
        A(f"v_and_b32 {v(op+2)}, {v(vG3)}, {v(op+2)}")
        A(f"v_and_b32 {v(op+3)}, {v(vG3)}, {v(op+3)}")
        A.vmem(f"buffer_store_dwordx4 {v(op,4)}, {v(vFR)}, s[{WS}:{WS+3}], s{S_OS if tb == 0 else S_GT} offen sc1")
    ST("attn done")
    A.wait_vm_all()
    publish(A, S_FLP, 8192)
    ST("O pub")
    STC.dump(A, WS, S_W8, vL, vT)
    A("s_endpgm")
    for cblk in cold: A.raw(cblk)
    A.label(f"{kname}_end")
    A("s_endpgm")
    return P.text() + L.text() + S.text() + Q.text() + C.text(), page, after

def desc(kname, nv, accoff, ns=102):
    return f""".amdhsa_kernel {kname}
  .amdhsa_next_free_vgpr {nv}
  .amdhsa_next_free_sgpr {ns}
  .amdhsa_accum_offset {accoff}
  .amdhsa_group_segment_fixed_size 0
  .amdhsa_kernarg_size 96
  .amdhsa_user_sgpr_count 2
  .amdhsa_user_sgpr_kernarg_segment_ptr 1
  .amdhsa_system_sgpr_workgroup_id_x 1
.end_amdhsa_kernel
"""

if __name__ == "__main__":
    out = sys.argv[1]
    STAMPS = "--stamps" in sys.argv
    for x in sys.argv[2:]:
        if "=" in x:
            k_, v_ = x.split("=", 1); OPT[k_] = v_.split(";") if k_.startswith("sel") else int(v_)
    k = NAME + "_kernel"
    t = f"; @launch grid=(256,1,1) block=(512,1,1) lds=163840\n"
    t += '.amdgcn_target "amdgcn-amd-amdhsa--gfx950"\n.text\n'
    body, page, after = gen(k)
    t += f".globl {k}\n.p2align 8\n.type {k},@function\n" + body
    t += '.section .rodata,"a"\n.p2align 6\n' + desc(k, 256, 256)
    open(out, "w").write(t)
```
